```python
import torch

def _softmax(x, axis=-1):
    return torch.softmax(x, dim=axis)
def _gelu(x):
    return torch.nn.functional.gelu(x, approximate="tanh")
def _silu(x):
    return torch.nn.functional.silu(x)
def _sigmoid(x):
    return torch.sigmoid(x)
def _layernorm(x, axis=-1, eps=1e-5):
    m = x.mean(dim=axis, keepdim=True)
    v = x.var(dim=axis, keepdim=True, unbiased=False)
    return (x - m) / torch.sqrt(v + eps)
def _scatter_add(tgt, idx, src, axis=0):
    return tgt.clone().index_add_(axis, idx, src)
def _segment_sum(src, seg, n):
    out = torch.zeros((n,) + src.shape[1:], dtype=src.dtype)
    return out.index_add_(0, seg, src)
def _pad(x, pw):
    flat = tuple(v for pair in reversed(pw) for v in pair)
    return torch.nn.functional.pad(x, flat)

kernel_name = 'standalone__gqa_softmax__decode'

def setup_inputs():

    _w = (lambda a: (lambda t: t.to(torch.bfloat16) if t.is_floating_point() else t)(torch.as_tensor(a)))
    B, Hq, Hkv, Sq, Sk, D = 8, 32, 8, 1, 8192, 128
    return {
        "q": _w((lambda *s: torch.randn(*s, dtype=torch.bfloat16) * 0.8)(B, Hq, Sq, D)),
        "k": _w((lambda *s: torch.randn(*s, dtype=torch.bfloat16) * 0.8)(B, Hkv, Sk, D)),
        "v": _w((lambda *s: torch.randn(*s, dtype=torch.bfloat16) * 0.05)(B, Hkv, Sk, D)),
    }

def reference(q, k, v):
    B, Hq, Sq, D = q.shape
    Hkv = k.shape[1]
    rep = Hq // Hkv
    k = (lambda x, n, axis: torch.repeat_interleave(x, n, dim=axis))(k, rep, axis=1)
    v = (lambda x, n, axis: torch.repeat_interleave(x, n, dim=axis))(v, rep, axis=1)
    scale = D ** -0.5
    scores = torch.einsum("bhqd,bhkd->bhqk", q, k) * scale
    p = _softmax(scores, axis=-1)
    return torch.einsum("bhqk,bhkd->bhqd", p, v)
```

```python
import argparse
import math
import struct

HEADER = """; Kernarg layout for this problem (48 bytes, ptrs only, base s[0:1]):
"""
NAME = "standalone__gqa_softmax__decode_kernel"


def f32bits(x):
    return struct.unpack("<I", struct.pack("<f", x))[0]


class Asm:
    def __init__(self):
        self.lines = []

    def __call__(self, s):
        self.lines.append("    " + s)

    def label(self, l):
        self.lines.append(l + ":")

    def c(self, s):
        self.lines.append("    ; " + s)

    def text(self):
        return "\n".join(self.lines) + "\n"


def vr(a, n=1):
    return f"v{a}" if n == 1 else f"v[{a}:{a+n-1}]"


def sr(a, n=1):
    return f"s{a}" if n == 1 else f"s[{a}:{a+n-1}]"


def gen(args):
    NSPLIT = args.nsplit
    NW = args.nw
    NB = args.nb
    KPWG = 8192 // NSPLIT
    KPW = KPWG // NW
    NT = KPW // 32
    NWG = 64 * NSPLIT
    kflags = args.kflags
    vflags = args.vflags
    interleave = args.interleave
    LDS_O = 0
    LDS_ML = NW * 2048
    LDS_BYTES = NW * 2048 + NW * 32
    scale_log2e = (128 ** -0.5) * math.log2(math.e)

    a = Asm()
    S_Q, S_K, S_V, S_OUT, S_DBG, S_WS = 4, 6, 8, 10, 12, 14
    SRD_K, SRD_V, SRD_Q, SRD_WS, SRD_OUT = 16, 20, 24, 28, 32
    S_BH, S_SPLIT, S_WAVE, S_T0, S_T1 = 36, 37, 38, 39, 40
    S_OFFK, S_OFFV, S_SELLO, S_SELHI, S_C = 41, 42, 43, 44, 45
    S_NEXT = 48
    V_LANE, V_OFFK, V_OFFV, V_T0, V_T1, V_M, V_L, V_T2 = 1, 2, 3, 4, 5, 6, 7, 8
    V_QA = 12
    V_S = V_QA + 32
    V_BUF = V_S + NT * 8
    V_END = V_BUF + NB * 32
    if NT * 4 >= 16:
        V_TMP = V_S + NT * 4
    else:
        V_TMP = V_END
        V_END += 16
    assert V_END <= 512
    nvgpr = V_END

    a(f"s_cmp_ge_u32 s2, {NWG}")
    a("s_cbranch_scc1 L_end")
    a(f"s_load_dwordx8 {sr(4,8)}, s[0:1], 0")
    a(f"s_load_dwordx4 {sr(12,4)}, s[0:1], 32")
    a(f"v_lshrrev_b32 {vr(V_T0)}, 6, v0")
    a(f"v_and_b32 {vr(V_LANE)}, 63, v0")
    a(f"v_readfirstlane_b32 {sr(S_WAVE)}, {vr(V_T0)}")
    a(f"s_and_b32 {sr(S_BH)}, s2, 63")
    a(f"s_lshr_b32 {sr(S_SPLIT)}, s2, 6")
    a(f"v_and_b32 {vr(V_T0)}, 3, v0")
    a(f"v_lshlrev_b32 {vr(V_T0)}, 10, {vr(V_T0)}")
    a(f"v_bfe_u32 {vr(V_T1)}, v0, 2, 2")
    a(f"v_lshl_add_u32 {vr(V_OFFK)}, {vr(V_T1)}, 8, {vr(V_T0)}")
    a(f"v_bfe_u32 {vr(V_T2)}, v0, 4, 2")
    a(f"v_lshl_add_u32 {vr(V_OFFK)}, {vr(V_T2)}, 4, {vr(V_OFFK)}")
    a(f"v_lshlrev_b32 {vr(V_T1)}, 8, {vr(V_T1)}")
    a(f"v_lshl_add_u32 {vr(V_T1)}, {vr(V_T2)}, 4, {vr(V_T1)}")
    a(f"v_lshlrev_b32 {vr(V_OFFV)}, 4, {vr(V_LANE)}")
    a(f"s_lshl_b32 {sr(S_T0)}, {sr(S_BH)}, 21")
    a(f"s_mul_i32 {sr(S_T1)}, {sr(S_SPLIT)}, {KPWG*256}")
    a(f"s_add_u32 {sr(S_T0)}, {sr(S_T0)}, {sr(S_T1)}")
    if interleave:
        wave_stride = 8192
        tile_stride = 8192 * NW
        nrec = KPWG * 256 - 0
    else:
        wave_stride = KPW * 256
        tile_stride = 8192
        nrec = KPWG * 256
    a(f"s_mul_i32 {sr(S_OFFK)}, {sr(S_WAVE)}, {wave_stride}")
    a(f"s_mov_b32 {sr(S_OFFV)}, {sr(S_OFFK)}")
    a(f"s_mov_b32 {sr(SRD_K+2)}, {nrec}")
    a(f"s_mov_b32 {sr(SRD_K+3)}, 0x20000")
    a(f"s_mov_b32 {sr(SRD_V+2)}, {nrec}")
    a(f"s_mov_b32 {sr(SRD_V+3)}, 0x20000")
    a(f"s_mov_b32 {sr(SRD_Q+2)}, 1024")
    a(f"s_mov_b32 {sr(SRD_Q+3)}, 0x20000")
    a(f"s_lshl_b32 {sr(S_T1)}, {sr(S_BH)}, 10")
    a(f"s_mov_b32 {sr(S_SELLO)}, 0x05040100")
    a(f"s_mov_b32 {sr(S_SELHI)}, 0x07060302")
    a(f"s_mov_b32 {sr(S_C)}, 0x{f32bits(scale_log2e):08x}")
    a("s_waitcnt lgkmcnt(0)")
    a(f"s_add_u32 {sr(SRD_K)}, {sr(S_K)}, {sr(S_T0)}")
    a(f"s_addc_u32 {sr(SRD_K+1)}, {sr(S_K+1)}, 0")
    a(f"s_add_u32 {sr(SRD_Q)}, {sr(S_Q)}, {sr(S_T1)}")
    a(f"s_addc_u32 {sr(SRD_Q+1)}, {sr(S_Q+1)}, 0")
    a(f"s_add_u32 {sr(SRD_V)}, {sr(S_V)}, {sr(S_T0)}")
    a(f"s_addc_u32 {sr(SRD_V+1)}, {sr(S_V+1)}, 0")

    def load_tile(idx):
        buf = V_BUF + (idx % NB) * 32
        if idx < NT:
            for t in range(2):
                for j in range(4):
                    a(f"buffer_load_dwordx4 {vr(buf+16*t+4*j,4)}, {vr(V_OFFK)}, {sr(SRD_K,4)}, {sr(S_OFFK)} offen offset:{64*j} {kflags}".rstrip())
                inc = 4096 if t == 0 else tile_stride - 4096
                a(f"s_add_u32 {sr(S_OFFK)}, {sr(S_OFFK)}, {inc}")
        else:
            for t in range(2):
                for j in range(4):
                    a(f"buffer_load_dwordx4 {vr(buf+16*t+4*j,4)}, {vr(V_OFFV)}, {sr(SRD_V,4)}, {sr(S_OFFV)} offen offset:{1024*j} {vflags}".rstrip())
                inc = 4096 if t == 0 else tile_stride - 4096
                a(f"s_add_u32 {sr(S_OFFV)}, {sr(S_OFFV)}, {inc}")

    load_tile(0)
    for j in range(4):
        a(f"buffer_load_dwordx4 {vr(V_QA+4*j,4)}, {vr(V_T1)}, {sr(SRD_Q,4)}, 0 offen offset:{64*j}")
    total = 2 * NT
    for i in range(1, min(NB, total)):
        load_tile(i)
    a(f"s_mov_b32 {sr(SRD_WS)}, {sr(S_WS)}")
    a(f"s_mov_b32 {sr(SRD_WS+1)}, {sr(S_WS+1)}")
    a(f"s_mov_b32 {sr(SRD_WS+2)}, {NWG*3072}")
    a(f"s_mov_b32 {sr(SRD_WS+3)}, 0x20000")
    a(f"s_mov_b32 {sr(SRD_OUT)}, {sr(S_OUT)}")
    a(f"s_mov_b32 {sr(SRD_OUT+1)}, {sr(S_OUT+1)}")
    a(f"s_mov_b32 {sr(SRD_OUT+2)}, {64*1024}")
    a(f"s_mov_b32 {sr(SRD_OUT+3)}, 0x20000")

    issued = min(NB, total)

    def wait_tile(idx):
        n = (issued - idx - 1) * 8
        a(f"s_waitcnt vmcnt({min(n,63)})")

    for T in range(NT):
        wait_tile(T)
        buf = V_BUF + (T % NB) * 32
        for j in range(4):
            for t in range(2):
                d = V_S + T * 8 + 4 * t
                cc = "0" if j == 0 else vr(d, 4)
                a(f"v_mfma_f32_16x16x32_bf16 {vr(d,4)}, {vr(buf+16*t+4*j,4)}, {vr(V_QA+4*j,4)}, {cc}")
        if issued < total:
            load_tile(issued)
            issued += 1
    a("s_nop 7")
    n = NT * 8
    a(f"v_max3_f32 {vr(V_M)}, {vr(V_S)}, {vr(V_S+1)}, {vr(V_S+2)}")
    i = 3
    while i + 1 < n:
        a(f"v_max3_f32 {vr(V_M)}, {vr(V_M)}, {vr(V_S+i)}, {vr(V_S+i+1)}")
        i += 2
    if i < n:
        a(f"v_max_f32 {vr(V_M)}, {vr(V_M)}, {vr(V_S+i)}")

    def xgroup(op, reg):
        a(f"v_mov_b32 {vr(V_T0)}, {vr(reg)}")
        a("s_nop 1")
        a(f"v_permlane32_swap_b32 {vr(V_T0)}, {vr(reg)}")
        a("s_nop 1")
        a(f"{op} {vr(reg)}, {vr(V_T0)}, {vr(reg)}")
        a(f"v_mov_b32 {vr(V_T0)}, {vr(reg)}")
        a("s_nop 1")
        a(f"v_permlane16_swap_b32 {vr(V_T0)}, {vr(reg)}")
        a("s_nop 1")
        a(f"{op} {vr(reg)}, {vr(V_T0)}, {vr(reg)}")

    xgroup("v_max_f32", V_M)
    a(f"v_mul_f32 {vr(V_M)}, {sr(S_C)}, {vr(V_M)}")
    for i in range(n):
        a(f"v_fma_f32 {vr(V_S+i)}, {vr(V_S+i)}, {sr(S_C)}, -{vr(V_M)}")
    for i in range(n):
        a(f"v_exp_f32 {vr(V_S+i)}, {vr(V_S+i)}")
    a("s_nop 0")
    a(f"v_add_f32 {vr(V_L)}, {vr(V_S)}, {vr(V_S+1)}")
    a(f"v_add_f32 {vr(V_T2)}, {vr(V_S+2)}, {vr(V_S+3)}")
    for i in range(4, n, 2):
        a(f"v_add_f32 {vr(V_L)}, {vr(V_L)}, {vr(V_S+i)}")
        a(f"v_add_f32 {vr(V_T2)}, {vr(V_T2)}, {vr(V_S+i+1)}")
    a(f"v_add_f32 {vr(V_L)}, {vr(V_L)}, {vr(V_T2)}")
    for i in range(n // 2):
        a(f"v_cvt_pk_bf16_f32 {vr(V_S+i)}, {vr(V_S+2*i)}, {vr(V_S+2*i+1)}")
    xgroup("v_add_f32", V_L)

    for T in range(NT):
        idx = NT + T
        wait_tile(idx)
        buf = V_BUF + (idx % NB) * 32
        P = V_S + 4 * T
        for q in range(4):
            tmp = V_TMP + (q % 2) * 8
            for p in range(4):
                lo = buf + 4 * (2 * p) + q
                hi = buf + 4 * (2 * p + 1) + q
                a(f"v_perm_b32 {vr(tmp+p)}, {vr(hi)}, {vr(lo)}, {sr(S_SELLO)}")
            for p in range(4):
                lo = buf + 4 * (2 * p) + q
                hi = buf + 4 * (2 * p + 1) + q
                a(f"v_perm_b32 {vr(tmp+4+p)}, {vr(hi)}, {vr(lo)}, {sr(S_SELHI)}")
            d0 = V_QA + 4 * (2 * q)
            d1 = V_QA + 4 * (2 * q + 1)
            a(f"v_mfma_f32_16x16x32_bf16 {vr(d0,4)}, {vr(P,4)}, {vr(tmp,4)}, {'0' if T == 0 else vr(d0,4)}")
            a("s_nop 0")
            a(f"v_mfma_f32_16x16x32_bf16 {vr(d1,4)}, {vr(P,4)}, {vr(tmp+4,4)}, {'0' if T == 0 else vr(d1,4)}")
        if issued < total:
            load_tile(issued)
            issued += 1

    G = V_BUF
    a(f"s_lshl_b32 {sr(S_T0)}, {sr(S_WAVE)}, 11")
    a(f"v_add_u32 {vr(V_T0)}, {sr(S_T0)}, {vr(V_OFFV)}")
    a(f"s_lshl_b32 {sr(S_T1)}, {sr(S_WAVE)}, 5")
    a(f"v_bfe_u32 {vr(V_T1)}, v0, 2, 2")
    a(f"v_lshlrev_b32 {vr(V_T1)}, 3, {vr(V_T1)}")
    a(f"v_add_u32 {vr(V_T1)}, {sr(S_T1)}, {vr(V_T1)}")
    a(f"ds_write_b64 {vr(V_T1)}, {vr(V_M,2)} offset:{LDS_ML}")
    a("s_nop 4")
    for dd in range(8):
        a(f"v_mov_b32 {vr(G+dd)}, {vr(V_QA+4*dd)}")
    a(f"ds_write_b128 {vr(V_T0)}, {vr(G,4)} offset:{LDS_O}")
    a(f"ds_write_b128 {vr(V_T0)}, {vr(G+4,4)} offset:{LDS_O+1024}")
    a("s_waitcnt lgkmcnt(0)")
    a("s_barrier")
    a(f"s_cmp_lg_u32 {sr(S_WAVE)}, 0")
    a("s_cbranch_scc1 L_end")
    ML = G
    OB = G + 2 * NW
    ACC = V_QA
    assert OB + NW * 8 <= V_END
    a(f"v_bfe_u32 {vr(V_T1)}, v0, 4, 2")
    a(f"v_lshlrev_b32 {vr(V_T1)}, 3, {vr(V_T1)}")
    for w in range(NW):
        a(f"ds_read_b64 {vr(ML+2*w,2)}, {vr(V_T1)} offset:{LDS_ML+32*w}")
    for w in range(NW):
        a(f"ds_read_b128 {vr(OB+8*w,4)}, {vr(V_OFFV)} offset:{LDS_O+2048*w}")
        a(f"ds_read_b128 {vr(OB+8*w+4,4)}, {vr(V_OFFV)} offset:{LDS_O+2048*w+1024}")

    def merge(nparts, mreg, lreg, oreg, first_wait, per_part_wait):
        first_wait()
        M = ACC + 8
        L = ACC + 9
        a(f"v_max_f32 {vr(M)}, {vr(mreg(0))}, {vr(mreg(1))}")
        for w in range(2, nparts):
            a(f"v_max_f32 {vr(M)}, {vr(M)}, {vr(mreg(w))}")
        for w in range(nparts):
            a(f"v_sub_f32 {vr(mreg(w))}, {vr(mreg(w))}, {vr(M)}")
        for w in range(nparts):
            a(f"v_exp_f32 {vr(mreg(w))}, {vr(mreg(w))}")
        a("s_nop 0")
        a(f"v_mul_f32 {vr(L)}, {vr(mreg(0))}, {vr(lreg(0))}")
        for w in range(1, nparts):
            a(f"v_fmac_f32 {vr(L)}, {vr(mreg(w))}, {vr(lreg(w))}")
        for w in range(nparts):
            per_part_wait(w)
            for e in range(8):
                if w == 0:
                    a(f"v_mul_f32 {vr(ACC+e)}, {vr(mreg(0))}, {vr(oreg(0)+e)}")
                else:
                    a(f"v_fmac_f32 {vr(ACC+e)}, {vr(mreg(w))}, {vr(oreg(w)+e)}")

    merge(NW, lambda w: ML + 2 * w, lambda w: ML + 2 * w + 1, lambda w: OB + 8 * w,
          lambda: a(f"s_waitcnt lgkmcnt({min(15, 2*NW)})") if 2 * NW <= 15 else a("s_waitcnt lgkmcnt(15)"),
          lambda w: a(f"s_waitcnt lgkmcnt({min(15, 2*(NW-1-w))})"))
    a(f"v_mov_b32 {vr(ACC+10)}, 0")
    a(f"v_mov_b32 {vr(ACC+11)}, 0")
    a(f"s_mul_i32 {sr(S_T0)}, {sr(S_BH)}, {NSPLIT*3072}")
    a(f"s_mul_i32 {sr(S_T1)}, {sr(S_SPLIT)}, 3072")
    a(f"s_add_u32 {sr(S_T1)}, {sr(S_T1)}, {sr(S_T0)}")
    for i in range(3):
        a(f"buffer_store_dwordx4 {vr(ACC+4*i,4)}, {vr(V_OFFV)}, {sr(SRD_WS,4)}, {sr(S_T1)} offen offset:{1024*i} sc1")
    a(f"s_lshl_b32 {sr(S_T1)}, {sr(S_BH)}, 2")
    a(f"v_mov_b32 {vr(V_T0)}, {sr(S_T1)}")
    a(f"v_mov_b32 {vr(V_T1)}, 1")
    a("s_mov_b64 exec, 1")
    a("s_waitcnt vmcnt(0)")
    a(f"global_atomic_add {vr(V_T2)}, {vr(V_T0)}, {vr(V_T1)}, {sr(S_DBG,2)} sc0")
    a("s_waitcnt vmcnt(0)")
    a(f"v_readfirstlane_b32 {sr(S_T1)}, {vr(V_T2)}")
    a("s_mov_b64 exec, -1")
    a(f"s_cmp_lg_u32 {sr(S_T1)}, {NSPLIT-1}")
    a("s_cbranch_scc1 L_end")
    PB = G
    assert PB + NSPLIT * 12 <= V_END
    for s in range(NSPLIT):
        a(f"buffer_load_dwordx4 {vr(PB+12*s+8,4)}, {vr(V_OFFV)}, {sr(SRD_WS,4)}, {sr(S_T0)} offen offset:2048 sc1")
        a(f"buffer_load_dwordx4 {vr(PB+12*s,4)}, {vr(V_OFFV)}, {sr(SRD_WS,4)}, {sr(S_T0)} offen sc1")
        a(f"buffer_load_dwordx4 {vr(PB+12*s+4,4)}, {vr(V_OFFV)}, {sr(SRD_WS,4)}, {sr(S_T0)} offen offset:1024 sc1")
        a(f"s_add_u32 {sr(S_T0)}, {sr(S_T0)}, 3072")
    merge(NSPLIT, lambda s: PB + 12 * s + 8, lambda s: PB + 12 * s + 9, lambda s: PB + 12 * s,
          lambda: a("s_waitcnt vmcnt(0)"), lambda w: None)
    a(f"v_rcp_f32 {vr(ACC+9)}, {vr(ACC+9)}")
    a("s_nop 0")
    for e in range(8):
        a(f"v_mul_f32 {vr(ACC+e)}, {vr(ACC+e)}, {vr(ACC+9)}")
    for e in range(4):
        a(f"v_cvt_pk_bf16_f32 {vr(ACC+e)}, {vr(ACC+2*e)}, {vr(ACC+2*e+1)}")
    a(f"s_lshl_b32 {sr(S_T1)}, {sr(S_BH)}, 10")
    a(f"buffer_store_dwordx4 {vr(ACC,4)}, {vr(V_OFFV)}, {sr(SRD_OUT,4)}, {sr(S_T1)} offen")
    a.label("L_end")
    a("s_endpgm")

    accum = min(256, (nvgpr + 3) // 4 * 4)
    out = HEADER
    out += f"; @launch grid=({NWG},1,1) block=({NW*64},1,1) lds={LDS_BYTES}\n"
    out += '.amdgcn_target "amdgcn-amd-amdhsa--gfx950"\n.text\n'
    out += f".globl {NAME}\n.p2align 8\n.type {NAME},@function\n{NAME}:\n"
    out += a.text()
    out += f""".section .rodata,"a"
.p2align 6
.amdhsa_kernel {NAME}
  .amdhsa_next_free_vgpr {nvgpr}
  .amdhsa_next_free_sgpr {S_NEXT}
  .amdhsa_accum_offset {accum}
  .amdhsa_group_segment_fixed_size 0
  .amdhsa_kernarg_size 48
  .amdhsa_user_sgpr_count 2
  .amdhsa_user_sgpr_kernarg_segment_ptr 1
  .amdhsa_system_sgpr_workgroup_id_x 1
.end_amdhsa_kernel
"""
    return out


if __name__ == "__main__":
    ap = argparse.ArgumentParser()
    ap.add_argument("--nsplit", type=int, default=4)
    ap.add_argument("--nw", type=int, default=8)
    ap.add_argument("--nb", type=int, default=4)
    ap.add_argument("--kflags", default="")
    ap.add_argument("--vflags", default="")
    ap.add_argument("--interleave", type=int, default=0)
    ap.add_argument("-o", default="standalone__gqa_softmax__decode.s")
    args = ap.parse_args()
    open(args.o, "w").write(gen(args))
```

```python
import argparse
import math
import struct

HEADER = """; GQA decode attention (B=8, Hq=32, Hkv=8, Sk=8192, D=128), split-K flash decoding.
"""
NAME = "standalone__gqa_softmax__decode_kernel"


def f32bits(x):
    return struct.unpack("<I", struct.pack("<f", x))[0]


class Asm:
    def __init__(self):
        self.lines = []

    def __call__(self, s):
        self.lines.append("    " + s)

    def label(self, l):
        self.lines.append(l + ":")

    def c(self, s):
        self.lines.append("    ; " + s)

    def text(self):
        return "\n".join(self.lines) + "\n"


def vr(a, n=1):
    return f"v{a}" if n == 1 else f"v[{a}:{a+n-1}]"


def sr(a, n=1):
    return f"s{a}" if n == 1 else f"s[{a}:{a+n-1}]"


def gen(args):
    NSPLIT = args.nsplit
    NW = args.nw
    NB = args.nb
    KPWG = 8192 // NSPLIT
    KPW = KPWG // NW
    NT = KPW // 32
    assert NT % 4 == 0
    NA = NT // 4
    NWG = 64 * NSPLIT
    flags = args.flags
    LDS_O = 0
    LDS_ML = NW * 2048
    LDS_BYTES = NW * 2048 + NW * 32
    scale_log2e = (128 ** -0.5) * math.log2(math.e)

    a = Asm()
    S_Q, S_K, S_V, S_OUT, S_DBG, S_WS = 4, 6, 8, 10, 12, 14
    SRD_K, SRD_V, SRD_Q, SRD_WS, SRD_OUT = 16, 20, 24, 28, 32
    S_BH, S_SPLIT, S_WAVE, S_T0, S_T1 = 36, 37, 38, 39, 40
    S_OFFK, S_OFFV, S_SELLO, S_SELHI, S_C = 41, 42, 43, 44, 45
    S_MASK = 46
    S_NEXT = 54
    S_ST = 54
    NSTAMP = 10
    if args.stamps:
        S_NEXT = S_ST + 2 * NSTAMP + 4

    def stamp(i, wait=False):
        if args.stamps:
            a(f"s_memrealtime {sr(S_ST+2*i,2)}")
            if wait:
                a("s_waitcnt lgkmcnt(0)")

    def dump_stamps():
        if not args.stamps:
            return
        SB = S_ST + 2 * NSTAMP
        a("s_waitcnt lgkmcnt(0)")
        a(f"s_mul_i32 {sr(SB+2)}, s2, {NW}")
        a(f"s_add_u32 {sr(SB+2)}, {sr(SB+2)}, {sr(S_WAVE)}")
        a(f"s_lshl_b32 {sr(SB+2)}, {sr(SB+2)}, 7")
        a(f"s_add_u32 {sr(SB+2)}, {sr(SB+2)}, {16<<20}")
        a(f"s_add_u32 {sr(SB)}, {sr(S_WS)}, {sr(SB+2)}")
        a(f"s_addc_u32 {sr(SB+1)}, {sr(S_WS+1)}, 0")
        a("s_mov_b64 exec, 1")
        a("v_mov_b32 v4, 0")
        for i in range(NSTAMP):
            a(f"v_mov_b32 v6, {sr(S_ST+2*i)}")
            a(f"v_mov_b32 v7, {sr(S_ST+2*i+1)}")
            a(f"global_store_dwordx2 v4, v[6:7], {sr(SB,2)} offset:{8*i}")
            a("s_nop 1")
        a("s_getreg_b32 s3, hwreg(HW_REG_XCC_ID)")
        a("v_mov_b32 v6, s3")
        a("s_getreg_b32 s3, hwreg(HW_REG_HW_ID)")
        a("v_mov_b32 v7, s3")
        a(f"global_store_dwordx2 v4, v[6:7], {sr(SB,2)} offset:{8*NSTAMP}")

    V_OFFK, V_OFFV, V_T0, V_T1, V_T2, V_M, V_L = 1, 2, 3, 4, 5, 6, 7
    V_Q = 8
    V_P = 12
    V_PM = 16
    V_TMP = 24
    V_DA = 40
    V_S = 72
    V_BUF = V_S + NA * 8
    V_END = V_BUF + NB * 32
    assert V_END <= 256, V_END
    nvgpr = V_END

    a(f"s_cmp_ge_u32 s2, {NWG}")
    a("s_cbranch_scc1 L_exit")
    if args.stamps:
        for i in range(NSTAMP):
            a(f"s_mov_b64 {sr(S_ST+2*i,2)}, 0")
    stamp(0)
    a(f"s_load_dwordx8 {sr(4,8)}, s[0:1], 0")
    a(f"s_load_dwordx4 {sr(12,4)}, s[0:1], 32")
    a(f"v_lshrrev_b32 {vr(V_T0)}, 6, v0")
    a(f"v_and_b32 {vr(V_OFFV)}, 63, v0")
    a(f"v_readfirstlane_b32 {sr(S_WAVE)}, {vr(V_T0)}")
    if args.wgmap == 0:
        a(f"s_and_b32 {sr(S_BH)}, s2, 63")
        a(f"s_lshr_b32 {sr(S_SPLIT)}, s2, 6")
    else:
        a(f"s_lshr_b32 {sr(S_BH)}, s2, {int(math.log2(NSPLIT))}")
        a(f"s_and_b32 {sr(S_SPLIT)}, s2, {NSPLIT-1}")
    a(f"v_and_b32 {vr(V_T0)}, 3, v0")
    a(f"v_bfe_u32 {vr(V_T1)}, v0, 2, 2")
    a(f"v_bfe_u32 {vr(V_T2)}, v0, 4, 2")
    a(f"v_lshlrev_b32 {vr(V_T2)}, 6, {vr(V_T2)}")
    a(f"v_lshl_add_u32 {vr(V_OFFK)}, {vr(V_T1)}, 8, {vr(V_T2)}")
    a(f"v_lshl_add_u32 {vr(V_OFFK)}, {vr(V_T0)}, 4, {vr(V_OFFK)}")
    a(f"v_lshl_add_u32 {vr(V_T2)}, {vr(V_T0)}, 8, {vr(V_T2)}")
    a(f"v_lshl_add_u32 {vr(V_T2)}, {vr(V_T1)}, 4, {vr(V_T2)}")
    a(f"v_lshlrev_b32 {vr(V_OFFV)}, 4, {vr(V_OFFV)}")
    a(f"s_lshl_b32 {sr(S_T0)}, {sr(S_BH)}, 21")
    a(f"s_mul_i32 {sr(S_T1)}, {sr(S_SPLIT)}, {KPWG*256}")
    a(f"s_add_u32 {sr(S_T0)}, {sr(S_T0)}, {sr(S_T1)}")
    tile_stride = 8192 * NW
    nrec = KPWG * 256
    a(f"s_lshl_b32 {sr(S_OFFK)}, {sr(S_WAVE)}, 13")
    a(f"s_mov_b32 {sr(S_OFFV)}, {sr(S_OFFK)}")
    a(f"s_mov_b32 {sr(SRD_K+2)}, {nrec}")
    a(f"s_mov_b32 {sr(SRD_K+3)}, 0x20000")
    a(f"s_mov_b32 {sr(SRD_V+2)}, {nrec}")
    a(f"s_mov_b32 {sr(SRD_V+3)}, 0x20000")
    a(f"s_mov_b32 {sr(SRD_Q+2)}, 1024")
    a(f"s_mov_b32 {sr(SRD_Q+3)}, 0x20000")
    a(f"s_lshl_b32 {sr(S_T1)}, {sr(S_BH)}, 10")
    a("s_waitcnt lgkmcnt(0)")
    a(f"s_add_u32 {sr(SRD_K)}, {sr(S_K)}, {sr(S_T0)}")
    a(f"s_addc_u32 {sr(SRD_K+1)}, {sr(S_K+1)}, 0")
    a(f"s_add_u32 {sr(SRD_Q)}, {sr(S_Q)}, {sr(S_T1)}")
    a(f"s_addc_u32 {sr(SRD_Q+1)}, {sr(S_Q+1)}, 0")

    def load_tile(idx):
        buf = V_BUF + (idx % NB) * 32
        if idx < NT:
            voff, srd, soff = V_OFFK, SRD_K, S_OFFK
        else:
            voff, srd, soff = V_OFFV, SRD_V, S_OFFV
        for t in range(2):
            for j in range(4):
                a(f"buffer_load_dwordx4 {vr(buf+16*t+4*j,4)}, {vr(voff)}, {sr(srd,4)}, {sr(soff)} offen offset:{1024*j} {flags}".rstrip())
            inc = 4096 if t == 0 else tile_stride - 4096
            a(f"s_add_u32 {sr(soff)}, {sr(soff)}, {inc}")

    a(f"buffer_load_dwordx4 {vr(V_Q,4)}, {vr(V_T2)}, {sr(SRD_Q,4)}, 0 offen")
    total = 2 * NT
    for i in range(min(NB, total)):
        load_tile(i)
    stamp(1)
    a(f"s_add_u32 {sr(SRD_V)}, {sr(S_V)}, {sr(S_T0)}")
    a(f"s_addc_u32 {sr(SRD_V+1)}, {sr(S_V+1)}, 0")
    a(f"s_mov_b32 {sr(S_SELLO)}, 0x05040100")
    a(f"s_mov_b32 {sr(S_SELHI)}, 0x07060302")
    a(f"s_mov_b32 {sr(S_C)}, 0x{f32bits(scale_log2e):08x}")
    for b in range(4):
        m = 0x000F000F << (4 * b)
        a(f"s_mov_b32 {sr(S_MASK+2*b)}, 0x{m:08x}")
        a(f"s_mov_b32 {sr(S_MASK+2*b+1)}, 0x{m:08x}")
    a(f"s_mov_b32 {sr(SRD_WS)}, {sr(S_WS)}")
    a(f"s_mov_b32 {sr(SRD_WS+1)}, {sr(S_WS+1)}")
    a(f"s_mov_b32 {sr(SRD_WS+2)}, {NWG*3072}")
    a(f"s_mov_b32 {sr(SRD_WS+3)}, 0x20000")
    a(f"s_mov_b32 {sr(SRD_OUT)}, {sr(S_OUT)}")
    a(f"s_mov_b32 {sr(SRD_OUT+1)}, {sr(S_OUT+1)}")
    a(f"s_mov_b32 {sr(SRD_OUT+2)}, {64*1024}")
    a(f"s_mov_b32 {sr(SRD_OUT+3)}, 0x20000")

    issued = min(NB, total)

    def wait_tile(idx):
        n = (issued - idx - 1) * 8
        a(f"s_waitcnt vmcnt({min(n,63)})")

    def dpp(b, r):
        n = (4 * (b - r)) % 16
        ctl = "quad_perm:[0,1,2,3]" if n == 0 else f"row_ror:{n}"
        return f"{ctl} row_mask:0xf bank_mask:0x{1<<b:x}"

    for T in range(NT):
        A, b = T // 4, T % 4
        wait_tile(T)
        if T == 0:
            stamp(2)
        buf = V_BUF + (T % NB) * 32
        for i in range(8):
            a(f"v_mfma_f32_16x16x32_bf16 {vr(V_DA+4*i,4)}, {vr(buf+4*i,4)}, {vr(V_Q,4)}, 0")
        if issued < total:
            load_tile(issued)
            issued += 1
        else:
            a("s_nop 7")
        for r in range(4):
            for i in range(8):
                s = V_S + 8 * A + i
                if r == 0:
                    a(f"v_mov_b32_dpp {vr(s)}, {vr(V_DA+4*i)} {dpp(b, 0)}")
                else:
                    a(f"v_add_f32_dpp {vr(s)}, {vr(V_DA+4*i+r)}, {vr(s)} {dpp(b, r)}")
        if b == 3:
            s = V_S + 8 * A
            if A == 0:
                a(f"v_max3_f32 {vr(V_M)}, {vr(s)}, {vr(s+1)}, {vr(s+2)}")
                a(f"v_max3_f32 {vr(V_M)}, {vr(V_M)}, {vr(s+3)}, {vr(s+4)}")
                a(f"v_max3_f32 {vr(V_M)}, {vr(V_M)}, {vr(s+5)}, {vr(s+6)}")
                a(f"v_max_f32 {vr(V_M)}, {vr(V_M)}, {vr(s+7)}")
            else:
                for i in range(0, 8, 2):
                    a(f"v_max3_f32 {vr(V_M)}, {vr(V_M)}, {vr(s+i)}, {vr(s+i+1)}")
    stamp(3)

    def allreduce(op, reg):
        a("s_nop 1")
        a(f"{op}_dpp {vr(reg)}, {vr(reg)}, {vr(reg)} row_ror:4 row_mask:0xf bank_mask:0xf")
        a("s_nop 1")
        a(f"{op}_dpp {vr(reg)}, {vr(reg)}, {vr(reg)} row_ror:8 row_mask:0xf bank_mask:0xf")
        a(f"v_mov_b32 {vr(V_T0)}, {vr(reg)}")
        a("s_nop 1")
        a(f"v_permlane32_swap_b32 {vr(V_T0)}, {vr(reg)}")
        a("s_nop 1")
        a(f"{op} {vr(reg)}, {vr(V_T0)}, {vr(reg)}")
        a(f"v_mov_b32 {vr(V_T0)}, {vr(reg)}")
        a("s_nop 1")
        a(f"v_permlane16_swap_b32 {vr(V_T0)}, {vr(reg)}")
        a("s_nop 1")
        a(f"{op} {vr(reg)}, {vr(V_T0)}, {vr(reg)}")

    allreduce("v_max_f32", V_M)
    a(f"v_mul_f32 {vr(V_M)}, {sr(S_C)}, {vr(V_M)}")
    stamp(4)

    for T in range(NT):
        A, b = T // 4, T % 4
        idx = NT + T
        if b == 0:
            s = V_S + 8 * A
            for i in range(8):
                a(f"v_fma_f32 {vr(s+i)}, {vr(s+i)}, {sr(S_C)}, -{vr(V_M)}")
            for i in range(8):
                a(f"v_exp_f32 {vr(s+i)}, {vr(s+i)}")
            a("s_nop 0")
            for i in range(4):
                a(f"v_cvt_pk_bf16_f32 {vr(V_P+i)}, {vr(s+2*i)}, {vr(s+2*i+1)}")
            a(f"v_add_f32 {vr(s)}, {vr(s)}, {vr(s+1)}")
            a(f"v_add_f32 {vr(s+2)}, {vr(s+2)}, {vr(s+3)}")
            a(f"v_add_f32 {vr(s+4)}, {vr(s+4)}, {vr(s+5)}")
            a(f"v_add_f32 {vr(s+6)}, {vr(s+6)}, {vr(s+7)}")
            a(f"v_add_f32 {vr(s)}, {vr(s)}, {vr(s+2)}")
            a(f"v_add_f32 {vr(s+4)}, {vr(s+4)}, {vr(s+6)}")
            if A == 0:
                a(f"v_add_f32 {vr(V_L)}, {vr(s)}, {vr(s+4)}")
            else:
                a(f"v_add_f32 {vr(s)}, {vr(s)}, {vr(s+4)}")
                a(f"v_add_f32 {vr(V_L)}, {vr(V_L)}, {vr(s)}")
            if A == NA - 1:
                allreduce("v_add_f32", V_L)
        PM = V_PM + 4 * (T % 2)
        for i in range(4):
            a(f"v_cndmask_b32 {vr(PM+i)}, 0, {vr(V_P+i)}, {sr(S_MASK+2*b,2)}")
        wait_tile(idx)
        buf = V_BUF + (idx % NB) * 32
        for q in range(4):
            tmp = V_TMP + (q % 2) * 8
            for p in range(4):
                lo = buf + 4 * (2 * p) + q
                hi = buf + 4 * (2 * p + 1) + q
                a(f"v_perm_b32 {vr(tmp+p)}, {vr(hi)}, {vr(lo)}, {sr(S_SELLO)}")
            for p in range(4):
                lo = buf + 4 * (2 * p) + q
                hi = buf + 4 * (2 * p + 1) + q
                a(f"v_perm_b32 {vr(tmp+4+p)}, {vr(hi)}, {vr(lo)}, {sr(S_SELHI)}")
            if q == 3 and issued < total:
                load_tile(issued)
                issued += 1
            d0 = V_DA + 4 * (2 * q)
            d1 = V_DA + 4 * (2 * q + 1)
            a(f"v_mfma_f32_16x16x32_bf16 {vr(d0,4)}, {vr(PM,4)}, {vr(tmp,4)}, {'0' if T == 0 else vr(d0,4)}")
            a("s_nop 0")
            a(f"v_mfma_f32_16x16x32_bf16 {vr(d1,4)}, {vr(PM,4)}, {vr(tmp+4,4)}, {'0' if T == 0 else vr(d1,4)}")

    stamp(5)
    G = V_S
    a(f"s_lshl_b32 {sr(S_T0)}, {sr(S_WAVE)}, 11")
    a(f"v_add_u32 {vr(V_T0)}, {sr(S_T0)}, {vr(V_OFFV)}")
    a(f"s_lshl_b32 {sr(S_T1)}, {sr(S_WAVE)}, 5")
    a(f"v_and_b32 {vr(V_T1)}, 3, v0")
    a(f"v_lshlrev_b32 {vr(V_T1)}, 3, {vr(V_T1)}")
    a(f"v_add_u32 {vr(V_T1)}, {sr(S_T1)}, {vr(V_T1)}")
    a(f"ds_write_b64 {vr(V_T1)}, {vr(V_M,2)} offset:{LDS_ML}")
    a("s_nop 1")
    for dd in range(8):
        d = V_DA + 4 * dd
        a(f"v_permlane32_swap_b32 {vr(d)}, {vr(d+2)}")
        a(f"v_permlane32_swap_b32 {vr(d+1)}, {vr(d+3)}")
    for dd in range(8):
        d = V_DA + 4 * dd
        a(f"v_add_f32 {vr(d)}, {vr(d)}, {vr(d+2)}")
        a(f"v_add_f32 {vr(d+1)}, {vr(d+1)}, {vr(d+3)}")
    for dd in range(8):
        d = V_DA + 4 * dd
        a(f"v_permlane16_swap_b32 {vr(d)}, {vr(d+1)}")
    for dd in range(8):
        d = V_DA + 4 * dd
        a(f"v_add_f32 {vr(G+dd)}, {vr(d)}, {vr(d+1)}")
    a(f"ds_write_b128 {vr(V_T0)}, {vr(G,4)} offset:{LDS_O}")
    a(f"ds_write_b128 {vr(V_T0)}, {vr(G+4,4)} offset:{LDS_O+1024}")
    a("s_waitcnt lgkmcnt(0)")
    a("s_barrier")
    stamp(6, True)
    a(f"s_cmp_lg_u32 {sr(S_WAVE)}, 0")
    a("s_cbranch_scc1 L_end")
    ML = G
    OB = G + 2 * NW + (4 - (2 * NW) % 4) % 4
    ACC = V_DA
    assert OB + NW * 8 <= V_END
    a(f"v_bfe_u32 {vr(V_T1)}, v0, 4, 2")
    a(f"v_lshlrev_b32 {vr(V_T1)}, 3, {vr(V_T1)}")
    for w in range(NW):
        a(f"ds_read_b64 {vr(ML+2*w,2)}, {vr(V_T1)} offset:{LDS_ML+32*w}")
    for w in range(NW):
        a(f"ds_read_b128 {vr(OB+8*w,4)}, {vr(V_OFFV)} offset:{LDS_O+2048*w}")
        a(f"ds_read_b128 {vr(OB+8*w+4,4)}, {vr(V_OFFV)} offset:{LDS_O+2048*w+1024}")

    def merge(nparts, mreg, lreg, oreg, first_wait, per_part_wait):
        first_wait()
        M = ACC + 8
        L = ACC + 9
        a(f"v_max_f32 {vr(M)}, {vr(mreg(0))}, {vr(mreg(1))}")
        for w in range(2, nparts):
            a(f"v_max_f32 {vr(M)}, {vr(M)}, {vr(mreg(w))}")
        for w in range(nparts):
            a(f"v_sub_f32 {vr(mreg(w))}, {vr(mreg(w))}, {vr(M)}")
        for w in range(nparts):
            a(f"v_exp_f32 {vr(mreg(w))}, {vr(mreg(w))}")
        a("s_nop 0")
        a(f"v_mul_f32 {vr(L)}, {vr(mreg(0))}, {vr(lreg(0))}")
        for w in range(1, nparts):
            a(f"v_fmac_f32 {vr(L)}, {vr(mreg(w))}, {vr(lreg(w))}")
        for w in range(nparts):
            per_part_wait(w)
            for e in range(8):
                if w == 0:
                    a(f"v_mul_f32 {vr(ACC+e)}, {vr(mreg(0))}, {vr(oreg(0)+e)}")
                else:
                    a(f"v_fmac_f32 {vr(ACC+e)}, {vr(mreg(w))}, {vr(oreg(w)+e)}")

    merge(NW, lambda w: ML + 2 * w, lambda w: ML + 2 * w + 1, lambda w: OB + 8 * w,
          lambda: a(f"s_waitcnt lgkmcnt({min(15, 2*NW)})"),
          lambda w: a(f"s_waitcnt lgkmcnt({min(15, 2*(NW-1-w))})"))
    a(f"v_mov_b32 {vr(ACC+10)}, 0")
    a(f"v_mov_b32 {vr(ACC+11)}, 0")
    a(f"s_mul_i32 {sr(S_T0)}, {sr(S_BH)}, {NSPLIT*3072}")
    a(f"s_mul_i32 {sr(S_T1)}, {sr(S_SPLIT)}, 3072")
    a(f"s_add_u32 {sr(S_T1)}, {sr(S_T1)}, {sr(S_T0)}")
    for i in range(3):
        a(f"buffer_store_dwordx4 {vr(ACC+4*i,4)}, {vr(V_OFFV)}, {sr(SRD_WS,4)}, {sr(S_T1)} offen offset:{1024*i} sc1")
    a(f"s_lshl_b32 {sr(S_T1)}, {sr(S_BH)}, 2")
    a(f"v_mov_b32 {vr(V_T0)}, {sr(S_T1)}")
    a(f"v_mov_b32 {vr(V_T1)}, 1")
    a("s_mov_b64 exec, 1")
    a("s_waitcnt vmcnt(0)")
    stamp(7)
    a(f"global_atomic_add {vr(V_T2)}, {vr(V_T0)}, {vr(V_T1)}, {sr(S_DBG,2)} sc0")
    a("s_waitcnt vmcnt(0)")
    stamp(8)
    a(f"v_readfirstlane_b32 {sr(S_T1)}, {vr(V_T2)}")
    a("s_mov_b64 exec, -1")
    a(f"s_cmp_lg_u32 {sr(S_T1)}, {NSPLIT-1}")
    a("s_cbranch_scc1 L_end")
    PB = G
    assert PB + NSPLIT * 12 <= V_END
    for s in range(NSPLIT):
        a(f"buffer_load_dwordx4 {vr(PB+12*s+8,4)}, {vr(V_OFFV)}, {sr(SRD_WS,4)}, {sr(S_T0)} offen offset:2048 sc1")
        a(f"buffer_load_dwordx4 {vr(PB+12*s,4)}, {vr(V_OFFV)}, {sr(SRD_WS,4)}, {sr(S_T0)} offen sc1")
        a(f"buffer_load_dwordx4 {vr(PB+12*s+4,4)}, {vr(V_OFFV)}, {sr(SRD_WS,4)}, {sr(S_T0)} offen offset:1024 sc1")
        a(f"s_add_u32 {sr(S_T0)}, {sr(S_T0)}, 3072")
    merge(NSPLIT, lambda s: PB + 12 * s + 8, lambda s: PB + 12 * s + 9, lambda s: PB + 12 * s,
          lambda: a("s_waitcnt vmcnt(0)"), lambda w: None)
    a(f"v_rcp_f32 {vr(ACC+9)}, {vr(ACC+9)}")
    a("s_nop 0")
    for e in range(8):
        a(f"v_mul_f32 {vr(ACC+e)}, {vr(ACC+e)}, {vr(ACC+9)}")
    for e in range(4):
        a(f"v_cvt_pk_bf16_f32 {vr(ACC+e)}, {vr(ACC+2*e)}, {vr(ACC+2*e+1)}")
    a(f"s_lshl_b32 {sr(S_T1)}, {sr(S_BH)}, 10")
    a(f"buffer_store_dwordx4 {vr(ACC,4)}, {vr(V_OFFV)}, {sr(SRD_OUT,4)}, {sr(S_T1)} offen")
    if args.stamps:
        a("s_waitcnt vmcnt(0)")
    stamp(9)
    a.label("L_end")
    dump_stamps()
    a.label("L_exit")
    a("s_endpgm")

    nvgpr = max(nvgpr, args.minv)
    accum = min(256, (nvgpr + 3) // 4 * 4)
    out = HEADER
    out += f"; @launch grid=({NWG},1,1) block=({NW*64},1,1) lds={LDS_BYTES}\n"
    out += '.amdgcn_target "amdgcn-amd-amdhsa--gfx950"\n.text\n'
    out += f".globl {NAME}\n.p2align 8\n.type {NAME},@function\n{NAME}:\n"
    out += a.text()
    out += f""".section .rodata,"a"
.p2align 6
.amdhsa_kernel {NAME}
  .amdhsa_next_free_vgpr {nvgpr}
  .amdhsa_next_free_sgpr {S_NEXT}
  .amdhsa_accum_offset {accum}
  .amdhsa_group_segment_fixed_size 0
  .amdhsa_kernarg_size 48
  .amdhsa_user_sgpr_count 2
  .amdhsa_user_sgpr_kernarg_segment_ptr 1
  .amdhsa_system_sgpr_workgroup_id_x 1
.end_amdhsa_kernel
"""
    return out


if __name__ == "__main__":
    ap = argparse.ArgumentParser()
    ap.add_argument("--nsplit", type=int, default=4)
    ap.add_argument("--nw", type=int, default=4)
    ap.add_argument("--nb", type=int, default=4)
    ap.add_argument("--flags", default="nt")
    ap.add_argument("--wgmap", type=int, default=0)
    ap.add_argument("--minv", type=int, default=0)
    ap.add_argument("--stamps", type=int, default=0)
    ap.add_argument("-o", default="standalone__gqa_softmax__decode.s")
    args = ap.parse_args()
    open(args.o, "w").write(gen(args))
```

```python
import argparse
import math
import struct

HEADER = """; GQA decode attention (B=8, Hq=32, Hkv=8, Sk=8192, D=128), split-K flash decoding.
"""
NAME = "standalone__gqa_softmax__decode_kernel"


def f32bits(x):
    return struct.unpack("<I", struct.pack("<f", x))[0]


class Asm:
    def __init__(self):
        self.lines = []

    def __call__(self, s):
        self.lines.append("    " + s)

    def label(self, l):
        self.lines.append(l + ":")

    def c(self, s):
        self.lines.append("    ; " + s)

    def text(self):
        return "\n".join(self.lines) + "\n"


def vr(a, n=1):
    return f"v{a}" if n == 1 else f"v[{a}:{a+n-1}]"


def sr(a, n=1):
    return f"s{a}" if n == 1 else f"s[{a}:{a+n-1}]"


def gen(args):
    NSPLIT = args.nsplit
    NW = args.nw
    NB = args.nb
    KPWG = 8192 // NSPLIT
    KPW = KPWG // NW
    NT = KPW // 32
    assert NT % 4 == 0
    NA = NT // 4
    NWG = 64 * NSPLIT
    flags = args.flags
    P2 = args.proto >= 2
    HELP = args.proto == 3
    NARR = NW + (1 if HELP else 0)
    SLOT = 4096
    LDS_O = 0
    LDS_ML = NW * 2048
    LDS_CNT = NW * 2048 + NW * 32
    LDS_BYTES = LDS_CNT + 16
    scale_log2e = (128 ** -0.5) * math.log2(math.e)

    a = Asm()
    S_Q, S_K, S_V, S_OUT, S_DBG, S_WS = 4, 6, 8, 10, 12, 14
    SRD_K, SRD_V, SRD_Q, SRD_WS, SRD_OUT = 16, 20, 24, 28, 32
    S_BH, S_SPLIT, S_WAVE, S_T0, S_T1 = 36, 37, 38, 39, 40
    S_OFFK, S_OFFV, S_SELLO, S_SELHI, S_C = 41, 42, 43, 44, 45
    S_MASK = 46
    S_SLOT = 54
    S_OTH = 55
    S_SPIN = S_OTH + NSPLIT - 1
    S_ROLE = S_SPIN + 1
    S_NEXT = (S_ROLE + 2) // 2 * 2
    S_ST = S_NEXT
    NSTAMP = 10
    if args.stamps:
        S_NEXT = S_ST + 2 * NSTAMP + 4

    def stamp(i, wait=False):
        if args.stamps:
            a(f"s_memrealtime {sr(S_ST+2*i,2)}")
            if wait:
                a("s_waitcnt lgkmcnt(0)")

    def dump_stamps():
        if not args.stamps:
            return
        SB = S_ST + 2 * NSTAMP
        a("s_waitcnt lgkmcnt(0)")
        a(f"s_mul_i32 {sr(SB+2)}, s2, {NARR}")
        a(f"s_add_u32 {sr(SB+2)}, {sr(SB+2)}, {sr(S_WAVE)}")
        a(f"s_lshl_b32 {sr(SB+2)}, {sr(SB+2)}, 7")
        a(f"s_add_u32 {sr(SB+2)}, {sr(SB+2)}, {16<<20}")
        a(f"s_add_u32 {sr(SB)}, {sr(S_WS)}, {sr(SB+2)}")
        a(f"s_addc_u32 {sr(SB+1)}, {sr(S_WS+1)}, 0")
        a("s_mov_b64 exec, 1")
        a("v_mov_b32 v4, 0")
        for i in range(NSTAMP):
            a(f"v_mov_b32 v6, {sr(S_ST+2*i)}")
            a(f"v_mov_b32 v7, {sr(S_ST+2*i+1)}")
            a(f"global_store_dwordx2 v4, v[6:7], {sr(SB,2)} offset:{8*i}")
            a("s_nop 1")
        a("s_getreg_b32 s3, hwreg(HW_REG_XCC_ID)")
        a("v_mov_b32 v6, s3")
        a("s_getreg_b32 s3, hwreg(HW_REG_HW_ID)")
        a("v_mov_b32 v7, s3")
        a(f"global_store_dwordx2 v4, v[6:7], {sr(SB,2)} offset:{8*NSTAMP}")

    V_OFFK, V_OFFV, V_T0, V_T1, V_T2, V_M, V_L = 1, 2, 3, 4, 5, 6, 7
    V_Q = 8
    V_P = 12
    V_PM = 16
    V_TMP = 24
    V_DA = 40
    V_S = 72
    V_BUF = V_S + NA * 8
    V_END = V_BUF + NB * 32
    assert V_END <= 256, V_END
    nvgpr = V_END

    a(f"s_cmp_ge_u32 s2, {NWG}")
    a("s_cbranch_scc1 L_exit")
    if args.stamps:
        for i in range(NSTAMP):
            a(f"s_mov_b64 {sr(S_ST+2*i,2)}, 0")
    stamp(0)
    a(f"s_load_dwordx8 {sr(4,8)}, s[0:1], 0")
    a(f"s_load_dwordx4 {sr(12,4)}, s[0:1], 32")
    a(f"v_lshrrev_b32 {vr(V_T0)}, 6, v0")
    a(f"v_and_b32 {vr(V_OFFV)}, 63, v0")
    a(f"v_readfirstlane_b32 {sr(S_WAVE)}, {vr(V_T0)}")
    if args.wgmap == 0:
        a(f"s_and_b32 {sr(S_BH)}, s2, 63")
        a(f"s_lshr_b32 {sr(S_SPLIT)}, s2, 6")
    else:
        a(f"s_lshr_b32 {sr(S_BH)}, s2, {int(math.log2(NSPLIT))}")
        a(f"s_and_b32 {sr(S_SPLIT)}, s2, {NSPLIT-1}")
    a(f"v_and_b32 {vr(V_T0)}, 3, v0")
    a(f"v_bfe_u32 {vr(V_T1)}, v0, 2, 2")
    a(f"v_bfe_u32 {vr(V_T2)}, v0, 4, 2")
    a(f"v_lshlrev_b32 {vr(V_T2)}, 6, {vr(V_T2)}")
    a(f"v_lshl_add_u32 {vr(V_OFFK)}, {vr(V_T1)}, 8, {vr(V_T2)}")
    a(f"v_lshl_add_u32 {vr(V_OFFK)}, {vr(V_T0)}, 4, {vr(V_OFFK)}")
    a(f"v_lshl_add_u32 {vr(V_T2)}, {vr(V_T0)}, 8, {vr(V_T2)}")
    a(f"v_lshl_add_u32 {vr(V_T2)}, {vr(V_T1)}, 4, {vr(V_T2)}")
    a(f"v_lshlrev_b32 {vr(V_OFFV)}, 4, {vr(V_OFFV)}")
    a(f"s_lshl_b32 {sr(S_T0)}, {sr(S_BH)}, 21")
    a(f"s_mul_i32 {sr(S_T1)}, {sr(S_SPLIT)}, {KPWG*256}")
    a(f"s_add_u32 {sr(S_T0)}, {sr(S_T0)}, {sr(S_T1)}")
    tile_stride = 8192 * NW
    nrec = KPWG * 256
    a(f"s_lshl_b32 {sr(S_OFFK)}, {sr(S_WAVE)}, 13")
    a(f"s_mov_b32 {sr(S_OFFV)}, {sr(S_OFFK)}")
    a(f"s_mov_b32 {sr(SRD_K+2)}, {nrec}")
    a(f"s_mov_b32 {sr(SRD_K+3)}, 0x20000")
    a(f"s_mov_b32 {sr(SRD_Q+2)}, 1024")
    a(f"s_mov_b32 {sr(SRD_Q+3)}, 0x20000")
    a(f"s_lshl_b32 {sr(S_T1)}, {sr(S_BH)}, 10")
    a("s_waitcnt lgkmcnt(0)")
    a(f"s_add_u32 {sr(SRD_K)}, {sr(S_K)}, {sr(S_T0)}")
    a(f"s_addc_u32 {sr(SRD_K+1)}, {sr(S_K+1)}, 0")
    a(f"s_add_u32 {sr(SRD_Q)}, {sr(S_Q)}, {sr(S_T1)}")
    a(f"s_addc_u32 {sr(SRD_Q+1)}, {sr(S_Q+1)}, 0")
    if HELP:
        a(f"s_cmp_eq_u32 {sr(S_WAVE)}, {NW}")
        a("s_cbranch_scc1 L_helper")

    ops = []
    loads = []
    state = dict(done=-1, paced=-1, allz=False)

    def issue(name, text, is_load=True):
        a(text)
        ops.append(name)
        if is_load:
            loads.append(name)
        state["allz"] = False

    def emit_wait(n):
        assert n <= 63
        a(f"s_waitcnt vmcnt({n})")
        state["done"] = max(state["done"], len(loads) - 1 - n)
        state["paced"] = max(state["paced"], len(ops) - 1 - n)
        if n == 0:
            state["allz"] = True

    def pace(name):
        k = ops.index(name)
        if k > state["paced"]:
            emit_wait(len(ops) - 1 - k)

    def wait_for(name):
        k = loads.index(name)
        if k > state["done"]:
            emit_wait(len(loads) - 1 - k)

    def is_done(name):
        return name in loads and loads.index(name) <= state["done"]

    NL = 2 * NT * 8

    def emit_load(i):
        t, j = i // 8, i % 8
        buf = V_BUF + (t % NB) * 32
        if t < NT:
            voff, srd, soff = V_OFFK, SRD_K, S_OFFK
        else:
            voff, srd, soff = V_OFFV, SRD_V, S_OFFV
        issue(f"L{i}", f"buffer_load_dwordx4 {vr(buf+4*j,4)}, {vr(voff)}, {sr(srd,4)}, {sr(soff)} offen offset:{1024*(j%4)} {flags}".rstrip())
        if j % 4 == 3:
            inc = 4096 if j == 3 else tile_stride - 4096
            a(f"s_add_u32 {sr(soff)}, {sr(soff)}, {inc}")

    def depth(i):
        if i >= NL * args.bf:
            return args.bd
        return args.d

    def setup_rest(helper=False):
        stamp(1)
        a(f"s_add_u32 {sr(SRD_V)}, {sr(S_V)}, {sr(S_T0)}")
        a(f"s_addc_u32 {sr(SRD_V+1)}, {sr(S_V+1)}, 0")
        a(f"s_mov_b32 {sr(SRD_V+2)}, {nrec}")
        a(f"s_mov_b32 {sr(SRD_V+3)}, 0x20000")
        a(f"s_mov_b32 {sr(SRD_WS)}, {sr(S_WS)}")
        a(f"s_mov_b32 {sr(SRD_WS+1)}, {sr(S_WS+1)}")
        a(f"s_mov_b32 {sr(SRD_WS+2)}, {NWG*SLOT}")
        a(f"s_mov_b32 {sr(SRD_WS+3)}, 0x20000")
        a(f"s_mul_i32 {sr(S_SPIN)}, {sr(S_BH)}, {NSPLIT*SLOT}")
        a(f"s_mul_i32 {sr(S_SLOT)}, {sr(S_SPLIT)}, {SLOT}")
        a(f"s_add_u32 {sr(S_SLOT)}, {sr(S_SLOT)}, {sr(S_SPIN)}")
        if helper:
            a.c("mark this workgroup's partial slot as not yet written (all-ones words)")
            for i in range(4):
                a(f"v_mov_b32 {vr(V_P+i)}, -1")
            for i in range(3):
                a(f"buffer_store_dwordx4 {vr(V_P,4)}, {vr(V_OFFV)}, {sr(SRD_WS,4)}, {sr(S_SLOT)} offen offset:{1024*i} {args.hflags}")
            a(f"v_mov_b32 {vr(V_M)}, 0")
            a(f"ds_write_b32 {vr(V_M)}, {vr(V_M)} offset:{LDS_CNT}")
        if P2 and not HELP:
            a.c("mark this workgroup's partial slot as not yet written (all-ones words)")
            for i in range(4):
                a(f"v_mov_b32 {vr(V_P+i)}, -1")
            a(f"s_lshl_b32 {sr(S_T1)}, {sr(S_WAVE)}, 10")
            a(f"s_add_u32 {sr(S_T1)}, {sr(S_T1)}, {sr(S_SLOT)}")
            for i in range(4 // NW):
                issue(f"INV{i}", f"buffer_store_dwordx4 {vr(V_P,4)}, {vr(V_OFFV)}, {sr(SRD_WS,4)}, {sr(S_T1)} offen offset:{1024*NW*i} {args.hflags}", False)
            a(f"v_mov_b32 {vr(V_M)}, 0")
            a(f"ds_write_b32 {vr(V_M)}, {vr(V_M)} offset:{LDS_CNT}")
        a(f"s_mov_b32 {sr(S_SELLO)}, 0x05040100")
        a(f"s_mov_b32 {sr(S_SELHI)}, 0x07060302")
        a(f"s_mov_b32 {sr(S_C)}, 0x{f32bits(scale_log2e):08x}")
        for b in range(4):
            m = 0x000F000F << (4 * b)
            a(f"s_mov_b32 {sr(S_MASK+2*b)}, 0x{m:08x}")
            a(f"s_mov_b32 {sr(S_MASK+2*b+1)}, 0x{m:08x}")
        for i in range(1, NSPLIT):
            a(f"s_add_u32 {sr(S_OTH+i-1)}, {sr(S_SPLIT)}, {i}")
            a(f"s_and_b32 {sr(S_OTH+i-1)}, {sr(S_OTH+i-1)}, {NSPLIT-1}")
            a(f"s_mul_i32 {sr(S_OTH+i-1)}, {sr(S_OTH+i-1)}, {SLOT}")
            a(f"s_add_u32 {sr(S_OTH+i-1)}, {sr(S_OTH+i-1)}, {sr(S_SPIN)}")
        a(f"s_mov_b32 {sr(SRD_OUT)}, {sr(S_OUT)}")
        a(f"s_mov_b32 {sr(SRD_OUT+1)}, {sr(S_OUT+1)}")
        a(f"s_mov_b32 {sr(SRD_OUT+2)}, {64*1024}")
        a(f"s_mov_b32 {sr(SRD_OUT+3)}, 0x20000")
        if P2:
            a("s_waitcnt lgkmcnt(0)")
            a("s_barrier")

    def dpp(b, r):
        n = (4 * (b - r)) % 16
        ctl = "quad_perm:[0,1,2,3]" if n == 0 else f"row_ror:{n}"
        return f"{ctl} row_mask:0xf bank_mask:0x{1<<b:x}"

    def allreduce(op, reg):
        a("s_nop 1")
        a(f"{op}_dpp {vr(reg)}, {vr(reg)}, {vr(reg)} row_ror:4 row_mask:0xf bank_mask:0xf")
        a("s_nop 1")
        a(f"{op}_dpp {vr(reg)}, {vr(reg)}, {vr(reg)} row_ror:8 row_mask:0xf bank_mask:0xf")
        a(f"v_mov_b32 {vr(V_T0)}, {vr(reg)}")
        a("s_nop 1")
        a(f"v_permlane32_swap_b32 {vr(V_T0)}, {vr(reg)}")
        a("s_nop 1")
        a(f"{op} {vr(reg)}, {vr(V_T0)}, {vr(reg)}")
        a(f"v_mov_b32 {vr(V_T0)}, {vr(reg)}")
        a("s_nop 1")
        a(f"v_permlane16_swap_b32 {vr(V_T0)}, {vr(reg)}")
        a("s_nop 1")
        a(f"{op} {vr(reg)}, {vr(V_T0)}, {vr(reg)}")

    pieces = []

    def k_pieces(T):
        A, b = T // 4, T % 4
        buf = V_BUF + (T % NB) * 32

        def mf(lo, hi):
            def f():
                if T == 0 and lo == 0:
                    stamp(2)
                for i in range(lo, hi):
                    a(f"v_mfma_f32_16x16x32_bf16 {vr(V_DA+4*i,4)}, {vr(buf+4*i,4)}, {vr(V_Q,4)}, 0")
            return f

        def dp(r):
            def f():
                if r == 0:
                    a("s_nop 0")
                for i in range(8):
                    s = V_S + 8 * A + i
                    if r == 0:
                        a(f"v_mov_b32_dpp {vr(s)}, {vr(V_DA+4*i)} {dpp(b, 0)}")
                    else:
                        a(f"v_add_f32_dpp {vr(s)}, {vr(V_DA+4*i+r)}, {vr(s)} {dpp(b, r)}")
                if r == 3 and b == 3:
                    s = V_S + 8 * A
                    if A == 0:
                        a(f"v_max3_f32 {vr(V_M)}, {vr(s)}, {vr(s+1)}, {vr(s+2)}")
                        a(f"v_max3_f32 {vr(V_M)}, {vr(V_M)}, {vr(s+3)}, {vr(s+4)}")
                        a(f"v_max3_f32 {vr(V_M)}, {vr(V_M)}, {vr(s+5)}, {vr(s+6)}")
                        a(f"v_max_f32 {vr(V_M)}, {vr(V_M)}, {vr(s+7)}")
                    else:
                        for i in range(0, 8, 2):
                            a(f"v_max3_f32 {vr(V_M)}, {vr(V_M)}, {vr(s+i)}, {vr(s+i+1)}")
            return f
        pieces.append((T, f"L{8*T+3}", True, mf(0, 4)))
        pieces.append((T, f"L{8*T+7}", True, mf(4, 8)))
        for r in range(4):
            pieces.append((T, None, False, dp(r)))

    def mid():
        stamp(3)
        allreduce("v_max_f32", V_M)
        a(f"v_mul_f32 {vr(V_M)}, {sr(S_C)}, {vr(V_M)}")
        stamp(4)

    def v_pieces(T):
        A, b = T // 4, T % 4
        idx = NT + T
        buf = V_BUF + (idx % NB) * 32
        PM = V_PM + 4 * (T % 2)
        last = T == NT - 1

        def ex1():
            s = V_S + 8 * A
            for i in range(8):
                a(f"v_fma_f32 {vr(s+i)}, {vr(s+i)}, {sr(S_C)}, -{vr(V_M)}")
            for i in range(8):
                a(f"v_exp_f32 {vr(s+i)}, {vr(s+i)}")

        def ex2():
            s = V_S + 8 * A
            a("s_nop 0")
            for i in range(4):
                a(f"v_cvt_pk_bf16_f32 {vr(V_P+i)}, {vr(s+2*i)}, {vr(s+2*i+1)}")
            a(f"v_add_f32 {vr(s)}, {vr(s)}, {vr(s+1)}")
            a(f"v_add_f32 {vr(s+2)}, {vr(s+2)}, {vr(s+3)}")
            a(f"v_add_f32 {vr(s+4)}, {vr(s+4)}, {vr(s+5)}")
            a(f"v_add_f32 {vr(s+6)}, {vr(s+6)}, {vr(s+7)}")
            a(f"v_add_f32 {vr(s)}, {vr(s)}, {vr(s+2)}")
            a(f"v_add_f32 {vr(s+4)}, {vr(s+4)}, {vr(s+6)}")
            if A == 0:
                a(f"v_add_f32 {vr(V_L)}, {vr(s)}, {vr(s+4)}")
            else:
                a(f"v_add_f32 {vr(s)}, {vr(s)}, {vr(s+4)}")
                a(f"v_add_f32 {vr(V_L)}, {vr(V_L)}, {vr(s)}")
            if A == NA - 1:
                allreduce("v_add_f32", V_L)

        def msk():
            for i in range(4):
                a(f"v_cndmask_b32 {vr(PM+i)}, 0, {vr(V_P+i)}, {sr(S_MASK+2*b,2)}")
            if last and P2:
                a(f"s_lshl_b32 {sr(S_T1)}, {sr(S_BH)}, 2")
                a(f"v_mov_b32 {vr(V_Q)}, {sr(S_T1)}")
                a(f"v_mov_b32 {vr(V_Q+1)}, 1")
                a(f"v_mov_b32 {vr(V_Q+3)}, 0")

        def pv(q):
            def f():
                if last and q == 0 and P2:
                    assert state["allz"]
                    a.c("every load (and the slot marking) of this wave is complete: count it")
                    a("s_mov_b64 exec, 1")
                    a(f"ds_add_rtn_u32 {vr(V_Q+2)}, {vr(V_Q+3)}, {vr(V_Q+1)} offset:{LDS_CNT}")
                    a("s_mov_b64 exec, -1")
                tmp = V_TMP + (q % 2) * 8
                for p in range(4):
                    lo = buf + 4 * (2 * p) + q
                    hi = buf + 4 * (2 * p + 1) + q
                    a(f"v_perm_b32 {vr(tmp+p)}, {vr(hi)}, {vr(lo)}, {sr(S_SELLO)}")
                for p in range(4):
                    lo = buf + 4 * (2 * p) + q
                    hi = buf + 4 * (2 * p + 1) + q
                    a(f"v_perm_b32 {vr(tmp+4+p)}, {vr(hi)}, {vr(lo)}, {sr(S_SELHI)}")
                if last and q == args.tq and P2:
                    a.c("the last wave of the workgroup to finish its loads takes the ticket and merges")
                    a("s_waitcnt lgkmcnt(0)")
                    a(f"v_readfirstlane_b32 {sr(S_ROLE)}, {vr(V_Q+2)}")
                    a("s_nop 0")
                    a(f"s_cmp_lg_u32 {sr(S_ROLE)}, {NARR-1}")
                    a("s_cbranch_scc1 L_noticket")
                    a("s_mov_b64 exec, 1")
                    a(f"global_atomic_add {vr(V_Q+2)}, {vr(V_Q)}, {vr(V_Q+1)}, {sr(S_DBG,2)} sc0")
                    a("s_mov_b64 exec, -1")
                    a.label("L_noticket")
                d0 = V_DA + 4 * (2 * q)
                d1 = V_DA + 4 * (2 * q + 1)
                a(f"v_mfma_f32_16x16x32_bf16 {vr(d0,4)}, {vr(PM,4)}, {vr(tmp,4)}, {'0' if T == 0 else vr(d0,4)}")
                a("s_nop 0")
                a(f"v_mfma_f32_16x16x32_bf16 {vr(d1,4)}, {vr(PM,4)}, {vr(tmp+4,4)}, {'0' if T == 0 else vr(d1,4)}")
            return f
        if b == 0:
            pieces.append((idx, None, False, ex1))
            pieces.append((idx, None, False, ex2))
        pieces.append((idx, None, False, msk))
        for q in range(4):
            pieces.append((idx, f"L{8*idx+7}", True, pv(q)))

    for T in range(NT):
        k_pieces(T)
    pieces.append((NT - 1, None, False, mid))
    for T in range(NT):
        v_pieces(T)

    issue("Q", f"buffer_load_dwordx4 {vr(V_Q,4)}, {vr(V_T2)}, {sr(SRD_Q,4)}, 0 offen")
    pi = 0

    def run_piece(force):
        nonlocal pi
        if pi >= len(pieces):
            return False
        t, need, rd, fn = pieces[pi]
        if need is not None and not is_done(need):
            if not force:
                return False
            wait_for(need)
        fn()
        pi += 1
        return True

    did_setup = False
    for i in range(NL):
        need = i - depth(i)
        if need >= 0:
            if not did_setup:
                setup_rest()
                did_setup = True
            pace(f"L{need}")
        t = i // 8
        if i % 8 == 0 and t >= NB:
            while any(p[0] == t - NB and p[2] for p in pieces[pi:]):
                run_piece(True)
        emit_load(i)
        if did_setup:
            for _ in range(args.ppl):
                if not run_piece(False):
                    break
    while run_piece(True):
        pass

    stamp(5)
    G = V_S
    a(f"s_lshl_b32 {sr(S_T0)}, {sr(S_WAVE)}, 11")
    a(f"v_add_u32 {vr(V_T0)}, {sr(S_T0)}, {vr(V_OFFV)}")
    a(f"s_lshl_b32 {sr(S_T1)}, {sr(S_WAVE)}, 5")
    a(f"v_and_b32 {vr(V_T1)}, 3, v0")
    a(f"v_lshlrev_b32 {vr(V_T1)}, 3, {vr(V_T1)}")
    a(f"v_add_u32 {vr(V_T1)}, {sr(S_T1)}, {vr(V_T1)}")
    a(f"ds_write_b64 {vr(V_T1)}, {vr(V_M,2)} offset:{LDS_ML}")
    a("s_nop 1")
    for dd in range(8):
        d = V_DA + 4 * dd
        a(f"v_permlane32_swap_b32 {vr(d)}, {vr(d+2)}")
        a(f"v_permlane32_swap_b32 {vr(d+1)}, {vr(d+3)}")
    for dd in range(8):
        d = V_DA + 4 * dd
        a(f"v_add_f32 {vr(d)}, {vr(d)}, {vr(d+2)}")
        a(f"v_add_f32 {vr(d+1)}, {vr(d+1)}, {vr(d+3)}")
    for dd in range(8):
        d = V_DA + 4 * dd
        a(f"v_permlane16_swap_b32 {vr(d)}, {vr(d+1)}")
    for dd in range(8):
        d = V_DA + 4 * dd
        a(f"v_add_f32 {vr(G+dd)}, {vr(d)}, {vr(d+1)}")
    a(f"ds_write_b128 {vr(V_T0)}, {vr(G,4)} offset:{LDS_O}")
    a(f"ds_write_b128 {vr(V_T0)}, {vr(G+4,4)} offset:{LDS_O+1024}")
    a("s_waitcnt lgkmcnt(0)")
    a.label("L_join")
    a("s_barrier")
    stamp(6, True)
    if P2:
        a(f"s_cmp_lg_u32 {sr(S_ROLE)}, {NARR-1}")
    else:
        a(f"s_cmp_lg_u32 {sr(S_WAVE)}, 0")
    a("s_cbranch_scc1 L_end")
    ML = G
    OB = G + 2 * NW + (4 - (2 * NW) % 4) % 4
    PB = OB + NW * 8
    ACC = V_DA
    OWN = V_DA + 12
    assert PB + (NSPLIT - 1) * 12 <= V_END
    a(f"v_bfe_u32 {vr(V_T1)}, v0, 4, 2")
    a(f"v_lshlrev_b32 {vr(V_T1)}, 3, {vr(V_T1)}")
    for w in range(NW):
        a(f"ds_read_b64 {vr(ML+2*w,2)}, {vr(V_T1)} offset:{LDS_ML+32*w}")
    for w in range(NW):
        a(f"ds_read_b128 {vr(OB+8*w,4)}, {vr(V_OFFV)} offset:{LDS_O+2048*w}")
        a(f"ds_read_b128 {vr(OB+8*w+4,4)}, {vr(V_OFFV)} offset:{LDS_O+2048*w+1024}")

    def poll_loads():
        for s_ in range(NSPLIT - 1):
            a(f"buffer_load_dwordx4 {vr(PB+12*s_+8,4)}, {vr(V_OFFV)}, {sr(SRD_WS,4)}, {sr(S_OTH+s_)} offen offset:2048 {args.hflags}")
            a(f"buffer_load_dwordx4 {vr(PB+12*s_,4)}, {vr(V_OFFV)}, {sr(SRD_WS,4)}, {sr(S_OTH+s_)} offen {args.hflags}")
            a(f"buffer_load_dwordx4 {vr(PB+12*s_+4,4)}, {vr(V_OFFV)}, {sr(SRD_WS,4)}, {sr(S_OTH+s_)} offen offset:1024 {args.hflags}")

    def publish():
        for i in range(3):
            a(f"buffer_store_dwordx4 {vr(OWN+4*i,4)}, {vr(V_OFFV)}, {sr(SRD_WS,4)}, {sr(S_SLOT)} offen offset:{1024*i} {args.hflags}")

    def merge(dst, nparts, mreg, lreg, oreg, first_wait, per_part_wait):
        first_wait()
        M = dst + 8
        L = dst + 9
        a(f"v_max_f32 {vr(M)}, {vr(mreg(0))}, {vr(mreg(1))}")
        for w in range(2, nparts):
            a(f"v_max_f32 {vr(M)}, {vr(M)}, {vr(mreg(w))}")
        for w in range(nparts):
            a(f"v_sub_f32 {vr(mreg(w))}, {vr(mreg(w))}, {vr(M)}")
        for w in range(nparts):
            a(f"v_exp_f32 {vr(mreg(w))}, {vr(mreg(w))}")
        a("s_nop 0")
        a(f"v_mul_f32 {vr(L)}, {vr(mreg(0))}, {vr(lreg(0))}")
        for w in range(1, nparts):
            a(f"v_fmac_f32 {vr(L)}, {vr(mreg(w))}, {vr(lreg(w))}")
        for w in range(nparts):
            per_part_wait(w)
            for e in range(8):
                if w == 0:
                    a(f"v_mul_f32 {vr(dst+e)}, {vr(mreg(0))}, {vr(oreg(0)+e)}")
                else:
                    a(f"v_fmac_f32 {vr(dst+e)}, {vr(mreg(w))}, {vr(oreg(w)+e)}")

    merge(OWN, NW, lambda w: ML + 2 * w, lambda w: ML + 2 * w + 1, lambda w: OB + 8 * w,
          lambda: a(f"s_waitcnt lgkmcnt({min(15, 2*NW)})"),
          lambda w: a(f"s_waitcnt lgkmcnt({min(15, 2*(NW-1-w))})"))
    if P2:
        a(f"s_mov_b32 {sr(S_SPIN)}, 0x100000")
        for e in range(10):
            a(f"v_min_u32 {vr(OWN+e)}, 0xfffffffe, {vr(OWN+e)}")
        a("s_waitcnt vmcnt(0)")
        a(f"v_readfirstlane_b32 {sr(S_T1)}, {vr(V_Q+2)}")
        stamp(7, True)
        a(f"s_cmp_eq_u32 {sr(S_T1)}, {NSPLIT-1}")
        a("s_cbranch_scc1 L_again")
        a.c("publish the partial; no word equals the all-ones marker")
        publish()
        a("s_branch L_end")
        a.label("L_again")
        poll_loads()
        a("s_waitcnt vmcnt(0)")
        regs = [PB + 12 * s_ + e for s_ in range(NSPLIT - 1) for e in range(10)]
        a(f"v_max3_u32 {vr(V_T0)}, {vr(regs[0])}, {vr(regs[1])}, {vr(regs[2])}")
        a(f"v_max3_u32 {vr(V_T1)}, {vr(regs[3])}, {vr(regs[4])}, {vr(regs[5])}")
        rest = regs[6:]
        k = 0
        while rest:
            t = V_T0 if k % 2 == 0 else V_T1
            if len(rest) >= 2:
                a(f"v_max3_u32 {vr(t)}, {vr(t)}, {vr(rest[0])}, {vr(rest[1])}")
                rest = rest[2:]
            else:
                a(f"v_max_u32 {vr(t)}, {vr(t)}, {vr(rest[0])}")
                rest = rest[1:]
            k += 1
        a(f"v_max_u32 {vr(V_T0)}, {vr(V_T0)}, {vr(V_T1)}")
        a(f"v_cmp_eq_u32 vcc, -1, {vr(V_T0)}")
        a(f"s_sub_u32 {sr(S_SPIN)}, {sr(S_SPIN)}, 1")
        a("s_cbranch_scc1 L_go")
        a("s_nop 2")
        a("s_cbranch_vccnz L_again")
        a.label("L_go")
    else:
        publish()
        a(f"s_lshl_b32 {sr(S_T1)}, {sr(S_BH)}, 2")
        a(f"v_mov_b32 {vr(V_T0)}, {sr(S_T1)}")
        a(f"v_mov_b32 {vr(V_T1)}, 1")
        a("s_mov_b64 exec, 1")
        a("s_waitcnt vmcnt(0)")
        stamp(7)
        a(f"global_atomic_add {vr(V_T2)}, {vr(V_T0)}, {vr(V_T1)}, {sr(S_DBG,2)} sc0")
        a("s_waitcnt vmcnt(0)")
        a(f"v_readfirstlane_b32 {sr(S_T1)}, {vr(V_T2)}")
        a("s_mov_b64 exec, -1")
        a(f"s_cmp_lg_u32 {sr(S_T1)}, {NSPLIT-1}")
        a("s_cbranch_scc1 L_end")
        poll_loads()
        a("s_waitcnt vmcnt(0)")
    stamp(8)
    part = lambda s_: OWN if s_ == 0 else PB + 12 * (s_ - 1)
    merge(ACC, NSPLIT, lambda s_: part(s_) + 8, lambda s_: part(s_) + 9, part, lambda: None, lambda w: None)
    a(f"v_rcp_f32 {vr(ACC+9)}, {vr(ACC+9)}")
    a("s_nop 0")
    for e in range(8):
        a(f"v_mul_f32 {vr(ACC+e)}, {vr(ACC+e)}, {vr(ACC+9)}")
    for e in range(4):
        a(f"v_cvt_pk_bf16_f32 {vr(ACC+e)}, {vr(ACC+2*e)}, {vr(ACC+2*e+1)}")
    a(f"s_lshl_b32 {sr(S_T1)}, {sr(S_BH)}, 10")
    a(f"buffer_store_dwordx4 {vr(ACC,4)}, {vr(V_OFFV)}, {sr(SRD_OUT,4)}, {sr(S_T1)} offen {args.oflags}".rstrip())
    if args.stamps:
        a("s_waitcnt vmcnt(0)")
    stamp(9)
    a.label("L_end")
    dump_stamps()
    a.label("L_exit")
    a("s_endpgm")
    if HELP:
        a.label("L_helper")
        setup_rest(True)
        a(f"s_lshl_b32 {sr(S_T1)}, {sr(S_BH)}, 2")
        a(f"v_mov_b32 {vr(V_Q)}, {sr(S_T1)}")
        a(f"v_mov_b32 {vr(V_Q+1)}, 1")
        a(f"v_mov_b32 {vr(V_Q+3)}, 0")
        a("s_waitcnt vmcnt(0)")
        a("s_mov_b64 exec, 1")
        a(f"ds_add_rtn_u32 {vr(V_Q+2)}, {vr(V_Q+3)}, {vr(V_Q+1)} offset:{LDS_CNT}")
        a("s_waitcnt lgkmcnt(0)")
        a(f"v_readfirstlane_b32 {sr(S_ROLE)}, {vr(V_Q+2)}")
        a("s_nop 0")
        a(f"s_cmp_lg_u32 {sr(S_ROLE)}, {NARR-1}")
        a("s_cbranch_scc1 L_exit")
        a.c("(only if the marking was the last thing to complete) take the ticket and merge")
        a(f"global_atomic_add {vr(V_Q+2)}, {vr(V_Q)}, {vr(V_Q+1)}, {sr(S_DBG,2)} sc0")
        a("s_mov_b64 exec, -1")
        a("s_branch L_join")

    nvgpr = max(nvgpr, args.minv)
    accum = min(256, (nvgpr + 3) // 4 * 4)
    out = HEADER
    out += f"; @launch grid=({NWG},1,1) block=({NARR*64},1,1) lds={max(LDS_BYTES, args.minlds)}\n"
    out += '.amdgcn_target "amdgcn-amd-amdhsa--gfx950"\n.text\n'
    out += f".globl {NAME}\n.p2align 8\n.type {NAME},@function\n{NAME}:\n"
    out += a.text()
    out += f""".section .rodata,"a"
.p2align 6
.amdhsa_kernel {NAME}
  .amdhsa_next_free_vgpr {nvgpr}
  .amdhsa_next_free_sgpr {S_NEXT}
  .amdhsa_accum_offset {accum}
  .amdhsa_group_segment_fixed_size 0
  .amdhsa_kernarg_size 48
  .amdhsa_user_sgpr_count 2
  .amdhsa_user_sgpr_kernarg_segment_ptr 1
  .amdhsa_system_sgpr_workgroup_id_x 1
.end_amdhsa_kernel
"""
    return out


if __name__ == "__main__":
    ap = argparse.ArgumentParser()
    ap.add_argument("--nsplit", type=int, default=4)
    ap.add_argument("--nw", type=int, default=2)
    ap.add_argument("--nb", type=int, default=3)
    ap.add_argument("--d", type=int, default=11)
    ap.add_argument("--bf", type=float, default=2.0)
    ap.add_argument("--bd", type=int, default=16)
    ap.add_argument("--ppl", type=int, default=1, help="compute pieces per load slot")
    ap.add_argument("--proto", type=int, default=2)
    ap.add_argument("--flags", default="nt")
    ap.add_argument("--hflags", default="sc1")
    ap.add_argument("--oflags", default="")
    ap.add_argument("--tq", type=int, default=1)
    ap.add_argument("--wgmap", type=int, default=0)
    ap.add_argument("--minv", type=int, default=0)
    ap.add_argument("--minlds", type=int, default=0)
    ap.add_argument("--stamps", type=int, default=0)
    ap.add_argument("-o", default="standalone__gqa_softmax__decode.s")
    args = ap.parse_args()
    open(args.o, "w").write(gen(args))
```

```python
import argparse
import math
import struct

HEADER = """; GQA decode attention (B=8, Hq=32, Hkv=8, Sk=8192, D=128), split-K flash decoding.
"""
NAME = "standalone__gqa_softmax__decode_kernel"


def f32bits(x):
    return struct.unpack("<I", struct.pack("<f", x))[0]


class Asm:
    def __init__(self):
        self.lines = []

    def __call__(self, s):
        self.lines.append("    " + s)

    def label(self, l):
        self.lines.append(l + ":")

    def c(self, s):
        self.lines.append("    ; " + s)

    def text(self):
        return "\n".join(self.lines) + "\n"


def vr(a, n=1):
    return f"v{a}" if n == 1 else f"v[{a}:{a+n-1}]"


def sr(a, n=1):
    return f"s{a}" if n == 1 else f"s[{a}:{a+n-1}]"


def gen(args):
    NSPLIT = args.nsplit
    NW = args.nw
    NB = args.nb
    KPWG = 8192 // NSPLIT
    KPW = KPWG // NW
    NT = KPW // 32
    assert NT % 4 == 0
    NA = NT // 4
    NWG = 64 * NSPLIT
    flags = args.flags
    P2 = args.proto >= 2
    HELP = args.proto == 3
    NARR = NW + (1 if HELP else 0)
    SLOT = 4096
    LDS_O = 0
    LDS_ML = NW * 2048
    LDS_CNT = NW * 2048 + NW * 32
    LDS_BYTES = LDS_CNT + 16
    scale_log2e = (128 ** -0.5) * math.log2(math.e)

    a = Asm()
    S_Q, S_K, S_V, S_OUT, S_DBG, S_WS = 4, 6, 8, 10, 12, 14
    SRD_K, SRD_V, SRD_Q, SRD_WS, SRD_OUT = 16, 20, 24, 28, 32
    S_BH, S_SPLIT, S_WAVE, S_T0, S_T1 = 36, 37, 38, 39, 40
    S_OFFK, S_OFFV, S_SELLO, S_SELHI, S_C = 41, 42, 43, 44, 45
    S_MASK = 46
    S_SLOT = 54
    S_OTH = 55
    S_SPIN = S_OTH + NSPLIT - 1
    S_ROLE = S_SPIN + 1
    S_NEXT = (S_ROLE + 2) // 2 * 2
    S_ST = S_NEXT
    NSTAMP = 10
    if args.stamps:
        S_NEXT = S_ST + 2 * NSTAMP + 4

    def stamp(i, wait=False):
        if args.stamps:
            a(f"s_memrealtime {sr(S_ST+2*i,2)}")
            if wait:
                a("s_waitcnt lgkmcnt(0)")

    def dump_stamps():
        if not args.stamps:
            return
        SB = S_ST + 2 * NSTAMP
        a("s_waitcnt lgkmcnt(0)")
        a(f"s_mul_i32 {sr(SB+2)}, s2, {NARR}")
        a(f"s_add_u32 {sr(SB+2)}, {sr(SB+2)}, {sr(S_WAVE)}")
        a(f"s_lshl_b32 {sr(SB+2)}, {sr(SB+2)}, 7")
        a(f"s_add_u32 {sr(SB+2)}, {sr(SB+2)}, {16<<20}")
        a(f"s_add_u32 {sr(SB)}, {sr(S_WS)}, {sr(SB+2)}")
        a(f"s_addc_u32 {sr(SB+1)}, {sr(S_WS+1)}, 0")
        a("s_mov_b64 exec, 1")
        a("v_mov_b32 v4, 0")
        for i in range(NSTAMP):
            a(f"v_mov_b32 v6, {sr(S_ST+2*i)}")
            a(f"v_mov_b32 v7, {sr(S_ST+2*i+1)}")
            a(f"global_store_dwordx2 v4, v[6:7], {sr(SB,2)} offset:{8*i}")
            a("s_nop 1")
        a("s_getreg_b32 s3, hwreg(HW_REG_XCC_ID)")
        a("v_mov_b32 v6, s3")
        a("s_getreg_b32 s3, hwreg(HW_REG_HW_ID)")
        a("v_mov_b32 v7, s3")
        a(f"global_store_dwordx2 v4, v[6:7], {sr(SB,2)} offset:{8*NSTAMP}")

    V_OFFK, V_OFFV, V_T0, V_T1, V_T2, V_M, V_L = 1, 2, 3, 4, 5, 6, 7
    V_Q = 8
    V_P = 12
    V_PM = 16
    V_TMP = 24
    V_DA = 40
    V_S = 72
    V_BUF = V_S + NA * 8
    V_END = V_BUF + NB * 32
    assert V_END <= 256, V_END
    nvgpr = V_END

    a(f"s_cmp_ge_u32 s2, {NWG}")
    a("s_cbranch_scc1 L_exit")
    if args.stamps:
        for i in range(NSTAMP):
            a(f"s_mov_b64 {sr(S_ST+2*i,2)}, 0")
    stamp(0)
    a(f"s_load_dwordx8 {sr(4,8)}, s[0:1], 0")
    a(f"s_load_dwordx4 {sr(12,4)}, s[0:1], 32")
    a(f"v_lshrrev_b32 {vr(V_T0)}, 6, v0")
    a(f"v_and_b32 {vr(V_OFFV)}, 63, v0")
    a(f"v_readfirstlane_b32 {sr(S_WAVE)}, {vr(V_T0)}")
    if args.wgmap == 0:
        a(f"s_and_b32 {sr(S_BH)}, s2, 63")
        a(f"s_lshr_b32 {sr(S_SPLIT)}, s2, 6")
    else:
        a(f"s_lshr_b32 {sr(S_BH)}, s2, {int(math.log2(NSPLIT))}")
        a(f"s_and_b32 {sr(S_SPLIT)}, s2, {NSPLIT-1}")
    a(f"v_and_b32 {vr(V_T0)}, 3, v0")
    a(f"v_bfe_u32 {vr(V_T1)}, v0, 2, 2")
    a(f"v_bfe_u32 {vr(V_T2)}, v0, 4, 2")
    a(f"v_lshlrev_b32 {vr(V_T2)}, 6, {vr(V_T2)}")
    a(f"v_lshl_add_u32 {vr(V_OFFK)}, {vr(V_T1)}, 8, {vr(V_T2)}")
    a(f"v_lshl_add_u32 {vr(V_OFFK)}, {vr(V_T0)}, 4, {vr(V_OFFK)}")
    a(f"v_lshl_add_u32 {vr(V_T2)}, {vr(V_T0)}, 8, {vr(V_T2)}")
    a(f"v_lshl_add_u32 {vr(V_T2)}, {vr(V_T1)}, 4, {vr(V_T2)}")
    a(f"v_lshlrev_b32 {vr(V_OFFV)}, 4, {vr(V_OFFV)}")
    a(f"s_lshl_b32 {sr(S_T0)}, {sr(S_BH)}, 21")
    a(f"s_mul_i32 {sr(S_T1)}, {sr(S_SPLIT)}, {KPWG*256}")
    a(f"s_add_u32 {sr(S_T0)}, {sr(S_T0)}, {sr(S_T1)}")
    tile_stride = 8192 * NW
    nrec = KPWG * 256
    a(f"s_lshl_b32 {sr(S_OFFK)}, {sr(S_WAVE)}, 13")
    if args.rot:
        a(f"s_lshr_b32 {sr(S_T1)}, s2, 3")
        a(f"s_mul_i32 {sr(S_T1)}, {sr(S_T1)}, {args.rot*1024}")
        a(f"s_add_u32 {sr(S_OFFK)}, {sr(S_OFFK)}, {sr(S_T1)}")
        a(f"s_and_b32 {sr(S_OFFK)}, {sr(S_OFFK)}, {nrec-1}")
    a(f"s_mov_b32 {sr(S_OFFV)}, {sr(S_OFFK)}")
    a(f"s_mov_b32 {sr(SRD_K+2)}, {nrec}")
    a(f"s_mov_b32 {sr(SRD_K+3)}, 0x20000")
    a(f"s_mov_b32 {sr(SRD_Q+2)}, 1024")
    a(f"s_mov_b32 {sr(SRD_Q+3)}, 0x20000")
    a(f"s_lshl_b32 {sr(S_T1)}, {sr(S_BH)}, 10")
    a("s_waitcnt lgkmcnt(0)")
    a(f"s_add_u32 {sr(SRD_K)}, {sr(S_K)}, {sr(S_T0)}")
    a(f"s_addc_u32 {sr(SRD_K+1)}, {sr(S_K+1)}, 0")
    a(f"s_add_u32 {sr(SRD_Q)}, {sr(S_Q)}, {sr(S_T1)}")
    a(f"s_addc_u32 {sr(SRD_Q+1)}, {sr(S_Q+1)}, 0")
    if HELP:
        a(f"s_cmp_eq_u32 {sr(S_WAVE)}, {NW}")
        a("s_cbranch_scc1 L_helper")

    ops = []
    loads = []
    state = dict(done=-1, paced=-1, allz=False)

    def issue(name, text, is_load=True):
        a(text)
        ops.append(name)
        if is_load:
            loads.append(name)
        state["allz"] = False

    def emit_wait(n):
        assert n <= 63
        a(f"s_waitcnt vmcnt({n})")
        state["done"] = max(state["done"], len(loads) - 1 - n)
        state["paced"] = max(state["paced"], len(ops) - 1 - n)
        if n == 0:
            state["allz"] = True

    def pace(name):
        k = ops.index(name)
        if k > state["paced"]:
            emit_wait(len(ops) - 1 - k)

    def wait_for(name):
        k = loads.index(name)
        if k > state["done"]:
            emit_wait(len(loads) - 1 - k)

    def is_done(name):
        return name in loads and loads.index(name) <= state["done"]

    NL = 2 * NT * 8

    def emit_load(i):
        t, j = i // 8, i % 8
        buf = V_BUF + (t % NB) * 32
        if t < NT:
            voff, srd, soff = V_OFFK, SRD_K, S_OFFK
        else:
            voff, srd, soff = V_OFFV, SRD_V, S_OFFV
        issue(f"L{i}", f"buffer_load_dwordx4 {vr(buf+4*j,4)}, {vr(voff)}, {sr(srd,4)}, {sr(soff)} offen offset:{1024*(j%4)} {flags}".rstrip())
        if j % 4 == 3:
            inc = 4096 if j == 3 else tile_stride - 4096
            a(f"s_add_u32 {sr(soff)}, {sr(soff)}, {inc}")
            if j == 7 and args.rot:
                a(f"s_and_b32 {sr(soff)}, {sr(soff)}, {nrec-1}")

    def depth(i):
        if i >= NL * args.bf:
            return args.bd
        return args.d

    def setup_rest(helper=False):
        stamp(1)
        a(f"s_add_u32 {sr(SRD_V)}, {sr(S_V)}, {sr(S_T0)}")
        a(f"s_addc_u32 {sr(SRD_V+1)}, {sr(S_V+1)}, 0")
        a(f"s_mov_b32 {sr(SRD_V+2)}, {nrec}")
        a(f"s_mov_b32 {sr(SRD_V+3)}, 0x20000")
        a(f"s_mov_b32 {sr(SRD_WS)}, {sr(S_WS)}")
        a(f"s_mov_b32 {sr(SRD_WS+1)}, {sr(S_WS+1)}")
        a(f"s_mov_b32 {sr(SRD_WS+2)}, {NWG*SLOT}")
        a(f"s_mov_b32 {sr(SRD_WS+3)}, 0x20000")
        a(f"s_mul_i32 {sr(S_SPIN)}, {sr(S_BH)}, {NSPLIT*SLOT}")
        a(f"s_mul_i32 {sr(S_SLOT)}, {sr(S_SPLIT)}, {SLOT}")
        a(f"s_add_u32 {sr(S_SLOT)}, {sr(S_SLOT)}, {sr(S_SPIN)}")
        if helper:
            a.c("mark this workgroup's partial slot as not yet written (all-ones words)")
            for i in range(4):
                a(f"v_mov_b32 {vr(V_P+i)}, -1")
            for i in range(3):
                a(f"buffer_store_dwordx4 {vr(V_P,4)}, {vr(V_OFFV)}, {sr(SRD_WS,4)}, {sr(S_SLOT)} offen offset:{1024*i} {args.hflags}")
            a(f"v_mov_b32 {vr(V_M)}, 0")
            a(f"ds_write_b32 {vr(V_M)}, {vr(V_M)} offset:{LDS_CNT}")
        if P2 and not HELP:
            a.c("mark this workgroup's partial slot as not yet written (all-ones words)")
            for i in range(4):
                a(f"v_mov_b32 {vr(V_P+i)}, -1")
            a(f"s_lshl_b32 {sr(S_T1)}, {sr(S_WAVE)}, 10")
            a(f"s_add_u32 {sr(S_T1)}, {sr(S_T1)}, {sr(S_SLOT)}")
            for i in range(4 // NW):
                issue(f"INV{i}", f"buffer_store_dwordx4 {vr(V_P,4)}, {vr(V_OFFV)}, {sr(SRD_WS,4)}, {sr(S_T1)} offen offset:{1024*NW*i} {args.hflags}", False)
            a(f"v_mov_b32 {vr(V_M)}, 0")
            a(f"ds_write_b32 {vr(V_M)}, {vr(V_M)} offset:{LDS_CNT}")
        a(f"s_mov_b32 {sr(S_SELLO)}, 0x05040100")
        a(f"s_mov_b32 {sr(S_SELHI)}, 0x07060302")
        a(f"s_mov_b32 {sr(S_C)}, 0x{f32bits(scale_log2e):08x}")
        for b in range(4):
            m = 0x000F000F << (4 * b)
            a(f"s_mov_b32 {sr(S_MASK+2*b)}, 0x{m:08x}")
            a(f"s_mov_b32 {sr(S_MASK+2*b+1)}, 0x{m:08x}")
        for i in range(1, NSPLIT):
            a(f"s_add_u32 {sr(S_OTH+i-1)}, {sr(S_SPLIT)}, {i}")
            a(f"s_and_b32 {sr(S_OTH+i-1)}, {sr(S_OTH+i-1)}, {NSPLIT-1}")
            a(f"s_mul_i32 {sr(S_OTH+i-1)}, {sr(S_OTH+i-1)}, {SLOT}")
            a(f"s_add_u32 {sr(S_OTH+i-1)}, {sr(S_OTH+i-1)}, {sr(S_SPIN)}")
        a(f"s_mov_b32 {sr(SRD_OUT)}, {sr(S_OUT)}")
        a(f"s_mov_b32 {sr(SRD_OUT+1)}, {sr(S_OUT+1)}")
        a(f"s_mov_b32 {sr(SRD_OUT+2)}, {64*1024}")
        a(f"s_mov_b32 {sr(SRD_OUT+3)}, 0x20000")
        if P2:
            a("s_waitcnt lgkmcnt(0)")
            a("s_barrier")

    def dpp(b, r):
        n = (4 * (b - r)) % 16
        ctl = "quad_perm:[0,1,2,3]" if n == 0 else f"row_ror:{n}"
        return f"{ctl} row_mask:0xf bank_mask:0x{1<<b:x}"

    def allreduce(op, reg):
        a("s_nop 1")
        a(f"{op}_dpp {vr(reg)}, {vr(reg)}, {vr(reg)} row_ror:4 row_mask:0xf bank_mask:0xf")
        a("s_nop 1")
        a(f"{op}_dpp {vr(reg)}, {vr(reg)}, {vr(reg)} row_ror:8 row_mask:0xf bank_mask:0xf")
        a(f"v_mov_b32 {vr(V_T0)}, {vr(reg)}")
        a("s_nop 1")
        a(f"v_permlane32_swap_b32 {vr(V_T0)}, {vr(reg)}")
        a("s_nop 1")
        a(f"{op} {vr(reg)}, {vr(V_T0)}, {vr(reg)}")
        a(f"v_mov_b32 {vr(V_T0)}, {vr(reg)}")
        a("s_nop 1")
        a(f"v_permlane16_swap_b32 {vr(V_T0)}, {vr(reg)}")
        a("s_nop 1")
        a(f"{op} {vr(reg)}, {vr(V_T0)}, {vr(reg)}")

    pieces = []

    def k_pieces(T):
        A, b = T // 4, T % 4
        buf = V_BUF + (T % NB) * 32

        def mf(lo, hi):
            def f():
                if T == 0 and lo == 0:
                    stamp(2)
                for i in range(lo, hi):
                    a(f"v_mfma_f32_16x16x32_bf16 {vr(V_DA+4*i,4)}, {vr(buf+4*i,4)}, {vr(V_Q,4)}, 0")
            return f

        def dp(r):
            def f():
                if r == 0:
                    a("s_nop 0")
                for i in range(8):
                    s = V_S + 8 * A + i
                    if r == 0:
                        a(f"v_mov_b32_dpp {vr(s)}, {vr(V_DA+4*i)} {dpp(b, 0)}")
                    else:
                        a(f"v_add_f32_dpp {vr(s)}, {vr(V_DA+4*i+r)}, {vr(s)} {dpp(b, r)}")
                if r == 3 and b == 3:
                    s = V_S + 8 * A
                    if A == 0:
                        a(f"v_max3_f32 {vr(V_M)}, {vr(s)}, {vr(s+1)}, {vr(s+2)}")
                        a(f"v_max3_f32 {vr(V_M)}, {vr(V_M)}, {vr(s+3)}, {vr(s+4)}")
                        a(f"v_max3_f32 {vr(V_M)}, {vr(V_M)}, {vr(s+5)}, {vr(s+6)}")
                        a(f"v_max_f32 {vr(V_M)}, {vr(V_M)}, {vr(s+7)}")
                    else:
                        for i in range(0, 8, 2):
                            a(f"v_max3_f32 {vr(V_M)}, {vr(V_M)}, {vr(s+i)}, {vr(s+i+1)}")
            return f
        pieces.append((T, f"L{8*T+3}", True, mf(0, 4)))
        pieces.append((T, f"L{8*T+7}", True, mf(4, 8)))
        for r in range(4):
            pieces.append((T, None, False, dp(r)))

    def mid():
        stamp(3)
        allreduce("v_max_f32", V_M)
        a(f"v_mul_f32 {vr(V_M)}, {sr(S_C)}, {vr(V_M)}")
        stamp(4)

    def v_pieces(T):
        A, b = T // 4, T % 4
        idx = NT + T
        buf = V_BUF + (idx % NB) * 32
        PM = V_PM + 4 * (T % 2)
        last = T == NT - 1

        def ex1():
            s = V_S + 8 * A
            for i in range(8):
                a(f"v_fma_f32 {vr(s+i)}, {vr(s+i)}, {sr(S_C)}, -{vr(V_M)}")
            for i in range(8):
                a(f"v_exp_f32 {vr(s+i)}, {vr(s+i)}")

        def ex2():
            s = V_S + 8 * A
            a("s_nop 0")
            for i in range(4):
                a(f"v_cvt_pk_bf16_f32 {vr(V_P+i)}, {vr(s+2*i)}, {vr(s+2*i+1)}")
            a(f"v_add_f32 {vr(s)}, {vr(s)}, {vr(s+1)}")
            a(f"v_add_f32 {vr(s+2)}, {vr(s+2)}, {vr(s+3)}")
            a(f"v_add_f32 {vr(s+4)}, {vr(s+4)}, {vr(s+5)}")
            a(f"v_add_f32 {vr(s+6)}, {vr(s+6)}, {vr(s+7)}")
            a(f"v_add_f32 {vr(s)}, {vr(s)}, {vr(s+2)}")
            a(f"v_add_f32 {vr(s+4)}, {vr(s+4)}, {vr(s+6)}")
            if A == 0:
                a(f"v_add_f32 {vr(V_L)}, {vr(s)}, {vr(s+4)}")
            else:
                a(f"v_add_f32 {vr(s)}, {vr(s)}, {vr(s+4)}")
                a(f"v_add_f32 {vr(V_L)}, {vr(V_L)}, {vr(s)}")
            if A == NA - 1:
                allreduce("v_add_f32", V_L)

        def msk():
            for i in range(4):
                a(f"v_cndmask_b32 {vr(PM+i)}, 0, {vr(V_P+i)}, {sr(S_MASK+2*b,2)}")
            if last and P2:
                a(f"s_lshl_b32 {sr(S_T1)}, {sr(S_BH)}, 2")
                a(f"v_mov_b32 {vr(V_Q)}, {sr(S_T1)}")
                a(f"v_mov_b32 {vr(V_Q+1)}, 1")
                a(f"v_mov_b32 {vr(V_Q+3)}, 0")

        def pv(q):
            def f():
                if last and q == 0 and P2:
                    assert state["allz"]
                    a.c("every load (and the slot marking) of this wave is complete: count it")
                    a("s_mov_b64 exec, 1")
                    a(f"ds_add_rtn_u32 {vr(V_Q+2)}, {vr(V_Q+3)}, {vr(V_Q+1)} offset:{LDS_CNT}")
                    a("s_mov_b64 exec, -1")
                tmp = V_TMP + (q % 2) * 8
                for p in range(4):
                    lo = buf + 4 * (2 * p) + q
                    hi = buf + 4 * (2 * p + 1) + q
                    a(f"v_perm_b32 {vr(tmp+p)}, {vr(hi)}, {vr(lo)}, {sr(S_SELLO)}")
                for p in range(4):
                    lo = buf + 4 * (2 * p) + q
                    hi = buf + 4 * (2 * p + 1) + q
                    a(f"v_perm_b32 {vr(tmp+4+p)}, {vr(hi)}, {vr(lo)}, {sr(S_SELHI)}")
                if last and q == args.tq and P2:
                    a.c("the last wave of the workgroup to finish its loads takes the ticket and merges")
                    a("s_waitcnt lgkmcnt(0)")
                    a(f"v_readfirstlane_b32 {sr(S_ROLE)}, {vr(V_Q+2)}")
                    a("s_nop 0")
                    a(f"s_cmp_lg_u32 {sr(S_ROLE)}, {NARR-1}")
                    a("s_cbranch_scc1 L_noticket")
                    a("s_mov_b64 exec, 1")
                    a(f"global_atomic_add {vr(V_Q+2)}, {vr(V_Q)}, {vr(V_Q+1)}, {sr(S_DBG,2)} sc0")
                    a("s_mov_b64 exec, -1")
                    a.label("L_noticket")
                d0 = V_DA + 4 * (2 * q)
                d1 = V_DA + 4 * (2 * q + 1)
                a(f"v_mfma_f32_16x16x32_bf16 {vr(d0,4)}, {vr(PM,4)}, {vr(tmp,4)}, {'0' if T == 0 else vr(d0,4)}")
                a("s_nop 0")
                a(f"v_mfma_f32_16x16x32_bf16 {vr(d1,4)}, {vr(PM,4)}, {vr(tmp+4,4)}, {'0' if T == 0 else vr(d1,4)}")
            return f
        if b == 0:
            pieces.append((idx, None, False, ex1))
            pieces.append((idx, None, False, ex2))
        pieces.append((idx, None, False, msk))
        for q in range(4):
            pieces.append((idx, f"L{8*idx+7}", True, pv(q)))

    for T in range(NT):
        k_pieces(T)
    pieces.append((NT - 1, None, False, mid))
    for T in range(NT):
        v_pieces(T)

    issue("Q", f"buffer_load_dwordx4 {vr(V_Q,4)}, {vr(V_T2)}, {sr(SRD_Q,4)}, 0 offen")
    pi = 0

    def run_piece(force):
        nonlocal pi
        if pi >= len(pieces):
            return False
        t, need, rd, fn = pieces[pi]
        if need is not None and not is_done(need):
            if not force:
                return False
            wait_for(need)
        fn()
        pi += 1
        return True

    did_setup = False
    for i in range(NL):
        need = i - depth(i)
        if need >= 0:
            if not did_setup:
                setup_rest()
                did_setup = True
            pace(f"L{need}")
        t = i // 8
        if i % 8 == 0 and t >= NB:
            while any(p[0] == t - NB and p[2] for p in pieces[pi:]):
                run_piece(True)
        emit_load(i)
        if did_setup:
            for _ in range(args.ppl):
                if not run_piece(False):
                    break
    while run_piece(True):
        pass

    stamp(5)
    G = V_S
    a(f"s_lshl_b32 {sr(S_T0)}, {sr(S_WAVE)}, 11")
    a(f"v_add_u32 {vr(V_T0)}, {sr(S_T0)}, {vr(V_OFFV)}")
    a(f"s_lshl_b32 {sr(S_T1)}, {sr(S_WAVE)}, 5")
    a(f"v_and_b32 {vr(V_T1)}, 3, v0")
    a(f"v_lshlrev_b32 {vr(V_T1)}, 3, {vr(V_T1)}")
    a(f"v_add_u32 {vr(V_T1)}, {sr(S_T1)}, {vr(V_T1)}")
    a(f"ds_write_b64 {vr(V_T1)}, {vr(V_M,2)} offset:{LDS_ML}")
    a("s_nop 1")
    for dd in range(8):
        d = V_DA + 4 * dd
        a(f"v_permlane32_swap_b32 {vr(d)}, {vr(d+2)}")
        a(f"v_permlane32_swap_b32 {vr(d+1)}, {vr(d+3)}")
    for dd in range(8):
        d = V_DA + 4 * dd
        a(f"v_add_f32 {vr(d)}, {vr(d)}, {vr(d+2)}")
        a(f"v_add_f32 {vr(d+1)}, {vr(d+1)}, {vr(d+3)}")
    for dd in range(8):
        d = V_DA + 4 * dd
        a(f"v_permlane16_swap_b32 {vr(d)}, {vr(d+1)}")
    for dd in range(8):
        d = V_DA + 4 * dd
        a(f"v_add_f32 {vr(G+dd)}, {vr(d)}, {vr(d+1)}")
    a(f"ds_write_b128 {vr(V_T0)}, {vr(G,4)} offset:{LDS_O}")
    a(f"ds_write_b128 {vr(V_T0)}, {vr(G+4,4)} offset:{LDS_O+1024}")
    a("s_waitcnt lgkmcnt(0)")
    a.label("L_join")
    a("s_barrier")
    stamp(6, True)
    if P2:
        a(f"s_cmp_lg_u32 {sr(S_ROLE)}, {NARR-1}")
    else:
        a(f"s_cmp_lg_u32 {sr(S_WAVE)}, 0")
    a("s_cbranch_scc1 L_end")
    ML = G
    OB = G + 2 * NW + (4 - (2 * NW) % 4) % 4
    PB = OB + NW * 8
    ACC = V_DA
    OWN = V_DA + 12
    assert PB + (NSPLIT - 1) * 12 <= V_END
    a(f"v_bfe_u32 {vr(V_T1)}, v0, 4, 2")
    a(f"v_lshlrev_b32 {vr(V_T1)}, 3, {vr(V_T1)}")
    for w in range(NW):
        a(f"ds_read_b64 {vr(ML+2*w,2)}, {vr(V_T1)} offset:{LDS_ML+32*w}")
    for w in range(NW):
        a(f"ds_read_b128 {vr(OB+8*w,4)}, {vr(V_OFFV)} offset:{LDS_O+2048*w}")
        a(f"ds_read_b128 {vr(OB+8*w+4,4)}, {vr(V_OFFV)} offset:{LDS_O+2048*w+1024}")

    def poll_loads():
        for s_ in range(NSPLIT - 1):
            a(f"buffer_load_dwordx4 {vr(PB+12*s_+8,4)}, {vr(V_OFFV)}, {sr(SRD_WS,4)}, {sr(S_OTH+s_)} offen offset:2048 {args.hflags}")
            a(f"buffer_load_dwordx4 {vr(PB+12*s_,4)}, {vr(V_OFFV)}, {sr(SRD_WS,4)}, {sr(S_OTH+s_)} offen {args.hflags}")
            a(f"buffer_load_dwordx4 {vr(PB+12*s_+4,4)}, {vr(V_OFFV)}, {sr(SRD_WS,4)}, {sr(S_OTH+s_)} offen offset:1024 {args.hflags}")

    def publish():
        for i in range(3):
            a(f"buffer_store_dwordx4 {vr(OWN+4*i,4)}, {vr(V_OFFV)}, {sr(SRD_WS,4)}, {sr(S_SLOT)} offen offset:{1024*i} {args.hflags}")

    def merge(dst, nparts, mreg, lreg, oreg, first_wait, per_part_wait):
        first_wait()
        M = dst + 8
        L = dst + 9
        a(f"v_max_f32 {vr(M)}, {vr(mreg(0))}, {vr(mreg(1))}")
        for w in range(2, nparts):
            a(f"v_max_f32 {vr(M)}, {vr(M)}, {vr(mreg(w))}")
        for w in range(nparts):
            a(f"v_sub_f32 {vr(mreg(w))}, {vr(mreg(w))}, {vr(M)}")
        for w in range(nparts):
            a(f"v_exp_f32 {vr(mreg(w))}, {vr(mreg(w))}")
        a("s_nop 0")
        a(f"v_mul_f32 {vr(L)}, {vr(mreg(0))}, {vr(lreg(0))}")
        for w in range(1, nparts):
            a(f"v_fmac_f32 {vr(L)}, {vr(mreg(w))}, {vr(lreg(w))}")
        for w in range(nparts):
            per_part_wait(w)
            for e in range(8):
                if w == 0:
                    a(f"v_mul_f32 {vr(dst+e)}, {vr(mreg(0))}, {vr(oreg(0)+e)}")
                else:
                    a(f"v_fmac_f32 {vr(dst+e)}, {vr(mreg(w))}, {vr(oreg(w)+e)}")

    merge(OWN, NW, lambda w: ML + 2 * w, lambda w: ML + 2 * w + 1, lambda w: OB + 8 * w,
          lambda: a(f"s_waitcnt lgkmcnt({min(15, 2*NW)})"),
          lambda w: a(f"s_waitcnt lgkmcnt({min(15, 2*(NW-1-w))})"))
    if P2:
        a(f"s_mov_b32 {sr(S_SPIN)}, 0x100000")
        for e in range(10):
            a(f"v_min_u32 {vr(OWN+e)}, 0xfffffffe, {vr(OWN+e)}")
        a("s_waitcnt vmcnt(0)")
        a(f"v_readfirstlane_b32 {sr(S_T1)}, {vr(V_Q+2)}")
        stamp(7, True)
        a(f"s_cmp_eq_u32 {sr(S_T1)}, {NSPLIT-1}")
        a("s_cbranch_scc1 L_again")
        a.c("publish the partial; no word equals the all-ones marker")
        publish()
        a("s_branch L_end")
        a.label("L_again")
        poll_loads()
        a("s_waitcnt vmcnt(0)")
        regs = [PB + 12 * s_ + e for s_ in range(NSPLIT - 1) for e in range(10)]
        a(f"v_max3_u32 {vr(V_T0)}, {vr(regs[0])}, {vr(regs[1])}, {vr(regs[2])}")
        a(f"v_max3_u32 {vr(V_T1)}, {vr(regs[3])}, {vr(regs[4])}, {vr(regs[5])}")
        rest = regs[6:]
        k = 0
        while rest:
            t = V_T0 if k % 2 == 0 else V_T1
            if len(rest) >= 2:
                a(f"v_max3_u32 {vr(t)}, {vr(t)}, {vr(rest[0])}, {vr(rest[1])}")
                rest = rest[2:]
            else:
                a(f"v_max_u32 {vr(t)}, {vr(t)}, {vr(rest[0])}")
                rest = rest[1:]
            k += 1
        a(f"v_max_u32 {vr(V_T0)}, {vr(V_T0)}, {vr(V_T1)}")
        a(f"v_cmp_eq_u32 vcc, -1, {vr(V_T0)}")
        a(f"s_sub_u32 {sr(S_SPIN)}, {sr(S_SPIN)}, 1")
        a("s_cbranch_scc1 L_go")
        a("s_nop 2")
        a("s_cbranch_vccnz L_again")
        a.label("L_go")
    else:
        publish()
        a(f"s_lshl_b32 {sr(S_T1)}, {sr(S_BH)}, 2")
        a(f"v_mov_b32 {vr(V_T0)}, {sr(S_T1)}")
        a(f"v_mov_b32 {vr(V_T1)}, 1")
        a("s_mov_b64 exec, 1")
        a("s_waitcnt vmcnt(0)")
        stamp(7)
        a(f"global_atomic_add {vr(V_T2)}, {vr(V_T0)}, {vr(V_T1)}, {sr(S_DBG,2)} sc0")
        a("s_waitcnt vmcnt(0)")
        a(f"v_readfirstlane_b32 {sr(S_T1)}, {vr(V_T2)}")
        a("s_mov_b64 exec, -1")
        a(f"s_cmp_lg_u32 {sr(S_T1)}, {NSPLIT-1}")
        a("s_cbranch_scc1 L_end")
        poll_loads()
        a("s_waitcnt vmcnt(0)")
    stamp(8)
    part = lambda s_: OWN if s_ == 0 else PB + 12 * (s_ - 1)
    merge(ACC, NSPLIT, lambda s_: part(s_) + 8, lambda s_: part(s_) + 9, part, lambda: None, lambda w: None)
    a(f"v_rcp_f32 {vr(ACC+9)}, {vr(ACC+9)}")
    a("s_nop 0")
    for e in range(8):
        a(f"v_mul_f32 {vr(ACC+e)}, {vr(ACC+e)}, {vr(ACC+9)}")
    for e in range(4):
        a(f"v_cvt_pk_bf16_f32 {vr(ACC+e)}, {vr(ACC+2*e)}, {vr(ACC+2*e+1)}")
    a(f"s_lshl_b32 {sr(S_T1)}, {sr(S_BH)}, 10")
    a(f"buffer_store_dwordx4 {vr(ACC,4)}, {vr(V_OFFV)}, {sr(SRD_OUT,4)}, {sr(S_T1)} offen {args.oflags}".rstrip())
    if args.stamps:
        a("s_waitcnt vmcnt(0)")
    stamp(9)
    a.label("L_end")
    dump_stamps()
    a.label("L_exit")
    a("s_endpgm")
    if HELP:
        a.label("L_helper")
        setup_rest(True)
        a(f"s_lshl_b32 {sr(S_T1)}, {sr(S_BH)}, 2")
        a(f"v_mov_b32 {vr(V_Q)}, {sr(S_T1)}")
        a(f"v_mov_b32 {vr(V_Q+1)}, 1")
        a(f"v_mov_b32 {vr(V_Q+3)}, 0")
        a("s_waitcnt vmcnt(0)")
        a("s_mov_b64 exec, 1")
        a(f"ds_add_rtn_u32 {vr(V_Q+2)}, {vr(V_Q+3)}, {vr(V_Q+1)} offset:{LDS_CNT}")
        a("s_waitcnt lgkmcnt(0)")
        a(f"v_readfirstlane_b32 {sr(S_ROLE)}, {vr(V_Q+2)}")
        a("s_nop 0")
        a(f"s_cmp_lg_u32 {sr(S_ROLE)}, {NARR-1}")
        a("s_cbranch_scc1 L_exit")
        a.c("(only if the marking was the last thing to complete) take the ticket and merge")
        a(f"global_atomic_add {vr(V_Q+2)}, {vr(V_Q)}, {vr(V_Q+1)}, {sr(S_DBG,2)} sc0")
        a("s_mov_b64 exec, -1")
        a("s_branch L_join")

    nvgpr = max(nvgpr, args.minv)
    accum = min(256, (nvgpr + 3) // 4 * 4)
    out = HEADER
    out += f"; @launch grid=({NWG},1,1) block=({NARR*64},1,1) lds={max(LDS_BYTES, args.minlds)}\n"
    out += '.amdgcn_target "amdgcn-amd-amdhsa--gfx950"\n.text\n'
    out += f".globl {NAME}\n.p2align 8\n.type {NAME},@function\n{NAME}:\n"
    out += a.text()
    out += f""".section .rodata,"a"
.p2align 6
.amdhsa_kernel {NAME}
  .amdhsa_next_free_vgpr {nvgpr}
  .amdhsa_next_free_sgpr {S_NEXT}
  .amdhsa_accum_offset {accum}
  .amdhsa_group_segment_fixed_size 0
  .amdhsa_kernarg_size 48
  .amdhsa_user_sgpr_count 2
  .amdhsa_user_sgpr_kernarg_segment_ptr 1
  .amdhsa_system_sgpr_workgroup_id_x 1
.end_amdhsa_kernel
"""
    return out


if __name__ == "__main__":
    ap = argparse.ArgumentParser()
    ap.add_argument("--nsplit", type=int, default=4)
    ap.add_argument("--nw", type=int, default=2)
    ap.add_argument("--nb", type=int, default=3)
    ap.add_argument("--d", type=int, default=11)
    ap.add_argument("--bf", type=float, default=2.0)
    ap.add_argument("--bd", type=int, default=16)
    ap.add_argument("--ppl", type=int, default=1, help="compute pieces per load slot")
    ap.add_argument("--proto", type=int, default=2)
    ap.add_argument("--flags", default="nt")
    ap.add_argument("--hflags", default="sc1")
    ap.add_argument("--oflags", default="")
    ap.add_argument("--tq", type=int, default=1)
    ap.add_argument("--rot", type=int, default=16)
    ap.add_argument("--wgmap", type=int, default=0)
    ap.add_argument("--minv", type=int, default=0)
    ap.add_argument("--minlds", type=int, default=0)
    ap.add_argument("--stamps", type=int, default=0)
    ap.add_argument("-o", default="standalone__gqa_softmax__decode.s")
    args = ap.parse_args()
    open(args.o, "w").write(gen(args))
```

```python
import argparse
import math
import struct

HEADER = """; GQA decode attention (B=8, Hq=32, Hkv=8, Sk=8192, D=128), split-K flash decoding.
"""
NAME = "standalone__gqa_softmax__decode_kernel"


def f32bits(x):
    return struct.unpack("<I", struct.pack("<f", x))[0]


class Asm:
    def __init__(self):
        self.lines = []

    def __call__(self, s):
        self.lines.append("    " + s)

    def label(self, l):
        self.lines.append(l + ":")

    def c(self, s):
        self.lines.append("    ; " + s)

    def text(self):
        return "\n".join(self.lines) + "\n"


def vr(a, n=1):
    return f"v{a}" if n == 1 else f"v[{a}:{a+n-1}]"


def sr(a, n=1):
    return f"s{a}" if n == 1 else f"s[{a}:{a+n-1}]"


def gen(args):
    NSPLIT = args.nsplit
    NW = args.nw
    NB = args.nb
    KPWG = 8192 // NSPLIT
    KPW = KPWG // NW
    NT = KPW // 32
    assert NT % 4 == 0
    NA = NT // 4
    NWG = 64 * NSPLIT
    flags = args.flags
    P2 = args.proto >= 2
    HELP = args.proto == 3
    NARR = NW + (1 if HELP else 0)
    SLOT = 4096
    LDS_O = 0
    LDS_ML = NW * 2048
    LDS_CNT = NW * 2048 + NW * 32
    LDS_BYTES = LDS_CNT + 16
    scale_log2e = (128 ** -0.5) * math.log2(math.e)

    a = Asm()
    S_Q, S_K, S_V, S_OUT, S_DBG, S_WS = 4, 6, 8, 10, 12, 14
    SRD_K, SRD_V, SRD_Q, SRD_WS, SRD_OUT = 16, 20, 24, 28, 32
    S_BH, S_SPLIT, S_WAVE, S_T0, S_T1 = 36, 37, 38, 39, 40
    S_OFFK, S_OFFV, S_SELLO, S_SELHI, S_C = 41, 42, 43, 44, 45
    S_MASK = 46
    S_SLOT = 54
    S_OTH = 55
    S_SPIN = S_OTH + NSPLIT - 1
    S_ROLE = S_SPIN + 1
    S_NEXT = (S_ROLE + 2) // 2 * 2
    S_ST = S_NEXT
    NSTAMP = 10
    if args.stamps:
        S_NEXT = S_ST + 2 * NSTAMP + 4

    def stamp(i, wait=False):
        if args.stamps:
            a(f"s_memrealtime {sr(S_ST+2*i,2)}")
            if wait:
                a("s_waitcnt lgkmcnt(0)")

    def dump_stamps():
        if not args.stamps:
            return
        SB = S_ST + 2 * NSTAMP
        a("s_waitcnt lgkmcnt(0)")
        a(f"s_mul_i32 {sr(SB+2)}, s2, {NARR}")
        a(f"s_add_u32 {sr(SB+2)}, {sr(SB+2)}, {sr(S_WAVE)}")
        a(f"s_lshl_b32 {sr(SB+2)}, {sr(SB+2)}, 7")
        a(f"s_add_u32 {sr(SB+2)}, {sr(SB+2)}, {16<<20}")
        a(f"s_add_u32 {sr(SB)}, {sr(S_WS)}, {sr(SB+2)}")
        a(f"s_addc_u32 {sr(SB+1)}, {sr(S_WS+1)}, 0")
        a("s_mov_b64 exec, 1")
        a("v_mov_b32 v4, 0")
        for i in range(NSTAMP):
            a(f"v_mov_b32 v6, {sr(S_ST+2*i)}")
            a(f"v_mov_b32 v7, {sr(S_ST+2*i+1)}")
            a(f"global_store_dwordx2 v4, v[6:7], {sr(SB,2)} offset:{8*i}")
            a("s_nop 1")
        a("s_getreg_b32 s3, hwreg(HW_REG_XCC_ID)")
        a("v_mov_b32 v6, s3")
        a("s_getreg_b32 s3, hwreg(HW_REG_HW_ID)")
        a("v_mov_b32 v7, s3")
        a(f"global_store_dwordx2 v4, v[6:7], {sr(SB,2)} offset:{8*NSTAMP}")

    V_OFFK, V_OFFV, V_T0, V_T1, V_T2, V_M, V_L = 1, 2, 3, 4, 5, 6, 7
    V_Q = 8
    V_P = 12
    V_PM = 16
    V_TMP = 24
    V_DA = 40
    V_S = 72
    V_BUF = V_S + NA * 8
    V_END = V_BUF + NB * 32
    assert V_END <= 256, V_END
    nvgpr = V_END

    a(f"s_cmp_ge_u32 s2, {NWG}")
    a("s_cbranch_scc1 L_exit")
    if args.stamps:
        for i in range(NSTAMP):
            a(f"s_mov_b64 {sr(S_ST+2*i,2)}, 0")
    stamp(0)
    a(f"s_load_dwordx8 {sr(4,8)}, s[0:1], 0")
    a(f"s_load_dwordx4 {sr(12,4)}, s[0:1], 32")
    a(f"v_lshrrev_b32 {vr(V_T0)}, 6, v0")
    a(f"v_and_b32 {vr(V_OFFV)}, 63, v0")
    a(f"v_readfirstlane_b32 {sr(S_WAVE)}, {vr(V_T0)}")
    if args.wgmap == 0:
        a(f"s_and_b32 {sr(S_BH)}, s2, 63")
        a(f"s_lshr_b32 {sr(S_SPLIT)}, s2, 6")
    elif args.wgmap == 4:
        a(f"s_and_b32 {sr(S_BH)}, s2, 3")
        a(f"s_lshl_b32 {sr(S_BH)}, {sr(S_BH)}, 1")
        a(f"s_bfe_u32 {sr(S_T0)}, s2, 0x10003")
        a(f"s_or_b32 {sr(S_BH)}, {sr(S_BH)}, {sr(S_T0)}")
        a(f"s_lshr_b32 {sr(S_T0)}, s2, 1")
        a(f"s_and_b32 {sr(S_T0)}, {sr(S_T0)}, 0x18")
        a(f"s_or_b32 {sr(S_BH)}, {sr(S_BH)}, {sr(S_T0)}")
        a(f"s_lshl_b32 {sr(S_T0)}, s2, 3")
        a(f"s_and_b32 {sr(S_T0)}, {sr(S_T0)}, 0x20")
        a(f"s_or_b32 {sr(S_BH)}, {sr(S_BH)}, {sr(S_T0)}")
        a(f"s_lshr_b32 {sr(S_SPLIT)}, s2, 6")
    else:
        a(f"s_lshr_b32 {sr(S_BH)}, s2, {int(math.log2(NSPLIT))}")
        a(f"s_and_b32 {sr(S_SPLIT)}, s2, {NSPLIT-1}")
    a(f"v_and_b32 {vr(V_T0)}, 3, v0")
    a(f"v_bfe_u32 {vr(V_T1)}, v0, 2, 2")
    a(f"v_bfe_u32 {vr(V_T2)}, v0, 4, 2")
    a(f"v_lshlrev_b32 {vr(V_T2)}, 6, {vr(V_T2)}")
    a(f"v_lshl_add_u32 {vr(V_OFFK)}, {vr(V_T1)}, 8, {vr(V_T2)}")
    a(f"v_lshl_add_u32 {vr(V_OFFK)}, {vr(V_T0)}, 4, {vr(V_OFFK)}")
    a(f"v_lshl_add_u32 {vr(V_T2)}, {vr(V_T0)}, 8, {vr(V_T2)}")
    a(f"v_lshl_add_u32 {vr(V_T2)}, {vr(V_T1)}, 4, {vr(V_T2)}")
    a(f"v_lshlrev_b32 {vr(V_OFFV)}, 4, {vr(V_OFFV)}")
    a(f"s_lshl_b32 {sr(S_T0)}, {sr(S_BH)}, 21")
    a(f"s_mul_i32 {sr(S_T1)}, {sr(S_SPLIT)}, {KPWG*256}")
    a(f"s_add_u32 {sr(S_T0)}, {sr(S_T0)}, {sr(S_T1)}")
    tile_stride = 8192 * NW
    nrec = KPWG * 256
    a(f"s_lshl_b32 {sr(S_OFFK)}, {sr(S_WAVE)}, 13")
    if args.rot:
        if args.rotsrc == "hi5":
            a(f"s_lshr_b32 {sr(S_T1)}, s2, 3")
        elif args.rotsrc == "lo3":
            a(f"s_and_b32 {sr(S_T1)}, s2, 7")
        elif args.rotsrc == "split":
            a(f"s_lshr_b32 {sr(S_T1)}, s2, 6")
        a(f"s_mul_i32 {sr(S_T1)}, {sr(S_T1)}, {args.rot*1024}")
        a(f"s_add_u32 {sr(S_OFFK)}, {sr(S_OFFK)}, {sr(S_T1)}")
        a(f"s_and_b32 {sr(S_OFFK)}, {sr(S_OFFK)}, {nrec-1}")
    a(f"s_mov_b32 {sr(S_OFFV)}, {sr(S_OFFK)}")
    a(f"s_mov_b32 {sr(SRD_K+2)}, {nrec}")
    a(f"s_mov_b32 {sr(SRD_K+3)}, 0x20000")
    a(f"s_mov_b32 {sr(SRD_Q+2)}, 1024")
    a(f"s_mov_b32 {sr(SRD_Q+3)}, 0x20000")
    a(f"s_lshl_b32 {sr(S_T1)}, {sr(S_BH)}, 10")
    a("s_waitcnt lgkmcnt(0)")
    a(f"s_add_u32 {sr(SRD_K)}, {sr(S_K)}, {sr(S_T0)}")
    a(f"s_addc_u32 {sr(SRD_K+1)}, {sr(S_K+1)}, 0")
    a(f"s_add_u32 {sr(SRD_Q)}, {sr(S_Q)}, {sr(S_T1)}")
    a(f"s_addc_u32 {sr(SRD_Q+1)}, {sr(S_Q+1)}, 0")
    if HELP:
        a(f"s_cmp_eq_u32 {sr(S_WAVE)}, {NW}")
        a("s_cbranch_scc1 L_helper")

    ops = []
    loads = []
    state = dict(done=-1, paced=-1, allz=False)

    def issue(name, text, is_load=True):
        a(text)
        ops.append(name)
        if is_load:
            loads.append(name)
        state["allz"] = False

    def emit_wait(n):
        assert n <= 63
        a(f"s_waitcnt vmcnt({n})")
        state["done"] = max(state["done"], len(loads) - 1 - n)
        state["paced"] = max(state["paced"], len(ops) - 1 - n)
        if n == 0:
            state["allz"] = True

    def pace(name):
        k = ops.index(name)
        if k > state["paced"]:
            emit_wait(len(ops) - 1 - k)

    def wait_for(name):
        k = loads.index(name)
        if k > state["done"]:
            emit_wait(len(loads) - 1 - k)

    def is_done(name):
        return name in loads and loads.index(name) <= state["done"]

    NL = 2 * NT * 8

    def emit_load(i):
        t, j = i // 8, i % 8
        buf = V_BUF + (t % NB) * 32
        if t < NT:
            voff, srd, soff = V_OFFK, SRD_K, S_OFFK
        else:
            voff, srd, soff = V_OFFV, SRD_V, S_OFFV
        issue(f"L{i}", f"buffer_load_dwordx4 {vr(buf+4*j,4)}, {vr(voff)}, {sr(srd,4)}, {sr(soff)} offen offset:{1024*(j%4)} {flags}".rstrip())
        if j % 4 == 3:
            inc = 4096 if j == 3 else tile_stride - 4096
            a(f"s_add_u32 {sr(soff)}, {sr(soff)}, {inc}")
            if j == 7 and args.rot:
                a(f"s_and_b32 {sr(soff)}, {sr(soff)}, {nrec-1}")

    def depth(i):
        if i >= NL * args.bf:
            return args.bd
        return args.d

    def setup_rest(helper=False):
        stamp(1)
        a(f"s_add_u32 {sr(SRD_V)}, {sr(S_V)}, {sr(S_T0)}")
        a(f"s_addc_u32 {sr(SRD_V+1)}, {sr(S_V+1)}, 0")
        a(f"s_mov_b32 {sr(SRD_V+2)}, {nrec}")
        a(f"s_mov_b32 {sr(SRD_V+3)}, 0x20000")
        a(f"s_mov_b32 {sr(SRD_WS)}, {sr(S_WS)}")
        a(f"s_mov_b32 {sr(SRD_WS+1)}, {sr(S_WS+1)}")
        a(f"s_mov_b32 {sr(SRD_WS+2)}, {NWG*SLOT}")
        a(f"s_mov_b32 {sr(SRD_WS+3)}, 0x20000")
        a(f"s_mul_i32 {sr(S_SPIN)}, {sr(S_BH)}, {NSPLIT*SLOT}")
        a(f"s_mul_i32 {sr(S_SLOT)}, {sr(S_SPLIT)}, {SLOT}")
        a(f"s_add_u32 {sr(S_SLOT)}, {sr(S_SLOT)}, {sr(S_SPIN)}")
        if helper:
            a.c("mark this workgroup's partial slot as not yet written (all-ones words)")
            for i in range(4):
                a(f"v_mov_b32 {vr(V_P+i)}, -1")
            for i in range(3):
                a(f"buffer_store_dwordx4 {vr(V_P,4)}, {vr(V_OFFV)}, {sr(SRD_WS,4)}, {sr(S_SLOT)} offen offset:{1024*i} {args.hflags}")
            a(f"v_mov_b32 {vr(V_M)}, 0")
            a(f"ds_write_b32 {vr(V_M)}, {vr(V_M)} offset:{LDS_CNT}")
        if P2 and not HELP:
            a.c("mark this workgroup's partial slot as not yet written (all-ones words)")
            for i in range(4):
                a(f"v_mov_b32 {vr(V_P+i)}, -1")
            a(f"s_lshl_b32 {sr(S_T1)}, {sr(S_WAVE)}, 10")
            a(f"s_add_u32 {sr(S_T1)}, {sr(S_T1)}, {sr(S_SLOT)}")
            for i in range(4 // NW):
                issue(f"INV{i}", f"buffer_store_dwordx4 {vr(V_P,4)}, {vr(V_OFFV)}, {sr(SRD_WS,4)}, {sr(S_T1)} offen offset:{1024*NW*i} {args.hflags}", False)
            a(f"v_mov_b32 {vr(V_M)}, 0")
            a(f"ds_write_b32 {vr(V_M)}, {vr(V_M)} offset:{LDS_CNT}")
        a(f"s_mov_b32 {sr(S_SELLO)}, 0x05040100")
        a(f"s_mov_b32 {sr(S_SELHI)}, 0x07060302")
        a(f"s_mov_b32 {sr(S_C)}, 0x{f32bits(scale_log2e):08x}")
        for b in range(4):
            m = 0x000F000F << (4 * b)
            a(f"s_mov_b32 {sr(S_MASK+2*b)}, 0x{m:08x}")
            a(f"s_mov_b32 {sr(S_MASK+2*b+1)}, 0x{m:08x}")
        for i in range(1, NSPLIT):
            a(f"s_add_u32 {sr(S_OTH+i-1)}, {sr(S_SPLIT)}, {i}")
            a(f"s_and_b32 {sr(S_OTH+i-1)}, {sr(S_OTH+i-1)}, {NSPLIT-1}")
            a(f"s_mul_i32 {sr(S_OTH+i-1)}, {sr(S_OTH+i-1)}, {SLOT}")
            a(f"s_add_u32 {sr(S_OTH+i-1)}, {sr(S_OTH+i-1)}, {sr(S_SPIN)}")
        a(f"s_mov_b32 {sr(SRD_OUT)}, {sr(S_OUT)}")
        a(f"s_mov_b32 {sr(SRD_OUT+1)}, {sr(S_OUT+1)}")
        a(f"s_mov_b32 {sr(SRD_OUT+2)}, {64*1024}")
        a(f"s_mov_b32 {sr(SRD_OUT+3)}, 0x20000")
        if P2:
            a("s_waitcnt lgkmcnt(0)")
            a("s_barrier")

    def dpp(b, r):
        n = (4 * (b - r)) % 16
        ctl = "quad_perm:[0,1,2,3]" if n == 0 else f"row_ror:{n}"
        return f"{ctl} row_mask:0xf bank_mask:0x{1<<b:x}"

    def allreduce(op, reg):
        a("s_nop 1")
        a(f"{op}_dpp {vr(reg)}, {vr(reg)}, {vr(reg)} row_ror:4 row_mask:0xf bank_mask:0xf")
        a("s_nop 1")
        a(f"{op}_dpp {vr(reg)}, {vr(reg)}, {vr(reg)} row_ror:8 row_mask:0xf bank_mask:0xf")
        a(f"v_mov_b32 {vr(V_T0)}, {vr(reg)}")
        a("s_nop 1")
        a(f"v_permlane32_swap_b32 {vr(V_T0)}, {vr(reg)}")
        a("s_nop 1")
        a(f"{op} {vr(reg)}, {vr(V_T0)}, {vr(reg)}")
        a(f"v_mov_b32 {vr(V_T0)}, {vr(reg)}")
        a("s_nop 1")
        a(f"v_permlane16_swap_b32 {vr(V_T0)}, {vr(reg)}")
        a("s_nop 1")
        a(f"{op} {vr(reg)}, {vr(V_T0)}, {vr(reg)}")

    pieces = []

    def k_pieces(T):
        A, b = T // 4, T % 4
        buf = V_BUF + (T % NB) * 32

        def mf(lo, hi):
            def f():
                if T == 0 and lo == 0:
                    stamp(2)
                for i in range(lo, hi):
                    a(f"v_mfma_f32_16x16x32_bf16 {vr(V_DA+4*i,4)}, {vr(buf+4*i,4)}, {vr(V_Q,4)}, 0")
            return f

        def dp(r):
            def f():
                if r == 0:
                    a("s_nop 0")
                for i in range(8):
                    s = V_S + 8 * A + i
                    if r == 0:
                        a(f"v_mov_b32_dpp {vr(s)}, {vr(V_DA+4*i)} {dpp(b, 0)}")
                    else:
                        a(f"v_add_f32_dpp {vr(s)}, {vr(V_DA+4*i+r)}, {vr(s)} {dpp(b, r)}")
                if r == 3 and b == 3:
                    s = V_S + 8 * A
                    if A == 0:
                        a(f"v_max3_f32 {vr(V_M)}, {vr(s)}, {vr(s+1)}, {vr(s+2)}")
                        a(f"v_max3_f32 {vr(V_M)}, {vr(V_M)}, {vr(s+3)}, {vr(s+4)}")
                        a(f"v_max3_f32 {vr(V_M)}, {vr(V_M)}, {vr(s+5)}, {vr(s+6)}")
                        a(f"v_max_f32 {vr(V_M)}, {vr(V_M)}, {vr(s+7)}")
                    else:
                        for i in range(0, 8, 2):
                            a(f"v_max3_f32 {vr(V_M)}, {vr(V_M)}, {vr(s+i)}, {vr(s+i+1)}")
            return f
        pieces.append((T, f"L{8*T+3}", True, mf(0, 4)))
        pieces.append((T, f"L{8*T+7}", True, mf(4, 8)))
        for r in range(4):
            pieces.append((T, None, False, dp(r)))

    def mid():
        stamp(3)
        allreduce("v_max_f32", V_M)
        a(f"v_mul_f32 {vr(V_M)}, {sr(S_C)}, {vr(V_M)}")
        stamp(4)

    def v_pieces(T):
        A, b = T // 4, T % 4
        idx = NT + T
        buf = V_BUF + (idx % NB) * 32
        PM = V_PM + 4 * (T % 2)
        last = T == NT - 1

        def ex1():
            s = V_S + 8 * A
            for i in range(8):
                a(f"v_fma_f32 {vr(s+i)}, {vr(s+i)}, {sr(S_C)}, -{vr(V_M)}")
            for i in range(8):
                a(f"v_exp_f32 {vr(s+i)}, {vr(s+i)}")

        def ex2():
            s = V_S + 8 * A
            a("s_nop 0")
            for i in range(4):
                a(f"v_cvt_pk_bf16_f32 {vr(V_P+i)}, {vr(s+2*i)}, {vr(s+2*i+1)}")
            a(f"v_add_f32 {vr(s)}, {vr(s)}, {vr(s+1)}")
            a(f"v_add_f32 {vr(s+2)}, {vr(s+2)}, {vr(s+3)}")
            a(f"v_add_f32 {vr(s+4)}, {vr(s+4)}, {vr(s+5)}")
            a(f"v_add_f32 {vr(s+6)}, {vr(s+6)}, {vr(s+7)}")
            a(f"v_add_f32 {vr(s)}, {vr(s)}, {vr(s+2)}")
            a(f"v_add_f32 {vr(s+4)}, {vr(s+4)}, {vr(s+6)}")
            if A == 0:
                a(f"v_add_f32 {vr(V_L)}, {vr(s)}, {vr(s+4)}")
            else:
                a(f"v_add_f32 {vr(s)}, {vr(s)}, {vr(s+4)}")
                a(f"v_add_f32 {vr(V_L)}, {vr(V_L)}, {vr(s)}")
            if A == NA - 1:
                allreduce("v_add_f32", V_L)

        def msk():
            for i in range(4):
                a(f"v_cndmask_b32 {vr(PM+i)}, 0, {vr(V_P+i)}, {sr(S_MASK+2*b,2)}")
            if last and P2:
                a(f"s_lshl_b32 {sr(S_T1)}, {sr(S_BH)}, 2")
                a(f"v_mov_b32 {vr(V_Q)}, {sr(S_T1)}")
                a(f"v_mov_b32 {vr(V_Q+1)}, 1")
                a(f"v_mov_b32 {vr(V_Q+3)}, 0")

        def pv(q):
            def f():
                if last and q == 0 and P2:
                    assert state["allz"]
                    a.c("every load (and the slot marking) of this wave is complete: count it")
                    a("s_mov_b64 exec, 1")
                    a(f"ds_add_rtn_u32 {vr(V_Q+2)}, {vr(V_Q+3)}, {vr(V_Q+1)} offset:{LDS_CNT}")
                    a("s_mov_b64 exec, -1")
                tmp = V_TMP + (q % 2) * 8
                for p in range(4):
                    lo = buf + 4 * (2 * p) + q
                    hi = buf + 4 * (2 * p + 1) + q
                    a(f"v_perm_b32 {vr(tmp+p)}, {vr(hi)}, {vr(lo)}, {sr(S_SELLO)}")
                for p in range(4):
                    lo = buf + 4 * (2 * p) + q
                    hi = buf + 4 * (2 * p + 1) + q
                    a(f"v_perm_b32 {vr(tmp+4+p)}, {vr(hi)}, {vr(lo)}, {sr(S_SELHI)}")
                if last and q == args.tq and P2:
                    a.c("the last wave of the workgroup to finish its loads takes the ticket and merges")
                    a("s_waitcnt lgkmcnt(0)")
                    a(f"v_readfirstlane_b32 {sr(S_ROLE)}, {vr(V_Q+2)}")
                    a("s_nop 0")
                    a(f"s_cmp_lg_u32 {sr(S_ROLE)}, {NARR-1}")
                    a("s_cbranch_scc1 L_noticket")
                    a("s_mov_b64 exec, 1")
                    a(f"global_atomic_add {vr(V_Q+2)}, {vr(V_Q)}, {vr(V_Q+1)}, {sr(S_DBG,2)} sc0")
                    a("s_mov_b64 exec, -1")
                    a.label("L_noticket")
                d0 = V_DA + 4 * (2 * q)
                d1 = V_DA + 4 * (2 * q + 1)
                a(f"v_mfma_f32_16x16x32_bf16 {vr(d0,4)}, {vr(PM,4)}, {vr(tmp,4)}, {'0' if T == 0 else vr(d0,4)}")
                a("s_nop 0")
                a(f"v_mfma_f32_16x16x32_bf16 {vr(d1,4)}, {vr(PM,4)}, {vr(tmp+4,4)}, {'0' if T == 0 else vr(d1,4)}")
            return f
        if b == 0:
            pieces.append((idx, None, False, ex1))
            pieces.append((idx, None, False, ex2))
        pieces.append((idx, None, False, msk))
        for q in range(4):
            pieces.append((idx, f"L{8*idx+7}", True, pv(q)))

    for T in range(NT):
        k_pieces(T)
    pieces.append((NT - 1, None, False, mid))
    for T in range(NT):
        v_pieces(T)

    issue("Q", f"buffer_load_dwordx4 {vr(V_Q,4)}, {vr(V_T2)}, {sr(SRD_Q,4)}, 0 offen")
    pi = 0

    def run_piece(force):
        nonlocal pi
        if pi >= len(pieces):
            return False
        t, need, rd, fn = pieces[pi]
        if need is not None and not is_done(need):
            if not force:
                return False
            wait_for(need)
        fn()
        pi += 1
        return True

    did_setup = False
    for i in range(NL):
        need = i - depth(i)
        if need >= 0:
            if not did_setup:
                setup_rest()
                did_setup = True
            pace(f"L{need}")
        t = i // 8
        if i % 8 == 0 and t >= NB:
            while any(p[0] == t - NB and p[2] for p in pieces[pi:]):
                run_piece(True)
        emit_load(i)
        if did_setup:
            for _ in range(args.ppl):
                if not run_piece(False):
                    break
    while run_piece(True):
        pass

    stamp(5)
    G = V_S
    a(f"s_lshl_b32 {sr(S_T0)}, {sr(S_WAVE)}, 11")
    a(f"v_add_u32 {vr(V_T0)}, {sr(S_T0)}, {vr(V_OFFV)}")
    a(f"s_lshl_b32 {sr(S_T1)}, {sr(S_WAVE)}, 5")
    a(f"v_and_b32 {vr(V_T1)}, 3, v0")
    a(f"v_lshlrev_b32 {vr(V_T1)}, 3, {vr(V_T1)}")
    a(f"v_add_u32 {vr(V_T1)}, {sr(S_T1)}, {vr(V_T1)}")
    a(f"ds_write_b64 {vr(V_T1)}, {vr(V_M,2)} offset:{LDS_ML}")
    a("s_nop 1")
    for dd in range(8):
        d = V_DA + 4 * dd
        a(f"v_permlane32_swap_b32 {vr(d)}, {vr(d+2)}")
        a(f"v_permlane32_swap_b32 {vr(d+1)}, {vr(d+3)}")
    for dd in range(8):
        d = V_DA + 4 * dd
        a(f"v_add_f32 {vr(d)}, {vr(d)}, {vr(d+2)}")
        a(f"v_add_f32 {vr(d+1)}, {vr(d+1)}, {vr(d+3)}")
    for dd in range(8):
        d = V_DA + 4 * dd
        a(f"v_permlane16_swap_b32 {vr(d)}, {vr(d+1)}")
    for dd in range(8):
        d = V_DA + 4 * dd
        a(f"v_add_f32 {vr(G+dd)}, {vr(d)}, {vr(d+1)}")
    a(f"ds_write_b128 {vr(V_T0)}, {vr(G,4)} offset:{LDS_O}")
    a(f"ds_write_b128 {vr(V_T0)}, {vr(G+4,4)} offset:{LDS_O+1024}")
    a("s_waitcnt lgkmcnt(0)")
    a.label("L_join")
    a("s_barrier")
    stamp(6, True)
    if P2:
        a(f"s_cmp_lg_u32 {sr(S_ROLE)}, {NARR-1}")
    else:
        a(f"s_cmp_lg_u32 {sr(S_WAVE)}, 0")
    a("s_cbranch_scc1 L_end")
    ML = G
    OB = G + 2 * NW + (4 - (2 * NW) % 4) % 4
    PB = OB + NW * 8
    ACC = V_DA
    OWN = V_DA + 12
    assert PB + (NSPLIT - 1) * 12 <= V_END
    a(f"v_bfe_u32 {vr(V_T1)}, v0, 4, 2")
    a(f"v_lshlrev_b32 {vr(V_T1)}, 3, {vr(V_T1)}")
    for w in range(NW):
        a(f"ds_read_b64 {vr(ML+2*w,2)}, {vr(V_T1)} offset:{LDS_ML+32*w}")
    for w in range(NW):
        a(f"ds_read_b128 {vr(OB+8*w,4)}, {vr(V_OFFV)} offset:{LDS_O+2048*w}")
        a(f"ds_read_b128 {vr(OB+8*w+4,4)}, {vr(V_OFFV)} offset:{LDS_O+2048*w+1024}")

    def poll_loads():
        for s_ in range(NSPLIT - 1):
            a(f"buffer_load_dwordx4 {vr(PB+12*s_+8,4)}, {vr(V_OFFV)}, {sr(SRD_WS,4)}, {sr(S_OTH+s_)} offen offset:2048 {args.hflags}")
            a(f"buffer_load_dwordx4 {vr(PB+12*s_,4)}, {vr(V_OFFV)}, {sr(SRD_WS,4)}, {sr(S_OTH+s_)} offen {args.hflags}")
            a(f"buffer_load_dwordx4 {vr(PB+12*s_+4,4)}, {vr(V_OFFV)}, {sr(SRD_WS,4)}, {sr(S_OTH+s_)} offen offset:1024 {args.hflags}")

    def publish():
        for i in range(3):
            a(f"buffer_store_dwordx4 {vr(OWN+4*i,4)}, {vr(V_OFFV)}, {sr(SRD_WS,4)}, {sr(S_SLOT)} offen offset:{1024*i} {args.hflags}")

    def merge(dst, nparts, mreg, lreg, oreg, first_wait, per_part_wait):
        first_wait()
        M = dst + 8
        L = dst + 9
        a(f"v_max_f32 {vr(M)}, {vr(mreg(0))}, {vr(mreg(1))}")
        for w in range(2, nparts):
            a(f"v_max_f32 {vr(M)}, {vr(M)}, {vr(mreg(w))}")
        for w in range(nparts):
            a(f"v_sub_f32 {vr(mreg(w))}, {vr(mreg(w))}, {vr(M)}")
        for w in range(nparts):
            a(f"v_exp_f32 {vr(mreg(w))}, {vr(mreg(w))}")
        a("s_nop 0")
        a(f"v_mul_f32 {vr(L)}, {vr(mreg(0))}, {vr(lreg(0))}")
        for w in range(1, nparts):
            a(f"v_fmac_f32 {vr(L)}, {vr(mreg(w))}, {vr(lreg(w))}")
        for w in range(nparts):
            per_part_wait(w)
            for e in range(8):
                if w == 0:
                    a(f"v_mul_f32 {vr(dst+e)}, {vr(mreg(0))}, {vr(oreg(0)+e)}")
                else:
                    a(f"v_fmac_f32 {vr(dst+e)}, {vr(mreg(w))}, {vr(oreg(w)+e)}")

    merge(OWN, NW, lambda w: ML + 2 * w, lambda w: ML + 2 * w + 1, lambda w: OB + 8 * w,
          lambda: a(f"s_waitcnt lgkmcnt({min(15, 2*NW)})"),
          lambda w: a(f"s_waitcnt lgkmcnt({min(15, 2*(NW-1-w))})"))
    if P2:
        a(f"s_mov_b32 {sr(S_SPIN)}, 0x100000")
        for e in range(10):
            a(f"v_min_u32 {vr(OWN+e)}, 0xfffffffe, {vr(OWN+e)}")
        a("s_waitcnt vmcnt(0)")
        a(f"v_readfirstlane_b32 {sr(S_T1)}, {vr(V_Q+2)}")
        stamp(7, True)
        a(f"s_cmp_eq_u32 {sr(S_T1)}, {NSPLIT-1}")
        a("s_cbranch_scc1 L_again")
        a.c("publish the partial; no word equals the all-ones marker")
        publish()
        a("s_branch L_end")
        a.label("L_again")
        poll_loads()
        a("s_waitcnt vmcnt(0)")
        regs = [PB + 12 * s_ + e for s_ in range(NSPLIT - 1) for e in range(10)]
        a(f"v_max3_u32 {vr(V_T0)}, {vr(regs[0])}, {vr(regs[1])}, {vr(regs[2])}")
        a(f"v_max3_u32 {vr(V_T1)}, {vr(regs[3])}, {vr(regs[4])}, {vr(regs[5])}")
        rest = regs[6:]
        k = 0
        while rest:
            t = V_T0 if k % 2 == 0 else V_T1
            if len(rest) >= 2:
                a(f"v_max3_u32 {vr(t)}, {vr(t)}, {vr(rest[0])}, {vr(rest[1])}")
                rest = rest[2:]
            else:
                a(f"v_max_u32 {vr(t)}, {vr(t)}, {vr(rest[0])}")
                rest = rest[1:]
            k += 1
        a(f"v_max_u32 {vr(V_T0)}, {vr(V_T0)}, {vr(V_T1)}")
        a(f"v_cmp_eq_u32 vcc, -1, {vr(V_T0)}")
        a(f"s_sub_u32 {sr(S_SPIN)}, {sr(S_SPIN)}, 1")
        a("s_cbranch_scc1 L_go")
        a("s_nop 2")
        a("s_cbranch_vccnz L_again")
        a.label("L_go")
    else:
        publish()
        a(f"s_lshl_b32 {sr(S_T1)}, {sr(S_BH)}, 2")
        a(f"v_mov_b32 {vr(V_T0)}, {sr(S_T1)}")
        a(f"v_mov_b32 {vr(V_T1)}, 1")
        a("s_mov_b64 exec, 1")
        a("s_waitcnt vmcnt(0)")
        stamp(7)
        a(f"global_atomic_add {vr(V_T2)}, {vr(V_T0)}, {vr(V_T1)}, {sr(S_DBG,2)} sc0")
        a("s_waitcnt vmcnt(0)")
        a(f"v_readfirstlane_b32 {sr(S_T1)}, {vr(V_T2)}")
        a("s_mov_b64 exec, -1")
        a(f"s_cmp_lg_u32 {sr(S_T1)}, {NSPLIT-1}")
        a("s_cbranch_scc1 L_end")
        poll_loads()
        a("s_waitcnt vmcnt(0)")
    stamp(8)
    part = lambda s_: OWN if s_ == 0 else PB + 12 * (s_ - 1)
    merge(ACC, NSPLIT, lambda s_: part(s_) + 8, lambda s_: part(s_) + 9, part, lambda: None, lambda w: None)
    a(f"v_rcp_f32 {vr(ACC+9)}, {vr(ACC+9)}")
    a("s_nop 0")
    for e in range(8):
        a(f"v_mul_f32 {vr(ACC+e)}, {vr(ACC+e)}, {vr(ACC+9)}")
    for e in range(4):
        a(f"v_cvt_pk_bf16_f32 {vr(ACC+e)}, {vr(ACC+2*e)}, {vr(ACC+2*e+1)}")
    a(f"s_lshl_b32 {sr(S_T1)}, {sr(S_BH)}, 10")
    a(f"buffer_store_dwordx4 {vr(ACC,4)}, {vr(V_OFFV)}, {sr(SRD_OUT,4)}, {sr(S_T1)} offen {args.oflags}".rstrip())
    if args.stamps:
        a("s_waitcnt vmcnt(0)")
    stamp(9)
    a.label("L_end")
    dump_stamps()
    a.label("L_exit")
    a("s_endpgm")
    if HELP:
        a.label("L_helper")
        setup_rest(True)
        a(f"s_lshl_b32 {sr(S_T1)}, {sr(S_BH)}, 2")
        a(f"v_mov_b32 {vr(V_Q)}, {sr(S_T1)}")
        a(f"v_mov_b32 {vr(V_Q+1)}, 1")
        a(f"v_mov_b32 {vr(V_Q+3)}, 0")
        a("s_waitcnt vmcnt(0)")
        a("s_mov_b64 exec, 1")
        a(f"ds_add_rtn_u32 {vr(V_Q+2)}, {vr(V_Q+3)}, {vr(V_Q+1)} offset:{LDS_CNT}")
        a("s_waitcnt lgkmcnt(0)")
        a(f"v_readfirstlane_b32 {sr(S_ROLE)}, {vr(V_Q+2)}")
        a("s_nop 0")
        a(f"s_cmp_lg_u32 {sr(S_ROLE)}, {NARR-1}")
        a("s_cbranch_scc1 L_exit")
        a.c("(only if the marking was the last thing to complete) take the ticket and merge")
        a(f"global_atomic_add {vr(V_Q+2)}, {vr(V_Q)}, {vr(V_Q+1)}, {sr(S_DBG,2)} sc0")
        a("s_mov_b64 exec, -1")
        a("s_branch L_join")

    nvgpr = max(nvgpr, args.minv)
    accum = min(256, (nvgpr + 3) // 4 * 4)
    out = HEADER
    out += f"; @launch grid=({NWG},1,1) block=({NARR*64},1,1) lds={max(LDS_BYTES, args.minlds)}\n"
    out += '.amdgcn_target "amdgcn-amd-amdhsa--gfx950"\n.text\n'
    out += f".globl {NAME}\n.p2align 8\n.type {NAME},@function\n{NAME}:\n"
    out += a.text()
    out += f""".section .rodata,"a"
.p2align 6
.amdhsa_kernel {NAME}
  .amdhsa_next_free_vgpr {nvgpr}
  .amdhsa_next_free_sgpr {S_NEXT}
  .amdhsa_accum_offset {accum}
  .amdhsa_group_segment_fixed_size 0
  .amdhsa_kernarg_size 48
  .amdhsa_user_sgpr_count 2
  .amdhsa_user_sgpr_kernarg_segment_ptr 1
  .amdhsa_system_sgpr_workgroup_id_x 1
.end_amdhsa_kernel
"""
    return out


if __name__ == "__main__":
    ap = argparse.ArgumentParser()
    ap.add_argument("--nsplit", type=int, default=4)
    ap.add_argument("--nw", type=int, default=2)
    ap.add_argument("--nb", type=int, default=3)
    ap.add_argument("--d", type=int, default=11)
    ap.add_argument("--bf", type=float, default=2.0)
    ap.add_argument("--bd", type=int, default=16)
    ap.add_argument("--ppl", type=int, default=1, help="compute pieces per load slot")
    ap.add_argument("--proto", type=int, default=3)
    ap.add_argument("--flags", default="nt")
    ap.add_argument("--hflags", default="sc1")
    ap.add_argument("--oflags", default="")
    ap.add_argument("--tq", type=int, default=1)
    ap.add_argument("--rot", type=int, default=16)
    ap.add_argument("--rotsrc", default="lo3")
    ap.add_argument("--wgmap", type=int, default=4)
    ap.add_argument("--minv", type=int, default=0)
    ap.add_argument("--minlds", type=int, default=0)
    ap.add_argument("--stamps", type=int, default=0)
    ap.add_argument("-o", default="standalone__gqa_softmax__decode.s")
    args = ap.parse_args()
    open(args.o, "w").write(gen(args))
```

```python
import argparse
import math
import struct

HEADER = """; GQA decode attention (B=8, Hq=32, Hkv=8, Sk=8192, D=128), split-K flash decoding.
"""
NAME = "standalone__gqa_softmax__decode_kernel"


def f32bits(x):
    return struct.unpack("<I", struct.pack("<f", x))[0]


class Asm:
    def __init__(self):
        self.lines = []
        self.pos = 0
        self.count = True
        self.wr = {}

    def __call__(self, s):
        self.lines.append("    " + s)
        if self.count:
            self.pos += int(s.split()[1]) + 1 if s.startswith("s_nop") else 1

    def op(self, kind, text, writes, reads):
        need = 0
        for r in set(reads) | (set(writes) if kind != "mfma" else set()):
            if r not in self.wr:
                continue
            p_, k = self.wr[r]
            dist = self.pos - p_ - 1
            req = 0
            if k == "mfma":
                req = 8
            elif r in reads or kind == "dpp":
                if kind in ("dpp", "mfma"):
                    req = 2
                elif k == "trans" and kind != "trans":
                    req = 1
            need = max(need, req - dist)
        if need > 0:
            self(f"s_nop {need-1}")
        here = self.pos
        self(text)
        for r in writes:
            self.wr[r] = (here, "valu" if kind == "dpp" else kind)

    def label(self, l):
        self.lines.append(l + ":")

    def c(self, s):
        self.lines.append("    ; " + s)

    def text(self):
        return "\n".join(self.lines) + "\n"


def vr(a, n=1):
    return f"v{a}" if n == 1 else f"v[{a}:{a+n-1}]"


def sr(a, n=1):
    return f"s{a}" if n == 1 else f"s[{a}:{a+n-1}]"


def gen(args):
    NSPLIT = args.nsplit
    NW = args.nw
    NB = args.nb
    KPWG = 8192 // NSPLIT
    KPW = KPWG // NW
    NT = KPW // 32
    assert NT % 4 == 0
    NA = NT // 4
    NWG = 64 * NSPLIT
    flags = args.flags
    P2 = args.proto >= 2
    HELP = args.proto == 3
    NARR = NW + (1 if HELP else 0)
    SLOT = 4096
    LDS_O = 0
    LDS_ML = NW * 2048
    LDS_CNT = NW * 2048 + NW * 32
    LDS_S = LDS_CNT + 64 - LDS_CNT % 64 + 64
    LDS_S = (LDS_CNT + 16 + 1023) // 1024 * 1024
    LDS_BYTES = LDS_S + NW * (NA + 1) * 2048
    scale_log2e = (128 ** -0.5) * math.log2(math.e)

    a = Asm()
    S_Q, S_K, S_V, S_OUT, S_DBG, S_WS = 4, 6, 8, 10, 12, 14
    SRD_K, SRD_V, SRD_Q, SRD_WS, SRD_OUT = 16, 20, 24, 28, 32
    S_BH, S_SPLIT, S_WAVE, S_T0, S_T1 = 36, 37, 38, 39, 40
    S_OFFK, S_OFFV, S_SELLO, S_SELHI, S_C = 41, 42, 43, 44, 45
    S_MASK = 46
    S_SLOT = 54
    S_OTH = 55
    S_SPIN = S_OTH + NSPLIT - 1
    S_ROLE = S_SPIN + 1
    S_CNT = S_ROLE + 1
    S_NEXT = (S_CNT + 2) // 2 * 2
    S_ST = S_NEXT
    NSTAMP = 10
    if args.stamps:
        S_NEXT = S_ST + 2 * NSTAMP + 4

    def stamp(i, wait=False):
        if args.stamps:
            a(f"s_memrealtime {sr(S_ST+2*i,2)}")
            if wait:
                a("s_waitcnt lgkmcnt(0)")

    def dump_stamps():
        if not args.stamps:
            return
        SB = S_ST + 2 * NSTAMP
        a("s_waitcnt lgkmcnt(0)")
        a(f"s_mul_i32 {sr(SB+2)}, s2, {NARR}")
        a(f"s_add_u32 {sr(SB+2)}, {sr(SB+2)}, {sr(S_WAVE)}")
        a(f"s_lshl_b32 {sr(SB+2)}, {sr(SB+2)}, 7")
        a(f"s_add_u32 {sr(SB+2)}, {sr(SB+2)}, {16<<20}")
        a(f"s_add_u32 {sr(SB)}, {sr(S_WS)}, {sr(SB+2)}")
        a(f"s_addc_u32 {sr(SB+1)}, {sr(S_WS+1)}, 0")
        a("s_mov_b64 exec, 1")
        a("v_mov_b32 v4, 0")
        for i in range(NSTAMP):
            a(f"v_mov_b32 v6, {sr(S_ST+2*i)}")
            a(f"v_mov_b32 v7, {sr(S_ST+2*i+1)}")
            a(f"global_store_dwordx2 v4, v[6:7], {sr(SB,2)} offset:{8*i}")
            a("s_nop 1")
        a("s_getreg_b32 s3, hwreg(HW_REG_XCC_ID)")
        a("v_mov_b32 v6, s3")
        a("s_getreg_b32 s3, hwreg(HW_REG_HW_ID)")
        a("v_mov_b32 v7, s3")
        a(f"global_store_dwordx2 v4, v[6:7], {sr(SB,2)} offset:{8*NSTAMP}")

    V_OFFK, V_OFFV, V_T0, V_T1, V_T2, V_M, V_L = 1, 2, 3, 4, 5, 6, 7
    V_Q = 8
    V_P = 12
    V_PM = 16
    V_STG = 24
    V_DA = 88
    V_S = 120
    V_LW, V_LR = 128, 129
    V_BUF = 132
    V_END = V_BUF + NB * 32
    assert V_END <= 256, V_END
    nvgpr = V_END

    a(f"s_cmp_ge_u32 s2, {NWG}")
    a("s_cbranch_scc1 L_exit")
    if args.stamps:
        for i in range(NSTAMP):
            a(f"s_mov_b64 {sr(S_ST+2*i,2)}, 0")
    stamp(0)
    a(f"s_load_dwordx8 {sr(4,8)}, s[0:1], 0")
    a(f"s_load_dwordx4 {sr(12,4)}, s[0:1], 32")
    a(f"v_lshrrev_b32 {vr(V_T0)}, 6, v0")
    a(f"v_and_b32 {vr(V_OFFV)}, 63, v0")
    a(f"v_readfirstlane_b32 {sr(S_WAVE)}, {vr(V_T0)}")
    if args.wgmap == 0:
        a(f"s_and_b32 {sr(S_BH)}, s2, 63")
        a(f"s_lshr_b32 {sr(S_SPLIT)}, s2, 6")
    elif args.wgmap == 4:
        a(f"s_and_b32 {sr(S_BH)}, s2, 3")
        a(f"s_lshl_b32 {sr(S_BH)}, {sr(S_BH)}, 1")
        a(f"s_bfe_u32 {sr(S_T0)}, s2, 0x10003")
        a(f"s_or_b32 {sr(S_BH)}, {sr(S_BH)}, {sr(S_T0)}")
        a(f"s_lshr_b32 {sr(S_T0)}, s2, 1")
        a(f"s_and_b32 {sr(S_T0)}, {sr(S_T0)}, 0x18")
        a(f"s_or_b32 {sr(S_BH)}, {sr(S_BH)}, {sr(S_T0)}")
        a(f"s_lshl_b32 {sr(S_T0)}, s2, 3")
        a(f"s_and_b32 {sr(S_T0)}, {sr(S_T0)}, 0x20")
        a(f"s_or_b32 {sr(S_BH)}, {sr(S_BH)}, {sr(S_T0)}")
        a(f"s_lshr_b32 {sr(S_SPLIT)}, s2, 6")
    else:
        a(f"s_lshr_b32 {sr(S_BH)}, s2, {int(math.log2(NSPLIT))}")
        a(f"s_and_b32 {sr(S_SPLIT)}, s2, {NSPLIT-1}")
    a(f"v_and_b32 {vr(V_T0)}, 3, v0")
    a(f"v_bfe_u32 {vr(V_T1)}, v0, 2, 2")
    a(f"v_bfe_u32 {vr(V_T2)}, v0, 4, 2")
    a(f"v_lshlrev_b32 {vr(V_T2)}, 6, {vr(V_T2)}")
    a(f"v_lshl_add_u32 {vr(V_OFFK)}, {vr(V_T1)}, 8, {vr(V_T2)}")
    a(f"v_lshl_add_u32 {vr(V_OFFK)}, {vr(V_T0)}, 4, {vr(V_OFFK)}")
    a(f"v_lshl_add_u32 {vr(V_T2)}, {vr(V_T0)}, 8, {vr(V_T2)}")
    a(f"v_lshl_add_u32 {vr(V_T2)}, {vr(V_T1)}, 4, {vr(V_T2)}")
    a(f"v_lshlrev_b32 {vr(V_OFFV)}, 4, {vr(V_OFFV)}")
    a(f"s_lshl_b32 {sr(S_T0)}, {sr(S_BH)}, 21")
    a(f"s_mul_i32 {sr(S_T1)}, {sr(S_SPLIT)}, {KPWG*256}")
    a(f"s_add_u32 {sr(S_T0)}, {sr(S_T0)}, {sr(S_T1)}")
    tile_stride = 8192 * NW
    nrec = KPWG * 256
    a(f"s_lshl_b32 {sr(S_OFFK)}, {sr(S_WAVE)}, 13")
    if args.rot:
        if args.rotsrc == "hi5":
            a(f"s_lshr_b32 {sr(S_T1)}, s2, 3")
        elif args.rotsrc == "lo3":
            a(f"s_and_b32 {sr(S_T1)}, s2, 7")
        elif args.rotsrc == "split":
            a(f"s_lshr_b32 {sr(S_T1)}, s2, 6")
        a(f"s_mul_i32 {sr(S_T1)}, {sr(S_T1)}, {args.rot*1024}")
        a(f"s_add_u32 {sr(S_OFFK)}, {sr(S_OFFK)}, {sr(S_T1)}")
        a(f"s_and_b32 {sr(S_OFFK)}, {sr(S_OFFK)}, {nrec-1}")
    a(f"s_mov_b32 {sr(S_OFFV)}, {sr(S_OFFK)}")
    a(f"s_mov_b32 {sr(SRD_K+2)}, {nrec}")
    a(f"s_mov_b32 {sr(SRD_K+3)}, 0x20000")
    a(f"s_mov_b32 {sr(SRD_Q+2)}, 1024")
    a(f"s_mov_b32 {sr(SRD_Q+3)}, 0x20000")
    a(f"s_lshl_b32 {sr(S_T1)}, {sr(S_BH)}, 10")
    a("s_waitcnt lgkmcnt(0)")
    a(f"s_add_u32 {sr(SRD_K)}, {sr(S_K)}, {sr(S_T0)}")
    a(f"s_addc_u32 {sr(SRD_K+1)}, {sr(S_K+1)}, 0")
    a(f"s_add_u32 {sr(SRD_Q)}, {sr(S_Q)}, {sr(S_T1)}")
    a(f"s_addc_u32 {sr(SRD_Q+1)}, {sr(S_Q+1)}, 0")
    if HELP:
        a(f"s_cmp_eq_u32 {sr(S_WAVE)}, {NW}")
        a("s_cbranch_scc1 L_helper")

    ops = []
    loads = []
    state = dict(done=-1, paced=-1, allz=False)

    def issue(name, text, is_load=True):
        a(text)
        ops.append(name)
        if is_load:
            loads.append(name)
        state["allz"] = False

    def emit_wait(n):
        assert n <= 63
        a(f"s_waitcnt vmcnt({n})")
        state["done"] = max(state["done"], len(loads) - 1 - n)
        state["paced"] = max(state["paced"], len(ops) - 1 - n)
        if n == 0:
            state["allz"] = True

    def pace(name):
        k = ops.index(name)
        if k > state["paced"]:
            emit_wait(len(ops) - 1 - k)

    def wait_for(name):
        k = loads.index(name)
        if k > state["done"]:
            emit_wait(len(loads) - 1 - k)

    def is_done(name):
        return name in loads and loads.index(name) <= state["done"]

    NL = 2 * NT * 8

    def emit_load(i):
        t, j = i // 8, i % 8
        buf = V_BUF + (t % NB) * 32
        if t < NT:
            voff, srd, soff = V_OFFK, SRD_K, S_OFFK
        else:
            voff, srd, soff = V_OFFV, SRD_V, S_OFFV
        issue(f"L{i}", f"buffer_load_dwordx4 {vr(buf+4*j,4)}, {vr(voff)}, {sr(srd,4)}, {sr(soff)} offen offset:{1024*(j%4)} {flags}".rstrip())
        if j % 4 == 3:
            inc = 4096 if j == 3 else tile_stride - 4096
            a(f"s_add_u32 {sr(soff)}, {sr(soff)}, {inc}")
            if j == 7 and args.rot:
                a(f"s_and_b32 {sr(soff)}, {sr(soff)}, {nrec-1}")

    def depth(i):
        if i >= NL * args.bf:
            return args.bd
        return args.d

    def setup_rest(helper=False):
        stamp(1)
        a(f"s_add_u32 {sr(SRD_V)}, {sr(S_V)}, {sr(S_T0)}")
        a(f"s_addc_u32 {sr(SRD_V+1)}, {sr(S_V+1)}, 0")
        a(f"s_mov_b32 {sr(SRD_V+2)}, {nrec}")
        a(f"s_mov_b32 {sr(SRD_V+3)}, 0x20000")
        a(f"s_mov_b32 {sr(SRD_WS)}, {sr(S_WS)}")
        a(f"s_mov_b32 {sr(SRD_WS+1)}, {sr(S_WS+1)}")
        a(f"s_mov_b32 {sr(SRD_WS+2)}, {NWG*SLOT}")
        a(f"s_mov_b32 {sr(SRD_WS+3)}, 0x20000")
        a(f"s_mul_i32 {sr(S_SPIN)}, {sr(S_BH)}, {NSPLIT*SLOT}")
        a(f"s_mul_i32 {sr(S_SLOT)}, {sr(S_SPLIT)}, {SLOT}")
        a(f"s_add_u32 {sr(S_SLOT)}, {sr(S_SLOT)}, {sr(S_SPIN)}")
        if helper:
            a.c("mark this workgroup's partial slot as not yet written (all-ones words)")
            for i in range(4):
                a(f"v_mov_b32 {vr(V_P+i)}, -1")
            for i in range(3):
                a(f"buffer_store_dwordx4 {vr(V_P,4)}, {vr(V_OFFV)}, {sr(SRD_WS,4)}, {sr(S_SLOT)} offen offset:{1024*i} {args.hflags}")
            a(f"v_mov_b32 {vr(V_M)}, 0")
            a(f"ds_write_b32 {vr(V_M)}, {vr(V_M)} offset:{LDS_CNT}")
        if P2 and not HELP:
            a.c("mark this workgroup's partial slot as not yet written (all-ones words)")
            for i in range(4):
                a(f"v_mov_b32 {vr(V_P+i)}, -1")
            a(f"s_lshl_b32 {sr(S_T1)}, {sr(S_WAVE)}, 10")
            a(f"s_add_u32 {sr(S_T1)}, {sr(S_T1)}, {sr(S_SLOT)}")
            for i in range(4 // NW):
                issue(f"INV{i}", f"buffer_store_dwordx4 {vr(V_P,4)}, {vr(V_OFFV)}, {sr(SRD_WS,4)}, {sr(S_T1)} offen offset:{1024*NW*i} {args.hflags}", False)
            a(f"v_mov_b32 {vr(V_M)}, 0")
            a(f"ds_write_b32 {vr(V_M)}, {vr(V_M)} offset:{LDS_CNT}")
        if not helper:
            a(f"s_mul_i32 {sr(S_T1)}, {sr(S_WAVE)}, {(NA+1)*2048}")
            a(f"v_add_u32 {vr(V_LW)}, {sr(S_T1)}, {vr(V_OFFV)}")
            a(f"v_add_u32 {vr(V_LR)}, {sr(S_T1)}, {vr(V_OFFV)}")
            a(f"v_mov_b32 {vr(V_M)}, 0xff800000")
            a(f"v_mov_b32 {vr(V_L)}, 0")
        a(f"s_mov_b32 {sr(S_SELLO)}, 0x05040100")
        a(f"s_mov_b32 {sr(S_SELHI)}, 0x07060302")
        a(f"s_mov_b32 {sr(S_C)}, 0x{f32bits(scale_log2e):08x}")
        for b in range(4):
            m = 0x000F000F << (4 * b)
            a(f"s_mov_b32 {sr(S_MASK+2*b)}, 0x{m:08x}")
            a(f"s_mov_b32 {sr(S_MASK+2*b+1)}, 0x{m:08x}")
        for i in range(1, NSPLIT):
            a(f"s_add_u32 {sr(S_OTH+i-1)}, {sr(S_SPLIT)}, {i}")
            a(f"s_and_b32 {sr(S_OTH+i-1)}, {sr(S_OTH+i-1)}, {NSPLIT-1}")
            a(f"s_mul_i32 {sr(S_OTH+i-1)}, {sr(S_OTH+i-1)}, {SLOT}")
            a(f"s_add_u32 {sr(S_OTH+i-1)}, {sr(S_OTH+i-1)}, {sr(S_SPIN)}")
        a(f"s_mov_b32 {sr(SRD_OUT)}, {sr(S_OUT)}")
        a(f"s_mov_b32 {sr(SRD_OUT+1)}, {sr(S_OUT+1)}")
        a(f"s_mov_b32 {sr(SRD_OUT+2)}, {64*1024}")
        a(f"s_mov_b32 {sr(SRD_OUT+3)}, 0x20000")
        if P2:
            a("s_waitcnt lgkmcnt(0)")
            a("s_barrier")

    def dpp(b, r):
        n = (4 * (b - r)) % 16
        ctl = "quad_perm:[0,1,2,3]" if n == 0 else f"row_ror:{n}"
        return f"{ctl} row_mask:0xf bank_mask:0x{1<<b:x}"

    def allreduce(op, reg):
        a("s_nop 1")
        a(f"{op}_dpp {vr(reg)}, {vr(reg)}, {vr(reg)} row_ror:4 row_mask:0xf bank_mask:0xf")
        a("s_nop 1")
        a(f"{op}_dpp {vr(reg)}, {vr(reg)}, {vr(reg)} row_ror:8 row_mask:0xf bank_mask:0xf")
        a(f"v_mov_b32 {vr(V_T0)}, {vr(reg)}")
        a("s_nop 1")
        a(f"v_permlane32_swap_b32 {vr(V_T0)}, {vr(reg)}")
        a("s_nop 1")
        a(f"{op} {vr(reg)}, {vr(V_T0)}, {vr(reg)}")
        a(f"v_mov_b32 {vr(V_T0)}, {vr(reg)}")
        a("s_nop 1")
        a(f"v_permlane16_swap_b32 {vr(V_T0)}, {vr(reg)}")
        a("s_nop 1")
        a(f"{op} {vr(reg)}, {vr(V_T0)}, {vr(reg)}")

    NK = NT * 8
    R4 = lambda b_: list(range(b_, b_ + 4))

    def lbuf(j):
        return V_BUF + ((j // 8) % NB) * 32 + 4 * (j % 8)

    def k_dpp(j, r):
        T, i = j // 8, j % 8
        A, b = T // 4, T % 4
        s_ = V_S + i
        d = V_DA + 4 * i + r
        if r == 0:
            a.op("dpp", f"v_mov_b32_dpp {vr(s_)}, {vr(d)} {dpp(b, 0)}", [s_], [d])
        else:
            a.op("dpp", f"v_add_f32_dpp {vr(s_)}, {vr(d)}, {vr(s_)} {dpp(b, r)}", [s_], [d, s_])

    def v_perms(j, z):
        T, p_ = (j - NK) // 8, (j % 8) // 2
        stg = V_STG + 32 * (T % 2)
        for q in range(4):
            lo, hi = lbuf(j - 1) + q, lbuf(j) + q
            d = stg + 8 * q + 4 * z + p_
            a.op("valu", f"v_perm_b32 {vr(d)}, {vr(hi)}, {vr(lo)}, {sr(S_SELHI if z else S_SELLO)}", [d], [lo, hi])

    def step(j):
        if j < NK:
            if j == 0:
                stamp(2)
            d = V_DA + 4 * (j % 8)
            a.op("mfma", f"v_mfma_f32_16x16x32_bf16 {vr(d,4)}, {vr(lbuf(j),4)}, {vr(V_Q,4)}, 0", R4(d), [])
        for r in range(4):
            jj = j - 2 - r
            if 0 <= jj < NK:
                k_dpp(jj, r)
        jj = j - 6
        if 0 <= jj < NK and (jj // 8) % 4 == 3:
            s_ = V_S + jj % 8
            a.op("valu", f"v_max_f32 {vr(V_M)}, {vr(V_M)}, {vr(s_)}", [V_M], [V_M, s_])
            if jj % 4 == 3:
                h = (jj % 8) // 4
                a(f"ds_write_b128 {vr(V_LW)}, {vr(V_S+4*h,4)} offset:{LDS_S+1024*h}")
                if h == 1:
                    a(f"v_add_u32 {vr(V_LW)}, 2048, {vr(V_LW)}")
        if NK <= j < NL and j % 2 == 1:
            v_perms(j, 0)
        if NK <= j - 1 < NL and (j - 1) % 2 == 1:
            v_perms(j - 1, 1)

    fifo = []

    def allreduce_items(op, reg, earliest):
        def f1():
            a.op("dpp", f"{op}_dpp {vr(reg)}, {vr(reg)}, {vr(reg)} row_ror:4 row_mask:0xf bank_mask:0xf", [reg], [reg])
        def f2():
            a.op("dpp", f"{op}_dpp {vr(reg)}, {vr(reg)}, {vr(reg)} row_ror:8 row_mask:0xf bank_mask:0xf", [reg], [reg])
            a.op("valu", f"v_mov_b32 {vr(V_T0)}, {vr(reg)}", [V_T0], [reg])
        def f3():
            a.op("dpp", f"v_permlane32_swap_b32 {vr(V_T0)}, {vr(reg)}", [V_T0, reg], [V_T0, reg])
            a("s_nop 0")
            a.op("valu", f"{op} {vr(reg)}, {vr(V_T0)}, {vr(reg)}", [reg], [V_T0, reg])
            a.op("valu", f"v_mov_b32 {vr(V_T0)}, {vr(reg)}", [V_T0], [reg])
        def f4():
            a.op("dpp", f"v_permlane16_swap_b32 {vr(V_T0)}, {vr(reg)}", [V_T0, reg], [V_T0, reg])
            a("s_nop 0")
            a.op("valu", f"{op} {vr(reg)}, {vr(V_T0)}, {vr(reg)}", [reg], [V_T0, reg])
        for f in (f1, f2, f3, f4):
            fifo.append((earliest, None, f))

    pre0 = None
    fifo.append((NK + 5, None, lambda: (stamp(3), pre0())))
    allreduce_items("v_max_f32", V_M, NK + 5)

    def mscale():
        a.op("valu", f"v_mul_f32 {vr(V_M)}, {sr(S_C)}, {vr(V_M)}", [V_M], [V_M])
        stamp(4)
    fifo.append((NK + 5, None, mscale))

    def ex_items(A):
        s_ = V_S
        def rd():
            a(f"ds_read_b128 {vr(V_S,4)}, {vr(V_LR)} offset:{LDS_S}")
            a(f"ds_read_b128 {vr(V_S+4,4)}, {vr(V_LR)} offset:{LDS_S+1024}")
            a(f"v_add_u32 {vr(V_LR)}, 2048, {vr(V_LR)}")
        def fm(lo):
            def f():
                if lo == 0:
                    a("s_waitcnt lgkmcnt(0)")
                for i in range(lo, lo + 4):
                    a.op("valu", f"v_fma_f32 {vr(s_+i)}, {vr(s_+i)}, {sr(S_C)}, -{vr(V_M)}", [s_ + i], [s_ + i, V_M])
            return f
        def ex(lo):
            def f():
                for i in range(lo, lo + 2):
                    a.op("trans", f"v_exp_f32 {vr(s_+i)}, {vr(s_+i)}", [s_ + i], [s_ + i])
            return f
        def cv():
            for i in range(4):
                a.op("valu", f"v_cvt_pk_bf16_f32 {vr(V_P+i)}, {vr(s_+2*i)}, {vr(s_+2*i+1)}", [V_P + i], [s_ + 2 * i, s_ + 2 * i + 1])
        def add(d, x, y):
            a.op("valu", f"v_add_f32 {vr(d)}, {vr(x)}, {vr(y)}", [d], [x, y])
        def s1():
            for i in range(0, 8, 2):
                add(s_ + i, s_ + i, s_ + i + 1)
        def s2():
            add(s_, s_, s_ + 2)
            add(s_ + 4, s_ + 4, s_ + 6)
            add(s_, s_, s_ + 4)
            add(V_L, V_L, s_)
        return [fm(0), fm(4), ex(0), ex(2), ex(4), ex(6)], [cv], [s1, s2], rd

    def mask_item(T):
        def f():
            PM = V_PM + 4 * (T % 2)
            for i in range(4):
                a.op("valu", f"v_cndmask_b32 {vr(PM+i)}, 0, {vr(V_P+i)}, {sr(S_MASK+2*(T%4),2)}", [PM + i], [V_P + i])
        return f

    def pv_item(T, dd):
        def f():
            PM = V_PM + 4 * (T % 2)
            bq = V_STG + 32 * (T % 2) + 4 * dd
            d = V_DA + 4 * dd
            if T == 0:
                pass
            a.op("mfma", f"v_mfma_f32_16x16x32_bf16 {vr(d,4)}, {vr(PM,4)}, {vr(bq,4)}, {'0' if T == 0 else vr(d,4)}", R4(d), R4(PM) + R4(bq))
        return f

    def ticket_prep():
        a(f"s_lshl_b32 {sr(S_T1)}, {sr(S_BH)}, 2")
        a(f"v_mov_b32 {vr(V_Q)}, {sr(S_T1)}")
        a(f"v_mov_b32 {vr(V_Q+1)}, 1")
        a(f"v_mov_b32 {vr(V_Q+3)}, 0")

    pre, cvt, post, pre0 = ex_items(0)
    rd = pre0
    for f in pre + cvt:
        fifo.append((0, None, f))
    fifo.append((0, None, mask_item(0)))
    for T in range(NT):
        A, b = T // 4, T % 4
        base = NK + 8 * T
        lastg = A == NA - 1
        side = []
        if b == 0:
            side += post + [rd]
        if b == 1:
            side += pre[:3]
        if b == 2:
            if lastg:
                side.append("LRED")
            else:
                side += pre[3:]
        if T + 1 < NT:
            if b == 3:
                side += cvt
            side = side + [mask_item(T + 1)] if b == 3 else [mask_item(T + 1)] + side
        if T == NT - 2 and P2:
            side.append(ticket_prep)
        if T < NT - 1:
            order = [0, 2, 4, 6, 1, 3, 5, 7]
            for dd in order:
                fifo.append((base + 7 + (dd % 2), base + 17, pv_item(T, dd)))
        for f in side:
            if f == "LRED":
                allreduce_items("v_add_f32", V_L, 0)
            else:
                fifo.append((0, None, f))

    issue("Q", f"buffer_load_dwordx4 {vr(V_Q,4)}, {vr(V_T2)}, {sr(SRD_Q,4)}, 0 offen")
    st = dict(nstep=0, fi=0)

    def run_step():
        j = st["nstep"]
        last_due = max([k for k in range(st["fi"], len(fifo)) if fifo[k][1] is not None and fifo[k][1] <= j], default=-1)
        while st["fi"] <= last_due:
            assert fifo[st["fi"]][0] < j
            fifo[st["fi"]][2]()
            st["fi"] += 1
        step(j)
        st["nstep"] += 1

    def run_fifo(n):
        for _ in range(n):
            if st["fi"] < len(fifo) and fifo[st["fi"]][0] < st["nstep"]:
                fifo[st["fi"]][2]()
                st["fi"] += 1

    did_setup = False
    RING = 8 * NB
    marks = []
    for i in range(NL):
        need = i - depth(i)
        if need >= 0 and not did_setup:
            setup_rest()
            did_setup = True
        marks.append(len(a.lines))
        if need >= 0:
            pace(f"L{need}")
        if i >= RING:
            old = i - RING
            must = old if old < NK else (old | 1) + 1
            while st["nstep"] <= must:
                wait_for(f"L{min(st['nstep'], i-1)}")
                run_step()
        emit_load(i)
        ran = 0
        while did_setup and ran < args.spl and st["nstep"] < NL and is_done(f"L{st['nstep']}"):
            run_step()
            ran += 1
        run_fifo(args.ppl)
    marks.append(len(a.lines))
    if args.fold:
        chunks = [a.lines[marks[i]:marks[i + 1]] for i in range(NL)]
        head = a.lines[:marks[0]]
        outl = list(head)
        i = 0
        nloop = 0
        while i < NL:
            e = i
            while e + 32 < NL and chunks[e] == chunks[e + 32]:
                e += 1
            if e - i >= 32:
                total = e + 32 - i
                full, part = divmod(total, 32)
                outl.append(f"    s_mov_b32 {sr(S_CNT)}, {full if part else full - 1}")
                if args.align:
                    outl.append(f"    .p2align {args.align}")
                outl.append(f"L_loop{nloop}:")
                for k in range(32):
                    if part and k == part:
                        outl.append(f"    s_sub_u32 {sr(S_CNT)}, {sr(S_CNT)}, 1")
                        outl.append(f"    s_cbranch_scc1 L_exit{nloop}")
                    outl += chunks[i + k]
                if part:
                    outl.append(f"    s_branch L_loop{nloop}")
                else:
                    outl.append(f"    s_sub_u32 {sr(S_CNT)}, {sr(S_CNT)}, 1")
                    outl.append(f"    s_cbranch_scc0 L_loop{nloop}")
                outl.append(f"L_exit{nloop}:")
                print(f"loop {nloop}: slots [{i}, {i+total}) = {full} x 32 + {part}")
                nloop += 1
                i += total
            else:
                outl += chunks[i]
                i += 1
        a.lines = outl
    while st["nstep"] < NL - 1:
        wait_for(f"L{st['nstep']}")
        run_step()
        run_fifo(args.ppl + 1)
    run_fifo(1000)
    assert st["fi"] == len(fifo), (st, len(fifo))
    wait_for(f"L{NL-1}")
    assert state["allz"]
    if P2:
        a.c("every load (and the slot marking) of this wave is complete: count it")
        a("s_mov_b64 exec, 1")
        a(f"ds_add_rtn_u32 {vr(V_Q+2)}, {vr(V_Q+3)}, {vr(V_Q+1)} offset:{LDS_CNT}")
        a("s_mov_b64 exec, -1")
    run_step()
    run_step()
    for n, dd in enumerate([0, 2, 4, 6, 1, 3, 5, 7]):
        pv_item(NT - 1, dd)()
        if n == args.tq and P2:
            a.c("the last wave of the workgroup to finish its loads takes the ticket and merges")
            a("s_waitcnt lgkmcnt(0)")
            a(f"v_readfirstlane_b32 {sr(S_ROLE)}, {vr(V_Q+2)}")
            a("s_nop 0")
            a(f"s_cmp_lg_u32 {sr(S_ROLE)}, {NARR-1}")
            a("s_cbranch_scc1 L_noticket")
            a.count = False
            a("s_mov_b64 exec, 1")
            a(f"global_atomic_add {vr(V_Q+2)}, {vr(V_Q)}, {vr(V_Q+1)}, {sr(S_DBG,2)} sc0")
            a("s_mov_b64 exec, -1")
            a.count = True
            a.label("L_noticket")

    stamp(5)
    G = V_BUF
    a(f"s_lshl_b32 {sr(S_T0)}, {sr(S_WAVE)}, 11")
    a(f"v_add_u32 {vr(V_T0)}, {sr(S_T0)}, {vr(V_OFFV)}")
    a(f"s_lshl_b32 {sr(S_T1)}, {sr(S_WAVE)}, 5")
    a(f"v_and_b32 {vr(V_T1)}, 3, v0")
    a(f"v_lshlrev_b32 {vr(V_T1)}, 3, {vr(V_T1)}")
    a(f"v_add_u32 {vr(V_T1)}, {sr(S_T1)}, {vr(V_T1)}")
    a(f"ds_write_b64 {vr(V_T1)}, {vr(V_M,2)} offset:{LDS_ML}")
    a("s_nop 1")
    for dd in range(8):
        d = V_DA + 4 * dd
        a(f"v_permlane32_swap_b32 {vr(d)}, {vr(d+2)}")
        a(f"v_permlane32_swap_b32 {vr(d+1)}, {vr(d+3)}")
    for dd in range(8):
        d = V_DA + 4 * dd
        a(f"v_add_f32 {vr(d)}, {vr(d)}, {vr(d+2)}")
        a(f"v_add_f32 {vr(d+1)}, {vr(d+1)}, {vr(d+3)}")
    for dd in range(8):
        d = V_DA + 4 * dd
        a(f"v_permlane16_swap_b32 {vr(d)}, {vr(d+1)}")
    for dd in range(8):
        d = V_DA + 4 * dd
        a(f"v_add_f32 {vr(G+dd)}, {vr(d)}, {vr(d+1)}")
    a(f"ds_write_b128 {vr(V_T0)}, {vr(G,4)} offset:{LDS_O}")
    a(f"ds_write_b128 {vr(V_T0)}, {vr(G+4,4)} offset:{LDS_O+1024}")
    a("s_waitcnt lgkmcnt(0)")
    a.label("L_join")
    a("s_barrier")
    stamp(6, True)
    if P2:
        a(f"s_cmp_lg_u32 {sr(S_ROLE)}, {NARR-1}")
    else:
        a(f"s_cmp_lg_u32 {sr(S_WAVE)}, 0")
    a("s_cbranch_scc1 L_end")
    ML = G
    OB = G + 2 * NW + (4 - (2 * NW) % 4) % 4
    PB = OB + NW * 8
    ACC = V_DA
    OWN = V_DA + 12
    assert PB + (NSPLIT - 1) * 12 <= V_END
    a(f"v_bfe_u32 {vr(V_T1)}, v0, 4, 2")
    a(f"v_lshlrev_b32 {vr(V_T1)}, 3, {vr(V_T1)}")
    for w in range(NW):
        a(f"ds_read_b64 {vr(ML+2*w,2)}, {vr(V_T1)} offset:{LDS_ML+32*w}")
    for w in range(NW):
        a(f"ds_read_b128 {vr(OB+8*w,4)}, {vr(V_OFFV)} offset:{LDS_O+2048*w}")
        a(f"ds_read_b128 {vr(OB+8*w+4,4)}, {vr(V_OFFV)} offset:{LDS_O+2048*w+1024}")

    def poll_loads():
        for s_ in range(NSPLIT - 1):
            a(f"buffer_load_dwordx4 {vr(PB+12*s_+8,4)}, {vr(V_OFFV)}, {sr(SRD_WS,4)}, {sr(S_OTH+s_)} offen offset:2048 {args.hflags}")
            a(f"buffer_load_dwordx4 {vr(PB+12*s_,4)}, {vr(V_OFFV)}, {sr(SRD_WS,4)}, {sr(S_OTH+s_)} offen {args.hflags}")
            a(f"buffer_load_dwordx4 {vr(PB+12*s_+4,4)}, {vr(V_OFFV)}, {sr(SRD_WS,4)}, {sr(S_OTH+s_)} offen offset:1024 {args.hflags}")

    def publish():
        for i in range(3):
            a(f"buffer_store_dwordx4 {vr(OWN+4*i,4)}, {vr(V_OFFV)}, {sr(SRD_WS,4)}, {sr(S_SLOT)} offen offset:{1024*i} {args.hflags}")

    def merge(dst, nparts, mreg, lreg, oreg, first_wait, per_part_wait):
        first_wait()
        M = dst + 8
        L = dst + 9
        a(f"v_max_f32 {vr(M)}, {vr(mreg(0))}, {vr(mreg(1))}")
        for w in range(2, nparts):
            a(f"v_max_f32 {vr(M)}, {vr(M)}, {vr(mreg(w))}")
        for w in range(nparts):
            a(f"v_sub_f32 {vr(mreg(w))}, {vr(mreg(w))}, {vr(M)}")
        for w in range(nparts):
            a(f"v_exp_f32 {vr(mreg(w))}, {vr(mreg(w))}")
        a("s_nop 0")
        a(f"v_mul_f32 {vr(L)}, {vr(mreg(0))}, {vr(lreg(0))}")
        for w in range(1, nparts):
            a(f"v_fmac_f32 {vr(L)}, {vr(mreg(w))}, {vr(lreg(w))}")
        for w in range(nparts):
            per_part_wait(w)
            for e in range(8):
                if w == 0:
                    a(f"v_mul_f32 {vr(dst+e)}, {vr(mreg(0))}, {vr(oreg(0)+e)}")
                else:
                    a(f"v_fmac_f32 {vr(dst+e)}, {vr(mreg(w))}, {vr(oreg(w)+e)}")

    merge(OWN, NW, lambda w: ML + 2 * w, lambda w: ML + 2 * w + 1, lambda w: OB + 8 * w,
          lambda: a(f"s_waitcnt lgkmcnt({min(15, 2*NW)})"),
          lambda w: a(f"s_waitcnt lgkmcnt({min(15, 2*(NW-1-w))})"))
    if P2:
        a(f"s_mov_b32 {sr(S_SPIN)}, 0x100000")
        for e in range(10):
            a(f"v_min_u32 {vr(OWN+e)}, 0xfffffffe, {vr(OWN+e)}")
        a("s_waitcnt vmcnt(0)")
        a(f"v_readfirstlane_b32 {sr(S_T1)}, {vr(V_Q+2)}")
        stamp(7, True)
        a(f"s_cmp_eq_u32 {sr(S_T1)}, {NSPLIT-1}")
        a("s_cbranch_scc1 L_again")
        a.c("publish the partial; no word equals the all-ones marker")
        publish()
        a("s_branch L_end")
        a.label("L_again")
        poll_loads()
        a("s_waitcnt vmcnt(0)")
        regs = [PB + 12 * s_ + e for s_ in range(NSPLIT - 1) for e in range(10)]
        a(f"v_max3_u32 {vr(V_T0)}, {vr(regs[0])}, {vr(regs[1])}, {vr(regs[2])}")
        a(f"v_max3_u32 {vr(V_T1)}, {vr(regs[3])}, {vr(regs[4])}, {vr(regs[5])}")
        rest = regs[6:]
        k = 0
        while rest:
            t = V_T0 if k % 2 == 0 else V_T1
            if len(rest) >= 2:
                a(f"v_max3_u32 {vr(t)}, {vr(t)}, {vr(rest[0])}, {vr(rest[1])}")
                rest = rest[2:]
            else:
                a(f"v_max_u32 {vr(t)}, {vr(t)}, {vr(rest[0])}")
                rest = rest[1:]
            k += 1
        a(f"v_max_u32 {vr(V_T0)}, {vr(V_T0)}, {vr(V_T1)}")
        a(f"v_cmp_eq_u32 vcc, -1, {vr(V_T0)}")
        a(f"s_sub_u32 {sr(S_SPIN)}, {sr(S_SPIN)}, 1")
        a("s_cbranch_scc1 L_go")
        a("s_nop 2")
        a("s_cbranch_vccnz L_again")
        a.label("L_go")
    else:
        publish()
        a(f"s_lshl_b32 {sr(S_T1)}, {sr(S_BH)}, 2")
        a(f"v_mov_b32 {vr(V_T0)}, {sr(S_T1)}")
        a(f"v_mov_b32 {vr(V_T1)}, 1")
        a("s_mov_b64 exec, 1")
        a("s_waitcnt vmcnt(0)")
        stamp(7)
        a(f"global_atomic_add {vr(V_T2)}, {vr(V_T0)}, {vr(V_T1)}, {sr(S_DBG,2)} sc0")
        a("s_waitcnt vmcnt(0)")
        a(f"v_readfirstlane_b32 {sr(S_T1)}, {vr(V_T2)}")
        a("s_mov_b64 exec, -1")
        a(f"s_cmp_lg_u32 {sr(S_T1)}, {NSPLIT-1}")
        a("s_cbranch_scc1 L_end")
        poll_loads()
        a("s_waitcnt vmcnt(0)")
    stamp(8)
    part = lambda s_: OWN if s_ == 0 else PB + 12 * (s_ - 1)
    merge(ACC, NSPLIT, lambda s_: part(s_) + 8, lambda s_: part(s_) + 9, part, lambda: None, lambda w: None)
    a(f"v_rcp_f32 {vr(ACC+9)}, {vr(ACC+9)}")
    a("s_nop 0")
    for e in range(8):
        a(f"v_mul_f32 {vr(ACC+e)}, {vr(ACC+e)}, {vr(ACC+9)}")
    for e in range(4):
        a(f"v_cvt_pk_bf16_f32 {vr(ACC+e)}, {vr(ACC+2*e)}, {vr(ACC+2*e+1)}")
    a(f"s_lshl_b32 {sr(S_T1)}, {sr(S_BH)}, 10")
    a(f"buffer_store_dwordx4 {vr(ACC,4)}, {vr(V_OFFV)}, {sr(SRD_OUT,4)}, {sr(S_T1)} offen {args.oflags}".rstrip())
    if args.stamps:
        a("s_waitcnt vmcnt(0)")
    stamp(9)
    a.label("L_end")
    dump_stamps()
    a.label("L_exit")
    a("s_endpgm")
    if HELP:
        a.label("L_helper")
        setup_rest(True)
        a(f"s_lshl_b32 {sr(S_T1)}, {sr(S_BH)}, 2")
        a(f"v_mov_b32 {vr(V_Q)}, {sr(S_T1)}")
        a(f"v_mov_b32 {vr(V_Q+1)}, 1")
        a(f"v_mov_b32 {vr(V_Q+3)}, 0")
        a("s_waitcnt vmcnt(0)")
        a("s_mov_b64 exec, 1")
        a(f"ds_add_rtn_u32 {vr(V_Q+2)}, {vr(V_Q+3)}, {vr(V_Q+1)} offset:{LDS_CNT}")
        a("s_waitcnt lgkmcnt(0)")
        a(f"v_readfirstlane_b32 {sr(S_ROLE)}, {vr(V_Q+2)}")
        a("s_nop 0")
        a(f"s_cmp_lg_u32 {sr(S_ROLE)}, {NARR-1}")
        a("s_cbranch_scc1 L_exit")
        a.c("(only if the marking was the last thing to complete) take the ticket and merge")
        a(f"global_atomic_add {vr(V_Q+2)}, {vr(V_Q)}, {vr(V_Q+1)}, {sr(S_DBG,2)} sc0")
        a("s_mov_b64 exec, -1")
        a("s_branch L_join")

    nvgpr = max(nvgpr, args.minv)
    accum = min(256, (nvgpr + 3) // 4 * 4)
    out = HEADER
    out += f"; @launch grid=({NWG},1,1) block=({NARR*64},1,1) lds={max(LDS_BYTES, args.minlds)}\n"
    out += '.amdgcn_target "amdgcn-amd-amdhsa--gfx950"\n.text\n'
    out += f".globl {NAME}\n.p2align 8\n.type {NAME},@function\n{NAME}:\n"
    out += a.text()
    out += f""".section .rodata,"a"
.p2align 6
.amdhsa_kernel {NAME}
  .amdhsa_next_free_vgpr {nvgpr}
  .amdhsa_next_free_sgpr {S_NEXT}
  .amdhsa_accum_offset {accum}
  .amdhsa_group_segment_fixed_size 0
  .amdhsa_kernarg_size 48
  .amdhsa_user_sgpr_count 2
  .amdhsa_user_sgpr_kernarg_segment_ptr 1
  .amdhsa_system_sgpr_workgroup_id_x 1
.end_amdhsa_kernel
"""
    return out


if __name__ == "__main__":
    ap = argparse.ArgumentParser()
    ap.add_argument("--nsplit", type=int, default=4)
    ap.add_argument("--nw", type=int, default=2)
    ap.add_argument("--nb", type=int, default=2)
    ap.add_argument("--d", type=int, default=10)
    ap.add_argument("--bf", type=float, default=2.0)
    ap.add_argument("--bd", type=int, default=16)
    ap.add_argument("--ppl", type=int, default=2, help="side items per load slot")
    ap.add_argument("--fold", type=int, default=1)
    ap.add_argument("--align", type=int, default=0)
    ap.add_argument("--spl", type=int, default=2, help="max steps per load slot")
    ap.add_argument("--proto", type=int, default=3)
    ap.add_argument("--flags", default="nt")
    ap.add_argument("--hflags", default="sc1")
    ap.add_argument("--oflags", default="")
    ap.add_argument("--tq", type=int, default=2)
    ap.add_argument("--rot", type=int, default=16)
    ap.add_argument("--rotsrc", default="lo3")
    ap.add_argument("--wgmap", type=int, default=4)
    ap.add_argument("--minv", type=int, default=0)
    ap.add_argument("--minlds", type=int, default=0)
    ap.add_argument("--stamps", type=int, default=0)
    ap.add_argument("-o", default="standalone__gqa_softmax__decode.s")
    args = ap.parse_args()
    open(args.o, "w").write(gen(args))
```

```python
import argparse
import math
import struct

HEADER = """; GQA decode attention (B=8, Hq=32, Hkv=8, Sk=8192, D=128), split-K flash decoding.
"""
NAME = "standalone__gqa_softmax__decode_kernel"


def f32bits(x):
    return struct.unpack("<I", struct.pack("<f", x))[0]


class Asm:
    def __init__(self):
        self.lines = []
        self.pos = 0
        self.count = True
        self.wr = {}

    def __call__(self, s):
        self.lines.append("    " + s)
        if self.count:
            self.pos += int(s.split()[1]) + 1 if s.startswith("s_nop") else 1

    def op(self, kind, text, writes, reads):
        need = 0
        for r in set(reads) | (set(writes) if kind != "mfma" else set()):
            if r not in self.wr:
                continue
            p_, k = self.wr[r]
            dist = self.pos - p_ - 1
            req = 0
            if k == "mfma":
                req = 8
            elif r in reads or kind == "dpp":
                if kind in ("dpp", "mfma"):
                    req = 2
                elif k == "trans" and kind != "trans":
                    req = 1
            need = max(need, req - dist)
        if need > 0:
            self(f"s_nop {need-1}")
        here = self.pos
        self(text)
        for r in writes:
            self.wr[r] = (here, "valu" if kind == "dpp" else kind)

    def label(self, l):
        self.lines.append(l + ":")

    def c(self, s):
        self.lines.append("    ; " + s)

    def text(self):
        return "\n".join(self.lines) + "\n"


def vr(a, n=1):
    return f"v{a}" if n == 1 else f"v[{a}:{a+n-1}]"


def sr(a, n=1):
    return f"s{a}" if n == 1 else f"s[{a}:{a+n-1}]"


def gen(args):
    NSPLIT = args.nsplit
    NW = args.nw
    NB = args.nb
    KPWG = 8192 // NSPLIT
    KPW = KPWG // NW
    NT = KPW // 32
    assert NT % 4 == 0
    NA = NT // 4
    NWG = 64 * NSPLIT
    flags = args.flags
    P2 = args.proto >= 2
    HELP = args.proto == 3
    NARR = NW + (1 if HELP else 0)
    SLOT = 4096
    LDS_O = 0
    LDS_ML = NW * 2048
    LDS_CNT = NW * 2048 + NW * 32
    LDS_S = LDS_CNT + 64 - LDS_CNT % 64 + 64
    LDS_S = (LDS_CNT + 16 + 1023) // 1024 * 1024
    LDS_BYTES = LDS_S + NW * (NA + 1) * 2048
    scale_log2e = (128 ** -0.5) * math.log2(math.e)

    a = Asm()
    S_Q, S_K, S_V, S_OUT, S_DBG, S_WS = 4, 6, 8, 10, 12, 14
    SRD_K, SRD_V, SRD_Q, SRD_WS, SRD_OUT = 16, 20, 24, 28, 32
    S_BH, S_SPLIT, S_WAVE, S_T0, S_T1 = 36, 37, 38, 39, 40
    S_OFFK, S_OFFV, S_SELLO, S_SELHI, S_C = 41, 42, 43, 44, 45
    S_MASK = 46
    S_SLOT = 54
    S_OTH = 55
    S_SPIN = S_OTH + NSPLIT - 1
    S_ROLE = S_SPIN + 1
    S_CNT = S_ROLE + 1
    S_NEXT = (S_CNT + 2) // 2 * 2
    S_ST = S_NEXT
    NSTAMP = 10
    if args.stamps:
        S_NEXT = S_ST + 2 * NSTAMP + 4

    def stamp(i, wait=False):
        if args.stamps:
            a(f"s_memrealtime {sr(S_ST+2*i,2)}")
            if wait:
                a("s_waitcnt lgkmcnt(0)")

    def dump_stamps():
        if not args.stamps:
            return
        SB = S_ST + 2 * NSTAMP
        a("s_waitcnt lgkmcnt(0)")
        a(f"s_mul_i32 {sr(SB+2)}, s2, {NARR}")
        a(f"s_add_u32 {sr(SB+2)}, {sr(SB+2)}, {sr(S_WAVE)}")
        a(f"s_lshl_b32 {sr(SB+2)}, {sr(SB+2)}, 7")
        a(f"s_add_u32 {sr(SB+2)}, {sr(SB+2)}, {16<<20}")
        a(f"s_add_u32 {sr(SB)}, {sr(S_WS)}, {sr(SB+2)}")
        a(f"s_addc_u32 {sr(SB+1)}, {sr(S_WS+1)}, 0")
        a("s_mov_b64 exec, 1")
        a("v_mov_b32 v4, 0")
        for i in range(NSTAMP):
            a(f"v_mov_b32 v6, {sr(S_ST+2*i)}")
            a(f"v_mov_b32 v7, {sr(S_ST+2*i+1)}")
            a(f"global_store_dwordx2 v4, v[6:7], {sr(SB,2)} offset:{8*i}")
            a("s_nop 1")
        a("s_getreg_b32 s3, hwreg(HW_REG_XCC_ID)")
        a("v_mov_b32 v6, s3")
        a("s_getreg_b32 s3, hwreg(HW_REG_HW_ID)")
        a("v_mov_b32 v7, s3")
        a(f"global_store_dwordx2 v4, v[6:7], {sr(SB,2)} offset:{8*NSTAMP}")

    V_OFFK, V_OFFV, V_T0, V_T1, V_T2, V_M, V_L = 1, 2, 3, 4, 5, 6, 7
    V_Q = 8
    V_P = 12
    V_PM = 16
    V_STG = 24
    V_DA = 88
    V_S = 120
    V_LW, V_LR = 128, 129
    V_BUF = 132
    V_END = V_BUF + NB * 32
    assert V_END <= 256, V_END
    nvgpr = V_END

    a(f"s_cmp_ge_u32 s2, {NWG}")
    a("s_cbranch_scc1 L_exit")
    if args.stamps:
        for i in range(NSTAMP):
            a(f"s_mov_b64 {sr(S_ST+2*i,2)}, 0")
    stamp(0)
    a(f"s_load_dwordx8 {sr(4,8)}, s[0:1], 0")
    a(f"s_load_dwordx4 {sr(12,4)}, s[0:1], 32")
    a(f"v_lshrrev_b32 {vr(V_T0)}, 6, v0")
    a(f"v_and_b32 {vr(V_OFFV)}, 63, v0")
    a(f"v_readfirstlane_b32 {sr(S_WAVE)}, {vr(V_T0)}")
    if args.wgmap == 0:
        a(f"s_and_b32 {sr(S_BH)}, s2, 63")
        a(f"s_lshr_b32 {sr(S_SPLIT)}, s2, 6")
    elif args.wgmap == 4:
        a(f"s_and_b32 {sr(S_BH)}, s2, 3")
        a(f"s_lshl_b32 {sr(S_BH)}, {sr(S_BH)}, 1")
        a(f"s_bfe_u32 {sr(S_T0)}, s2, 0x10003")
        a(f"s_or_b32 {sr(S_BH)}, {sr(S_BH)}, {sr(S_T0)}")
        a(f"s_lshr_b32 {sr(S_T0)}, s2, 1")
        a(f"s_and_b32 {sr(S_T0)}, {sr(S_T0)}, 0x18")
        a(f"s_or_b32 {sr(S_BH)}, {sr(S_BH)}, {sr(S_T0)}")
        a(f"s_lshl_b32 {sr(S_T0)}, s2, 3")
        a(f"s_and_b32 {sr(S_T0)}, {sr(S_T0)}, 0x20")
        a(f"s_or_b32 {sr(S_BH)}, {sr(S_BH)}, {sr(S_T0)}")
        a(f"s_lshr_b32 {sr(S_SPLIT)}, s2, 6")
    else:
        a(f"s_lshr_b32 {sr(S_BH)}, s2, {int(math.log2(NSPLIT))}")
        a(f"s_and_b32 {sr(S_SPLIT)}, s2, {NSPLIT-1}")
    a(f"v_and_b32 {vr(V_T0)}, 3, v0")
    a(f"v_bfe_u32 {vr(V_T1)}, v0, 2, 2")
    a(f"v_bfe_u32 {vr(V_T2)}, v0, 4, 2")
    a(f"v_lshlrev_b32 {vr(V_T2)}, 6, {vr(V_T2)}")
    a(f"v_lshl_add_u32 {vr(V_OFFK)}, {vr(V_T1)}, 8, {vr(V_T2)}")
    a(f"v_lshl_add_u32 {vr(V_OFFK)}, {vr(V_T0)}, 4, {vr(V_OFFK)}")
    a(f"v_lshl_add_u32 {vr(V_T2)}, {vr(V_T0)}, 8, {vr(V_T2)}")
    a(f"v_lshl_add_u32 {vr(V_T2)}, {vr(V_T1)}, 4, {vr(V_T2)}")
    a(f"v_lshlrev_b32 {vr(V_OFFV)}, 4, {vr(V_OFFV)}")
    a(f"s_lshl_b32 {sr(S_T0)}, {sr(S_BH)}, 21")
    a(f"s_mul_i32 {sr(S_T1)}, {sr(S_SPLIT)}, {KPWG*256}")
    a(f"s_add_u32 {sr(S_T0)}, {sr(S_T0)}, {sr(S_T1)}")
    tile_stride = 8192 * NW
    nrec = KPWG * 256
    a(f"s_lshl_b32 {sr(S_OFFK)}, {sr(S_WAVE)}, 13")
    if args.rot:
        if args.rotsrc == "hi5":
            a(f"s_lshr_b32 {sr(S_T1)}, s2, 3")
        elif args.rotsrc == "lo3":
            a(f"s_and_b32 {sr(S_T1)}, s2, 7")
        elif args.rotsrc == "split":
            a(f"s_lshr_b32 {sr(S_T1)}, s2, 6")
        a(f"s_mul_i32 {sr(S_T1)}, {sr(S_T1)}, {args.rot*1024}")
        a(f"s_add_u32 {sr(S_OFFK)}, {sr(S_OFFK)}, {sr(S_T1)}")
        a(f"s_and_b32 {sr(S_OFFK)}, {sr(S_OFFK)}, {nrec-1}")
    a(f"s_mov_b32 {sr(S_OFFV)}, {sr(S_OFFK)}")
    a(f"s_mov_b32 {sr(SRD_K+2)}, {nrec}")
    a(f"s_mov_b32 {sr(SRD_K+3)}, 0x20000")
    a(f"s_mov_b32 {sr(SRD_Q+2)}, 1024")
    a(f"s_mov_b32 {sr(SRD_Q+3)}, 0x20000")
    a(f"s_lshl_b32 {sr(S_T1)}, {sr(S_BH)}, 10")
    a("s_waitcnt lgkmcnt(0)")
    a(f"s_add_u32 {sr(SRD_K)}, {sr(S_K)}, {sr(S_T0)}")
    a(f"s_addc_u32 {sr(SRD_K+1)}, {sr(S_K+1)}, 0")
    a(f"s_add_u32 {sr(SRD_Q)}, {sr(S_Q)}, {sr(S_T1)}")
    a(f"s_addc_u32 {sr(SRD_Q+1)}, {sr(S_Q+1)}, 0")
    if HELP:
        a(f"s_cmp_eq_u32 {sr(S_WAVE)}, {NW}")
        a("s_cbranch_scc1 L_helper")

    ops = []
    loads = []
    state = dict(done=-1, paced=-1, allz=False)

    def issue(name, text, is_load=True):
        a(text)
        ops.append(name)
        if is_load:
            loads.append(name)
        state["allz"] = False

    def emit_wait(n):
        assert n <= 63
        a(f"s_waitcnt vmcnt({n})")
        state["done"] = max(state["done"], len(loads) - 1 - n)
        state["paced"] = max(state["paced"], len(ops) - 1 - n)
        if n == 0:
            state["allz"] = True

    def pace(name):
        k = ops.index(name)
        if k > state["paced"]:
            emit_wait(len(ops) - 1 - k)

    def wait_for(name):
        k = loads.index(name)
        if k > state["done"]:
            emit_wait(len(loads) - 1 - k)

    def is_done(name):
        return name in loads and loads.index(name) <= state["done"]

    NL = 2 * NT * 8

    def emit_load(i):
        t, j = i // 8, i % 8
        buf = V_BUF + (t % NB) * 32
        if t < NT:
            voff, srd, soff = V_OFFK, SRD_K, S_OFFK
        else:
            voff, srd, soff = V_OFFV, SRD_V, S_OFFV
        issue(f"L{i}", f"buffer_load_dwordx4 {vr(buf+4*j,4)}, {vr(voff)}, {sr(srd,4)}, {sr(soff)} offen offset:{1024*(j%4)} {flags}".rstrip())
        if j % 4 == 3:
            inc = 4096 if j == 3 else tile_stride - 4096
            a(f"s_add_u32 {sr(soff)}, {sr(soff)}, {inc}")
            if j == 7 and args.rot:
                a(f"s_and_b32 {sr(soff)}, {sr(soff)}, {nrec-1}")

    def depth(i):
        if i >= NL * args.bf:
            return args.bd
        return args.d

    def setup_rest(helper=False):
        stamp(1)
        a(f"s_add_u32 {sr(SRD_V)}, {sr(S_V)}, {sr(S_T0)}")
        a(f"s_addc_u32 {sr(SRD_V+1)}, {sr(S_V+1)}, 0")
        a(f"s_mov_b32 {sr(SRD_V+2)}, {nrec}")
        a(f"s_mov_b32 {sr(SRD_V+3)}, 0x20000")
        a(f"s_mov_b32 {sr(SRD_WS)}, {sr(S_WS)}")
        a(f"s_mov_b32 {sr(SRD_WS+1)}, {sr(S_WS+1)}")
        a(f"s_mov_b32 {sr(SRD_WS+2)}, {NWG*SLOT}")
        a(f"s_mov_b32 {sr(SRD_WS+3)}, 0x20000")
        a(f"s_mul_i32 {sr(S_SPIN)}, {sr(S_BH)}, {NSPLIT*SLOT}")
        a(f"s_mul_i32 {sr(S_SLOT)}, {sr(S_SPLIT)}, {SLOT}")
        a(f"s_add_u32 {sr(S_SLOT)}, {sr(S_SLOT)}, {sr(S_SPIN)}")
        if helper:
            a.c("mark this workgroup's partial slot as not yet written (all-ones words)")
            for i in range(4):
                a(f"v_mov_b32 {vr(V_P+i)}, -1")
            for i in range(3):
                a(f"buffer_store_dwordx4 {vr(V_P,4)}, {vr(V_OFFV)}, {sr(SRD_WS,4)}, {sr(S_SLOT)} offen offset:{1024*i} {args.hflags}")
            a(f"v_mov_b32 {vr(V_M)}, 0")
            a(f"ds_write_b32 {vr(V_M)}, {vr(V_M)} offset:{LDS_CNT}")
        if P2 and not HELP:
            a.c("mark this workgroup's partial slot as not yet written (all-ones words)")
            for i in range(4):
                a(f"v_mov_b32 {vr(V_P+i)}, -1")
            a(f"s_lshl_b32 {sr(S_T1)}, {sr(S_WAVE)}, 10")
            a(f"s_add_u32 {sr(S_T1)}, {sr(S_T1)}, {sr(S_SLOT)}")
            for i in range(4 // NW):
                issue(f"INV{i}", f"buffer_store_dwordx4 {vr(V_P,4)}, {vr(V_OFFV)}, {sr(SRD_WS,4)}, {sr(S_T1)} offen offset:{1024*NW*i} {args.hflags}", False)
            a(f"v_mov_b32 {vr(V_M)}, 0")
            a(f"ds_write_b32 {vr(V_M)}, {vr(V_M)} offset:{LDS_CNT}")
        if not helper:
            a(f"s_mul_i32 {sr(S_T1)}, {sr(S_WAVE)}, {(NA+1)*2048}")
            a(f"v_add_u32 {vr(V_LW)}, {sr(S_T1)}, {vr(V_OFFV)}")
            a(f"v_add_u32 {vr(V_LR)}, {sr(S_T1)}, {vr(V_OFFV)}")
            a(f"v_mov_b32 {vr(V_M)}, 0xff800000")
            a(f"v_mov_b32 {vr(V_L)}, 0")
        a(f"s_mov_b32 {sr(S_SELLO)}, 0x05040100")
        a(f"s_mov_b32 {sr(S_SELHI)}, 0x07060302")
        a(f"s_mov_b32 {sr(S_C)}, 0x{f32bits(scale_log2e):08x}")
        for b in range(4):
            m = 0x000F000F << (4 * b)
            a(f"s_mov_b32 {sr(S_MASK+2*b)}, 0x{m:08x}")
            a(f"s_mov_b32 {sr(S_MASK+2*b+1)}, 0x{m:08x}")
        for i in range(1, NSPLIT):
            a(f"s_add_u32 {sr(S_OTH+i-1)}, {sr(S_SPLIT)}, {i}")
            a(f"s_and_b32 {sr(S_OTH+i-1)}, {sr(S_OTH+i-1)}, {NSPLIT-1}")
            a(f"s_mul_i32 {sr(S_OTH+i-1)}, {sr(S_OTH+i-1)}, {SLOT}")
            a(f"s_add_u32 {sr(S_OTH+i-1)}, {sr(S_OTH+i-1)}, {sr(S_SPIN)}")
        a(f"s_mov_b32 {sr(SRD_OUT)}, {sr(S_OUT)}")
        a(f"s_mov_b32 {sr(SRD_OUT+1)}, {sr(S_OUT+1)}")
        a(f"s_mov_b32 {sr(SRD_OUT+2)}, {64*1024}")
        a(f"s_mov_b32 {sr(SRD_OUT+3)}, 0x20000")
        if P2:
            a("s_waitcnt lgkmcnt(0)")
            a("s_barrier")

    def dpp(b, r):
        n = (4 * (b - r)) % 16
        ctl = "quad_perm:[0,1,2,3]" if n == 0 else f"row_ror:{n}"
        return f"{ctl} row_mask:0xf bank_mask:0x{1<<b:x}"

    def allreduce(op, reg):
        a("s_nop 1")
        a(f"{op}_dpp {vr(reg)}, {vr(reg)}, {vr(reg)} row_ror:4 row_mask:0xf bank_mask:0xf")
        a("s_nop 1")
        a(f"{op}_dpp {vr(reg)}, {vr(reg)}, {vr(reg)} row_ror:8 row_mask:0xf bank_mask:0xf")
        a(f"v_mov_b32 {vr(V_T0)}, {vr(reg)}")
        a("s_nop 1")
        a(f"v_permlane32_swap_b32 {vr(V_T0)}, {vr(reg)}")
        a("s_nop 1")
        a(f"{op} {vr(reg)}, {vr(V_T0)}, {vr(reg)}")
        a(f"v_mov_b32 {vr(V_T0)}, {vr(reg)}")
        a("s_nop 1")
        a(f"v_permlane16_swap_b32 {vr(V_T0)}, {vr(reg)}")
        a("s_nop 1")
        a(f"{op} {vr(reg)}, {vr(V_T0)}, {vr(reg)}")

    NK = NT * 8
    R4 = lambda b_: list(range(b_, b_ + 4))

    def lbuf(j):
        return V_BUF + ((j // 8) % NB) * 32 + 4 * (j % 8)

    def k_dpp(j, r):
        T, i = j // 8, j % 8
        A, b = T // 4, T % 4
        s_ = V_S + i
        d = V_DA + 4 * i + r
        if r == 0:
            a.op("dpp", f"v_mov_b32_dpp {vr(s_)}, {vr(d)} {dpp(b, 0)}", [s_], [d])
        else:
            a.op("dpp", f"v_add_f32_dpp {vr(s_)}, {vr(d)}, {vr(s_)} {dpp(b, r)}", [s_], [d, s_])

    def v_perms(j, z):
        T, p_ = (j - NK) // 8, (j % 8) // 2
        stg = V_STG + 32 * (T % 2)
        for q in range(4):
            lo, hi = lbuf(j - 1) + q, lbuf(j) + q
            d = stg + 8 * q + 4 * z + p_
            a.op("valu", f"v_perm_b32 {vr(d)}, {vr(hi)}, {vr(lo)}, {sr(S_SELHI if z else S_SELLO)}", [d], [lo, hi])

    def step(j):
        if j < NK:
            if j == 0:
                stamp(2)
            d = V_DA + 4 * (j % 8)
            a.op("mfma", f"v_mfma_f32_16x16x32_bf16 {vr(d,4)}, {vr(lbuf(j),4)}, {vr(V_Q,4)}, 0", R4(d), [])
        for r in range(4):
            jj = j - 2 - r
            if 0 <= jj < NK:
                k_dpp(jj, r)
        jj = j - 6
        if 0 <= jj < NK and (jj // 8) % 4 == 3:
            s_ = V_S + jj % 8
            a.op("valu", f"v_max_f32 {vr(V_M)}, {vr(V_M)}, {vr(s_)}", [V_M], [V_M, s_])
            if jj % 4 == 3:
                h = (jj % 8) // 4
                a(f"ds_write_b128 {vr(V_LW)}, {vr(V_S+4*h,4)} offset:{LDS_S+1024*h}")
                if h == 1:
                    a(f"v_add_u32 {vr(V_LW)}, 2048, {vr(V_LW)}")
        if NK <= j < NL and j % 2 == 1:
            v_perms(j, 0)
        if NK <= j - 1 < NL and (j - 1) % 2 == 1:
            v_perms(j - 1, 1)

    fifo = []

    def allreduce_items(op, reg, earliest):
        def f1():
            a.op("dpp", f"{op}_dpp {vr(reg)}, {vr(reg)}, {vr(reg)} row_ror:4 row_mask:0xf bank_mask:0xf", [reg], [reg])
        def f2():
            a.op("dpp", f"{op}_dpp {vr(reg)}, {vr(reg)}, {vr(reg)} row_ror:8 row_mask:0xf bank_mask:0xf", [reg], [reg])
            a.op("valu", f"v_mov_b32 {vr(V_T0)}, {vr(reg)}", [V_T0], [reg])
        def f3():
            a.op("dpp", f"v_permlane32_swap_b32 {vr(V_T0)}, {vr(reg)}", [V_T0, reg], [V_T0, reg])
            a("s_nop 0")
            a.op("valu", f"{op} {vr(reg)}, {vr(V_T0)}, {vr(reg)}", [reg], [V_T0, reg])
            a.op("valu", f"v_mov_b32 {vr(V_T0)}, {vr(reg)}", [V_T0], [reg])
        def f4():
            a.op("dpp", f"v_permlane16_swap_b32 {vr(V_T0)}, {vr(reg)}", [V_T0, reg], [V_T0, reg])
            a("s_nop 0")
            a.op("valu", f"{op} {vr(reg)}, {vr(V_T0)}, {vr(reg)}", [reg], [V_T0, reg])
        for f in (f1, f2, f3, f4):
            fifo.append((earliest, None, f))

    pre0 = None
    fifo.append((NK + 5, None, lambda: (stamp(3), pre0())))
    allreduce_items("v_max_f32", V_M, NK + 5)

    def mscale():
        a.op("valu", f"v_mul_f32 {vr(V_M)}, {sr(S_C)}, {vr(V_M)}", [V_M], [V_M])
        stamp(4)
    fifo.append((NK + 5, None, mscale))

    def ex_items(A):
        s_ = V_S
        def rd():
            a(f"ds_read_b128 {vr(V_S,4)}, {vr(V_LR)} offset:{LDS_S}")
            a(f"ds_read_b128 {vr(V_S+4,4)}, {vr(V_LR)} offset:{LDS_S+1024}")
            a(f"v_add_u32 {vr(V_LR)}, 2048, {vr(V_LR)}")
        def fm(lo):
            def f():
                if lo == 0:
                    a("s_waitcnt lgkmcnt(0)")
                for i in range(lo, lo + 4):
                    a.op("valu", f"v_fma_f32 {vr(s_+i)}, {vr(s_+i)}, {sr(S_C)}, -{vr(V_M)}", [s_ + i], [s_ + i, V_M])
            return f
        def ex(lo):
            def f():
                for i in range(lo, lo + 2):
                    a.op("trans", f"v_exp_f32 {vr(s_+i)}, {vr(s_+i)}", [s_ + i], [s_ + i])
            return f
        def cv():
            for i in range(4):
                a.op("valu", f"v_cvt_pk_bf16_f32 {vr(V_P+i)}, {vr(s_+2*i)}, {vr(s_+2*i+1)}", [V_P + i], [s_ + 2 * i, s_ + 2 * i + 1])
        def add(d, x, y):
            a.op("valu", f"v_add_f32 {vr(d)}, {vr(x)}, {vr(y)}", [d], [x, y])
        def s1():
            for i in range(0, 8, 2):
                add(s_ + i, s_ + i, s_ + i + 1)
        def s2():
            add(s_, s_, s_ + 2)
            add(s_ + 4, s_ + 4, s_ + 6)
            add(s_, s_, s_ + 4)
            add(V_L, V_L, s_)
        return [fm(0), fm(4), ex(0), ex(2), ex(4), ex(6)], [cv], [s1, s2], rd

    def mask_item(T):
        def f():
            PM = V_PM + 4 * (T % 2)
            for i in range(4):
                a.op("valu", f"v_cndmask_b32 {vr(PM+i)}, 0, {vr(V_P+i)}, {sr(S_MASK+2*(T%4),2)}", [PM + i], [V_P + i])
        return f

    def pv_item(T, dd):
        def f():
            PM = V_PM + 4 * (T % 2)
            bq = V_STG + 32 * (T % 2) + 4 * dd
            d = V_DA + 4 * dd
            if T == 0:
                pass
            a.op("mfma", f"v_mfma_f32_16x16x32_bf16 {vr(d,4)}, {vr(PM,4)}, {vr(bq,4)}, {'0' if T == 0 else vr(d,4)}", R4(d), R4(PM) + R4(bq))
        return f

    def ticket_prep():
        a(f"s_lshl_b32 {sr(S_T1)}, {sr(S_BH)}, 2")
        a(f"v_mov_b32 {vr(V_Q)}, {sr(S_T1)}")
        a(f"v_mov_b32 {vr(V_Q+1)}, 1")
        a(f"v_mov_b32 {vr(V_Q+3)}, 0")

    pre, cvt, post, pre0 = ex_items(0)
    rd = pre0
    for f in pre + cvt:
        fifo.append((0, None, f))
    fifo.append((0, None, mask_item(0)))
    for T in range(NT):
        A, b = T // 4, T % 4
        base = NK + 8 * T
        lastg = A == NA - 1
        side = []
        if b == 0:
            side += post + [rd]
        if b == 1:
            side += pre[:3]
        if b == 2:
            if lastg:
                side.append("LRED")
            else:
                side += pre[3:]
        if T + 1 < NT:
            if b == 3:
                side += cvt
            side = side + [mask_item(T + 1)] if b == 3 else [mask_item(T + 1)] + side
        if T == NT - 2 and P2:
            side.append(ticket_prep)
        if T < NT - 1:
            order = [0, 2, 4, 6, 1, 3, 5, 7]
            for dd in order:
                fifo.append((base + 7 + (dd % 2), base + 17, pv_item(T, dd)))
        for f in side:
            if f == "LRED":
                allreduce_items("v_add_f32", V_L, 0)
            else:
                fifo.append((0, None, f))

    issue("Q", f"buffer_load_dwordx4 {vr(V_Q,4)}, {vr(V_T2)}, {sr(SRD_Q,4)}, 0 offen")
    st = dict(nstep=0, fi=0)

    def run_step():
        j = st["nstep"]
        last_due = max([k for k in range(st["fi"], len(fifo)) if fifo[k][1] is not None and fifo[k][1] <= j], default=-1)
        while st["fi"] <= last_due:
            assert fifo[st["fi"]][0] < j
            fifo[st["fi"]][2]()
            st["fi"] += 1
        step(j)
        st["nstep"] += 1

    def run_fifo(n):
        for _ in range(n):
            if st["fi"] < len(fifo) and fifo[st["fi"]][0] < st["nstep"]:
                fifo[st["fi"]][2]()
                st["fi"] += 1

    did_setup = False
    RING = 8 * NB
    marks = []
    for i in range(NL):
        need = i - depth(i)
        if need >= 0 and not did_setup:
            setup_rest()
            did_setup = True
        marks.append(len(a.lines))
        if need >= 0:
            pace(f"L{need}")
        if i >= RING:
            old = i - RING
            must = old if old < NK else (old | 1) + 1
            while st["nstep"] <= must:
                wait_for(f"L{min(st['nstep'], i-1)}")
                run_step()
        emit_load(i)
        ran = 0
        while did_setup and ran < args.spl and st["nstep"] < NL and is_done(f"L{st['nstep']}"):
            run_step()
            ran += 1
        run_fifo(args.ppl)
    marks.append(len(a.lines))
    if args.fold:
        chunks = [a.lines[marks[i]:marks[i + 1]] for i in range(NL)]
        head = a.lines[:marks[0]]
        outl = list(head)
        i = 0
        nloop = 0
        while i < NL:
            e = i
            while e + 32 < NL and chunks[e] == chunks[e + 32]:
                e += 1
            if e - i >= 32:
                total = e + 32 - i
                full, part = divmod(total, 32)
                outl.append(f"    s_mov_b32 {sr(S_CNT)}, {full if part else full - 1}")
                if args.align:
                    outl.append(f"    .p2align {args.align}")
                outl.append(f"L_loop{nloop}:")
                for k in range(32):
                    if part and k == part:
                        outl.append(f"    s_sub_u32 {sr(S_CNT)}, {sr(S_CNT)}, 1")
                        outl.append(f"    s_cbranch_scc1 L_exit{nloop}")
                    outl += chunks[i + k]
                if part:
                    outl.append(f"    s_branch L_loop{nloop}")
                else:
                    outl.append(f"    s_sub_u32 {sr(S_CNT)}, {sr(S_CNT)}, 1")
                    outl.append(f"    s_cbranch_scc0 L_loop{nloop}")
                outl.append(f"L_exit{nloop}:")
                print(f"loop {nloop}: slots [{i}, {i+total}) = {full} x 32 + {part}")
                nloop += 1
                i += total
            else:
                outl += chunks[i]
                i += 1
        a.lines = outl
    while st["nstep"] < NL - 1:
        wait_for(f"L{st['nstep']}")
        run_step()
        run_fifo(args.ppl + 1)
    run_fifo(1000)
    assert st["fi"] == len(fifo), (st, len(fifo))
    wait_for(f"L{NL-1}")
    assert state["allz"]
    if P2:
        a.c("every load (and the slot marking) of this wave is complete: count it")
        a("s_mov_b64 exec, 1")
        a(f"ds_add_rtn_u32 {vr(V_Q+2)}, {vr(V_Q+3)}, {vr(V_Q+1)} offset:{LDS_CNT}")
        a("s_mov_b64 exec, -1")
    run_step()
    run_step()
    for n, dd in enumerate([0, 2, 4, 6, 1, 3, 5, 7]):
        pv_item(NT - 1, dd)()
        if n == args.tq and P2:
            a.c("the last wave of the workgroup to finish its loads takes the ticket and merges")
            a("s_waitcnt lgkmcnt(0)")
            a(f"v_readfirstlane_b32 {sr(S_ROLE)}, {vr(V_Q+2)}")
            a("s_nop 0")
            a(f"s_cmp_lg_u32 {sr(S_ROLE)}, {NARR-1}")
            a("s_cbranch_scc1 L_noticket")
            a.count = False
            a("s_mov_b64 exec, 1")
            a(f"global_atomic_add {vr(V_Q+2)}, {vr(V_Q)}, {vr(V_Q+1)}, {sr(S_DBG,2)} sc0")
            a("s_mov_b64 exec, -1")
            a.count = True
            a.label("L_noticket")

    stamp(5)
    G = V_BUF
    a(f"s_lshl_b32 {sr(S_T0)}, {sr(S_WAVE)}, 11")
    a(f"v_add_u32 {vr(V_T0)}, {sr(S_T0)}, {vr(V_OFFV)}")
    a(f"s_lshl_b32 {sr(S_T1)}, {sr(S_WAVE)}, 5")
    a(f"v_and_b32 {vr(V_T1)}, 3, v0")
    a(f"v_lshlrev_b32 {vr(V_T1)}, 3, {vr(V_T1)}")
    a(f"v_add_u32 {vr(V_T1)}, {sr(S_T1)}, {vr(V_T1)}")
    a(f"ds_write_b64 {vr(V_T1)}, {vr(V_M,2)} offset:{LDS_ML}")
    a("s_nop 1")
    for dd in range(8):
        d = V_DA + 4 * dd
        a(f"v_permlane32_swap_b32 {vr(d)}, {vr(d+2)}")
        a(f"v_permlane32_swap_b32 {vr(d+1)}, {vr(d+3)}")
    for dd in range(8):
        d = V_DA + 4 * dd
        a(f"v_add_f32 {vr(d)}, {vr(d)}, {vr(d+2)}")
        a(f"v_add_f32 {vr(d+1)}, {vr(d+1)}, {vr(d+3)}")
    for dd in range(8):
        d = V_DA + 4 * dd
        a(f"v_permlane16_swap_b32 {vr(d)}, {vr(d+1)}")
    for dd in range(8):
        d = V_DA + 4 * dd
        a(f"v_add_f32 {vr(G+dd)}, {vr(d)}, {vr(d+1)}")
    a(f"ds_write_b128 {vr(V_T0)}, {vr(G,4)} offset:{LDS_O}")
    a(f"ds_write_b128 {vr(V_T0)}, {vr(G+4,4)} offset:{LDS_O+1024}")
    a("s_waitcnt lgkmcnt(0)")
    a.label("L_join")
    a("s_barrier")
    stamp(6, True)
    if P2:
        a(f"s_cmp_lg_u32 {sr(S_ROLE)}, {NARR-1}")
    else:
        a(f"s_cmp_lg_u32 {sr(S_WAVE)}, 0")
    a("s_cbranch_scc1 L_end")
    ML = G
    OB = G + 2 * NW + (4 - (2 * NW) % 4) % 4
    PB = OB + NW * 8
    ACC = V_DA
    OWN = V_DA + 12
    assert PB + (NSPLIT - 1) * 12 <= V_END
    a(f"v_bfe_u32 {vr(V_T1)}, v0, 4, 2")
    a(f"v_lshlrev_b32 {vr(V_T1)}, 3, {vr(V_T1)}")
    for w in range(NW):
        a(f"ds_read_b64 {vr(ML+2*w,2)}, {vr(V_T1)} offset:{LDS_ML+32*w}")
    for w in range(NW):
        a(f"ds_read_b128 {vr(OB+8*w,4)}, {vr(V_OFFV)} offset:{LDS_O+2048*w}")
        a(f"ds_read_b128 {vr(OB+8*w+4,4)}, {vr(V_OFFV)} offset:{LDS_O+2048*w+1024}")

    def poll_loads():
        for s_ in range(NSPLIT - 1):
            a(f"buffer_load_dwordx4 {vr(PB+12*s_+8,4)}, {vr(V_OFFV)}, {sr(SRD_WS,4)}, {sr(S_OTH+s_)} offen offset:2048 {args.hflags}")
            a(f"buffer_load_dwordx4 {vr(PB+12*s_,4)}, {vr(V_OFFV)}, {sr(SRD_WS,4)}, {sr(S_OTH+s_)} offen {args.hflags}")
            a(f"buffer_load_dwordx4 {vr(PB+12*s_+4,4)}, {vr(V_OFFV)}, {sr(SRD_WS,4)}, {sr(S_OTH+s_)} offen offset:1024 {args.hflags}")

    def publish():
        for i in range(3):
            a(f"buffer_store_dwordx4 {vr(OWN+4*i,4)}, {vr(V_OFFV)}, {sr(SRD_WS,4)}, {sr(S_SLOT)} offen offset:{1024*i} {args.hflags}")

    def merge(dst, nparts, mreg, lreg, oreg, first_wait, per_part_wait):
        first_wait()
        M = dst + 8
        L = dst + 9
        a(f"v_max_f32 {vr(M)}, {vr(mreg(0))}, {vr(mreg(1))}")
        for w in range(2, nparts):
            a(f"v_max_f32 {vr(M)}, {vr(M)}, {vr(mreg(w))}")
        for w in range(nparts):
            a(f"v_sub_f32 {vr(mreg(w))}, {vr(mreg(w))}, {vr(M)}")
        for w in range(nparts):
            a(f"v_exp_f32 {vr(mreg(w))}, {vr(mreg(w))}")
        a("s_nop 0")
        a(f"v_mul_f32 {vr(L)}, {vr(mreg(0))}, {vr(lreg(0))}")
        for w in range(1, nparts):
            a(f"v_fmac_f32 {vr(L)}, {vr(mreg(w))}, {vr(lreg(w))}")
        for w in range(nparts):
            per_part_wait(w)
            for e in range(8):
                if w == 0:
                    a(f"v_mul_f32 {vr(dst+e)}, {vr(mreg(0))}, {vr(oreg(0)+e)}")
                else:
                    a(f"v_fmac_f32 {vr(dst+e)}, {vr(mreg(w))}, {vr(oreg(w)+e)}")

    merge(OWN, NW, lambda w: ML + 2 * w, lambda w: ML + 2 * w + 1, lambda w: OB + 8 * w,
          lambda: a(f"s_waitcnt lgkmcnt({min(15, 2*NW)})"),
          lambda w: a(f"s_waitcnt lgkmcnt({min(15, 2*(NW-1-w))})"))
    if P2:
        a(f"s_mov_b32 {sr(S_SPIN)}, 0x100000")
        for e in range(10):
            a(f"v_min_u32 {vr(OWN+e)}, 0xfffffffe, {vr(OWN+e)}")
        a("s_waitcnt vmcnt(0)")
        a(f"v_readfirstlane_b32 {sr(S_T1)}, {vr(V_Q+2)}")
        stamp(7, True)
        a(f"s_cmp_eq_u32 {sr(S_T1)}, {NSPLIT-1}")
        a("s_cbranch_scc1 L_again")
        a.c("publish the partial; no word equals the all-ones marker")
        publish()
        a("s_branch L_end")
        a.label("L_again")
        poll_loads()
        a("s_waitcnt vmcnt(0)")
        regs = [PB + 12 * s_ + e for s_ in range(NSPLIT - 1) for e in range(10)]
        a(f"v_max3_u32 {vr(V_T0)}, {vr(regs[0])}, {vr(regs[1])}, {vr(regs[2])}")
        a(f"v_max3_u32 {vr(V_T1)}, {vr(regs[3])}, {vr(regs[4])}, {vr(regs[5])}")
        rest = regs[6:]
        k = 0
        while rest:
            t = V_T0 if k % 2 == 0 else V_T1
            if len(rest) >= 2:
                a(f"v_max3_u32 {vr(t)}, {vr(t)}, {vr(rest[0])}, {vr(rest[1])}")
                rest = rest[2:]
            else:
                a(f"v_max_u32 {vr(t)}, {vr(t)}, {vr(rest[0])}")
                rest = rest[1:]
            k += 1
        a(f"v_max_u32 {vr(V_T0)}, {vr(V_T0)}, {vr(V_T1)}")
        a(f"v_cmp_eq_u32 vcc, -1, {vr(V_T0)}")
        a(f"s_sub_u32 {sr(S_SPIN)}, {sr(S_SPIN)}, 1")
        a("s_cbranch_scc1 L_go")
        a("s_nop 2")
        a("s_cbranch_vccnz L_again")
        a.label("L_go")
    else:
        publish()
        a(f"s_lshl_b32 {sr(S_T1)}, {sr(S_BH)}, 2")
        a(f"v_mov_b32 {vr(V_T0)}, {sr(S_T1)}")
        a(f"v_mov_b32 {vr(V_T1)}, 1")
        a("s_mov_b64 exec, 1")
        a("s_waitcnt vmcnt(0)")
        stamp(7)
        a(f"global_atomic_add {vr(V_T2)}, {vr(V_T0)}, {vr(V_T1)}, {sr(S_DBG,2)} sc0")
        a("s_waitcnt vmcnt(0)")
        a(f"v_readfirstlane_b32 {sr(S_T1)}, {vr(V_T2)}")
        a("s_mov_b64 exec, -1")
        a(f"s_cmp_lg_u32 {sr(S_T1)}, {NSPLIT-1}")
        a("s_cbranch_scc1 L_end")
        poll_loads()
        a("s_waitcnt vmcnt(0)")
    stamp(8)
    part = lambda s_: OWN if s_ == 0 else PB + 12 * (s_ - 1)
    merge(ACC, NSPLIT, lambda s_: part(s_) + 8, lambda s_: part(s_) + 9, part, lambda: None, lambda w: None)
    a(f"v_rcp_f32 {vr(ACC+9)}, {vr(ACC+9)}")
    a("s_nop 0")
    for e in range(8):
        a(f"v_mul_f32 {vr(ACC+e)}, {vr(ACC+e)}, {vr(ACC+9)}")
    for e in range(4):
        a(f"v_cvt_pk_bf16_f32 {vr(ACC+e)}, {vr(ACC+2*e)}, {vr(ACC+2*e+1)}")
    a(f"s_lshl_b32 {sr(S_T1)}, {sr(S_BH)}, 10")
    a(f"buffer_store_dwordx4 {vr(ACC,4)}, {vr(V_OFFV)}, {sr(SRD_OUT,4)}, {sr(S_T1)} offen {args.oflags}".rstrip())
    if args.stamps:
        a("s_waitcnt vmcnt(0)")
    stamp(9)
    a.label("L_end")
    dump_stamps()
    a.label("L_exit")
    a("s_endpgm")
    if HELP:
        a.label("L_helper")
        setup_rest(True)
        a(f"s_lshl_b32 {sr(S_T1)}, {sr(S_BH)}, 2")
        a(f"v_mov_b32 {vr(V_Q)}, {sr(S_T1)}")
        a(f"v_mov_b32 {vr(V_Q+1)}, 1")
        a(f"v_mov_b32 {vr(V_Q+3)}, 0")
        if args.touch:
            a.c("touch the pages needed later (V range, output, counters) so their translations are cached")
            a("s_mov_b64 exec, 1")
            a(f"buffer_load_dword {vr(V_PM)}, {vr(V_Q+3)}, {sr(SRD_V,4)}, 0 offen nt")
            a(f"buffer_load_dword {vr(V_PM+1)}, {vr(V_Q+3)}, {sr(SRD_OUT,4)}, 0 offen nt")
            a(f"global_load_dword {vr(V_PM+2)}, {vr(V_Q)}, {sr(S_DBG,2)} sc1")
        a("s_waitcnt vmcnt(0)")
        a("s_mov_b64 exec, 1")
        a(f"ds_add_rtn_u32 {vr(V_Q+2)}, {vr(V_Q+3)}, {vr(V_Q+1)} offset:{LDS_CNT}")
        a("s_waitcnt lgkmcnt(0)")
        a(f"v_readfirstlane_b32 {sr(S_ROLE)}, {vr(V_Q+2)}")
        a("s_nop 0")
        a(f"s_cmp_lg_u32 {sr(S_ROLE)}, {NARR-1}")
        a("s_cbranch_scc1 L_exit")
        a.c("(only if the marking was the last thing to complete) take the ticket and merge")
        a(f"global_atomic_add {vr(V_Q+2)}, {vr(V_Q)}, {vr(V_Q+1)}, {sr(S_DBG,2)} sc0")
        a("s_mov_b64 exec, -1")
        a("s_branch L_join")

    nvgpr = max(nvgpr, args.minv)
    accum = min(256, (nvgpr + 3) // 4 * 4)
    out = HEADER
    out += f"; @launch grid=({NWG},1,1) block=({NARR*64},1,1) lds={max(LDS_BYTES, args.minlds)}\n"
    out += '.amdgcn_target "amdgcn-amd-amdhsa--gfx950"\n.text\n'
    out += f".globl {NAME}\n.p2align 8\n.type {NAME},@function\n{NAME}:\n"
    out += a.text()
    out += f""".section .rodata,"a"
.p2align 6
.amdhsa_kernel {NAME}
  .amdhsa_next_free_vgpr {nvgpr}
  .amdhsa_next_free_sgpr {S_NEXT}
  .amdhsa_accum_offset {accum}
  .amdhsa_group_segment_fixed_size 0
  .amdhsa_kernarg_size 48
  .amdhsa_user_sgpr_count 2
  .amdhsa_user_sgpr_kernarg_segment_ptr 1
  .amdhsa_system_sgpr_workgroup_id_x 1
.end_amdhsa_kernel
"""
    return out


if __name__ == "__main__":
    ap = argparse.ArgumentParser()
    ap.add_argument("--nsplit", type=int, default=4)
    ap.add_argument("--nw", type=int, default=2)
    ap.add_argument("--nb", type=int, default=2)
    ap.add_argument("--d", type=int, default=11)
    ap.add_argument("--bf", type=float, default=2.0)
    ap.add_argument("--bd", type=int, default=16)
    ap.add_argument("--ppl", type=int, default=2, help="side items per load slot")
    ap.add_argument("--fold", type=int, default=1)
    ap.add_argument("--align", type=int, default=0)
    ap.add_argument("--touch", type=int, default=0)
    ap.add_argument("--spl", type=int, default=2, help="max steps per load slot")
    ap.add_argument("--proto", type=int, default=3)
    ap.add_argument("--flags", default="nt")
    ap.add_argument("--hflags", default="sc1")
    ap.add_argument("--oflags", default="")
    ap.add_argument("--tq", type=int, default=2)
    ap.add_argument("--rot", type=int, default=16)
    ap.add_argument("--rotsrc", default="lo3")
    ap.add_argument("--wgmap", type=int, default=4)
    ap.add_argument("--minv", type=int, default=0)
    ap.add_argument("--minlds", type=int, default=0)
    ap.add_argument("--stamps", type=int, default=0)
    ap.add_argument("-o", default="standalone__gqa_softmax__decode.s")
    args = ap.parse_args()
    open(args.o, "w").write(gen(args))
```

```python
import argparse
import math
import struct

HEADER = """; GQA decode attention (B=8, Hq=32, Hkv=8, Sk=8192, D=128), split-K flash decoding.
"""
NAME = "standalone__gqa_softmax__decode_kernel"


def f32bits(x):
    return struct.unpack("<I", struct.pack("<f", x))[0]


class Asm:
    def __init__(self):
        self.lines = []
        self.pos = 0
        self.count = True
        self.wr = {}

    def __call__(self, s):
        self.lines.append("    " + s)
        if self.count:
            self.pos += int(s.split()[1]) + 1 if s.startswith("s_nop") else 1

    def op(self, kind, text, writes, reads):
        need = 0
        for r in set(reads) | (set(writes) if kind != "mfma" else set()):
            if r not in self.wr:
                continue
            p_, k = self.wr[r]
            dist = self.pos - p_ - 1
            req = 0
            if k == "mfma":
                req = 8
            elif r in reads or kind == "dpp":
                if kind in ("dpp", "mfma"):
                    req = 2
                elif k == "trans" and kind != "trans":
                    req = 1
            need = max(need, req - dist)
        if need > 0:
            self(f"s_nop {need-1}")
        here = self.pos
        self(text)
        for r in writes:
            self.wr[r] = (here, "valu" if kind == "dpp" else kind)

    def label(self, l):
        self.lines.append(l + ":")

    def c(self, s):
        self.lines.append("    ; " + s)

    def text(self):
        return "\n".join(self.lines) + "\n"


def vr(a, n=1):
    return f"v{a}" if n == 1 else f"v[{a}:{a+n-1}]"


def sr(a, n=1):
    return f"s{a}" if n == 1 else f"s[{a}:{a+n-1}]"


def gen(args):
    NSPLIT = args.nsplit
    NW = args.nw
    NB = args.nb
    KPWG = 8192 // NSPLIT
    KPW = KPWG // NW
    NT = KPW // 32
    assert NT % 4 == 0
    NA = NT // 4
    NWG = 64 * NSPLIT
    flags = args.flags
    P2 = args.proto >= 2
    HELP = args.proto == 3
    NARR = NW + (1 if HELP else 0)
    SLOT = 4096
    LDS_O = 0
    LDS_ML = NW * 2048
    LDS_CNT = NW * 2048 + NW * 32
    LDS_S = LDS_CNT + 64 - LDS_CNT % 64 + 64
    LDS_S = (LDS_CNT + 16 + 1023) // 1024 * 1024
    LDS_BYTES = LDS_S + NW * (NA + 1) * 2048
    scale_log2e = (128 ** -0.5) * math.log2(math.e)

    a = Asm()
    S_Q, S_K, S_V, S_OUT, S_DBG, S_WS = 4, 6, 8, 10, 12, 14
    SRD_K, SRD_V, SRD_Q, SRD_WS, SRD_OUT = 16, 20, 24, 28, 32
    S_BH, S_SPLIT, S_WAVE, S_T0, S_T1 = 36, 37, 38, 39, 40
    S_OFFK, S_OFFV, S_SELLO, S_SELHI, S_C = 41, 42, 43, 44, 45
    S_MASK = 46
    S_SLOT = 54
    S_OTH = 55
    S_SPIN = S_OTH + NSPLIT - 1
    S_ROLE = S_SPIN + 1
    S_CNT = S_ROLE + 1
    S_NEXT = (S_CNT + 2) // 2 * 2
    S_ST = S_NEXT
    NSTAMP = 10
    if args.stamps:
        S_NEXT = S_ST + 2 * NSTAMP + 4

    def stamp(i, wait=False):
        if args.stamps:
            a(f"s_memrealtime {sr(S_ST+2*i,2)}")
            if wait:
                a("s_waitcnt lgkmcnt(0)")

    def dump_stamps():
        if not args.stamps:
            return
        SB = S_ST + 2 * NSTAMP
        a("s_waitcnt lgkmcnt(0)")
        if args.padx:
            sa, sb, amp, wg = (int(x) for x in args.padx.split(","))
            if wg >= 0:
                a(f"s_cmp_lg_u32 s2, {wg}")
                a("s_cbranch_scc1 L_exit")
            a(f"s_cmp_eq_u32 {sr(S_ST+2*sb)}, 0")
            a("s_cbranch_scc1 L_exit")
            a(f"s_sub_u32 {sr(SB)}, {sr(S_ST+2*sb)}, {sr(S_ST+2*sa)}")
            a(f"s_min_u32 {sr(SB)}, {sr(SB)}, 5000")
            a(f"s_mul_i32 {sr(SB)}, {sr(SB)}, {amp}")
            a(f"s_add_u32 {sr(SB)}, {sr(SB)}, 6000")
            a(f"s_add_u32 {sr(SB)}, {sr(SB)}, {sr(S_ST)}")
            a.label("L_spin")
            a(f"s_memrealtime {sr(SB+2,2)}")
            a("s_waitcnt lgkmcnt(0)")
            a(f"s_sub_u32 {sr(SB+1)}, {sr(SB+2)}, {sr(SB)}")
            a(f"s_cmp_lt_i32 {sr(SB+1)}, 0")
            a("s_cbranch_scc1 L_spin")
            return
        a(f"s_mul_i32 {sr(SB+2)}, s2, {NARR}")
        a(f"s_add_u32 {sr(SB+2)}, {sr(SB+2)}, {sr(S_WAVE)}")
        a(f"s_lshl_b32 {sr(SB+2)}, {sr(SB+2)}, 7")
        a(f"s_add_u32 {sr(SB+2)}, {sr(SB+2)}, {16<<20}")
        a(f"s_add_u32 {sr(SB)}, {sr(S_WS)}, {sr(SB+2)}")
        a(f"s_addc_u32 {sr(SB+1)}, {sr(S_WS+1)}, 0")
        a("s_mov_b64 exec, 1")
        a("v_mov_b32 v4, 0")
        for i in range(NSTAMP):
            a(f"v_mov_b32 v6, {sr(S_ST+2*i)}")
            a(f"v_mov_b32 v7, {sr(S_ST+2*i+1)}")
            a(f"global_store_dwordx2 v4, v[6:7], {sr(SB,2)} offset:{8*i}")
            a("s_nop 1")
        a("s_getreg_b32 s3, hwreg(HW_REG_XCC_ID)")
        a("v_mov_b32 v6, s3")
        a("s_getreg_b32 s3, hwreg(HW_REG_HW_ID)")
        a("v_mov_b32 v7, s3")
        a(f"global_store_dwordx2 v4, v[6:7], {sr(SB,2)} offset:{8*NSTAMP}")

    V_OFFK, V_OFFV, V_T0, V_T1, V_T2, V_M, V_L = 1, 2, 3, 4, 5, 6, 7
    V_Q = 8
    V_P = 12
    V_PM = 16
    V_STG = 24
    V_DA = 88
    V_S = 120
    V_LW, V_LR = 128, 129
    V_BUF = 132
    V_END = V_BUF + NB * 32
    assert V_END <= 256, V_END
    nvgpr = V_END

    a(f"s_cmp_ge_u32 s2, {NWG}")
    a("s_cbranch_scc1 L_exit")
    if args.stamps:
        for i in range(NSTAMP):
            a(f"s_mov_b64 {sr(S_ST+2*i,2)}, 0")
    stamp(0)
    a(f"s_load_dwordx8 {sr(4,8)}, s[0:1], 0")
    a(f"s_load_dwordx4 {sr(12,4)}, s[0:1], 32")
    a(f"v_lshrrev_b32 {vr(V_T0)}, 6, v0")
    a(f"v_and_b32 {vr(V_OFFV)}, 63, v0")
    a(f"v_readfirstlane_b32 {sr(S_WAVE)}, {vr(V_T0)}")
    if args.wgmap == 0:
        a(f"s_and_b32 {sr(S_BH)}, s2, 63")
        a(f"s_lshr_b32 {sr(S_SPLIT)}, s2, 6")
    elif args.wgmap == 4:
        a(f"s_and_b32 {sr(S_BH)}, s2, 3")
        a(f"s_lshl_b32 {sr(S_BH)}, {sr(S_BH)}, 1")
        a(f"s_bfe_u32 {sr(S_T0)}, s2, 0x10003")
        a(f"s_or_b32 {sr(S_BH)}, {sr(S_BH)}, {sr(S_T0)}")
        a(f"s_lshr_b32 {sr(S_T0)}, s2, 1")
        a(f"s_and_b32 {sr(S_T0)}, {sr(S_T0)}, 0x18")
        a(f"s_or_b32 {sr(S_BH)}, {sr(S_BH)}, {sr(S_T0)}")
        a(f"s_lshl_b32 {sr(S_T0)}, s2, 3")
        a(f"s_and_b32 {sr(S_T0)}, {sr(S_T0)}, 0x20")
        a(f"s_or_b32 {sr(S_BH)}, {sr(S_BH)}, {sr(S_T0)}")
        a(f"s_lshr_b32 {sr(S_SPLIT)}, s2, 6")
    else:
        a(f"s_lshr_b32 {sr(S_BH)}, s2, {int(math.log2(NSPLIT))}")
        a(f"s_and_b32 {sr(S_SPLIT)}, s2, {NSPLIT-1}")
    a(f"v_and_b32 {vr(V_T0)}, 3, v0")
    a(f"v_bfe_u32 {vr(V_T1)}, v0, 2, 2")
    a(f"v_bfe_u32 {vr(V_T2)}, v0, 4, 2")
    a(f"v_lshlrev_b32 {vr(V_T2)}, 6, {vr(V_T2)}")
    a(f"v_lshl_add_u32 {vr(V_OFFK)}, {vr(V_T1)}, 8, {vr(V_T2)}")
    a(f"v_lshl_add_u32 {vr(V_OFFK)}, {vr(V_T0)}, 4, {vr(V_OFFK)}")
    a(f"v_lshl_add_u32 {vr(V_T2)}, {vr(V_T0)}, 8, {vr(V_T2)}")
    a(f"v_lshl_add_u32 {vr(V_T2)}, {vr(V_T1)}, 4, {vr(V_T2)}")
    a(f"v_lshlrev_b32 {vr(V_OFFV)}, 4, {vr(V_OFFV)}")
    a(f"s_lshl_b32 {sr(S_T0)}, {sr(S_BH)}, 21")
    a(f"s_mul_i32 {sr(S_T1)}, {sr(S_SPLIT)}, {KPWG*256}")
    a(f"s_add_u32 {sr(S_T0)}, {sr(S_T0)}, {sr(S_T1)}")
    tile_stride = 8192 * NW
    nrec = KPWG * 256
    a(f"s_lshl_b32 {sr(S_OFFK)}, {sr(S_WAVE)}, 13")
    if args.rot:
        if args.rotsrc == "hi5":
            a(f"s_lshr_b32 {sr(S_T1)}, s2, 3")
        elif args.rotsrc == "lo3":
            a(f"s_and_b32 {sr(S_T1)}, s2, 7")
        elif args.rotsrc == "split":
            a(f"s_lshr_b32 {sr(S_T1)}, s2, 6")
        a(f"s_mul_i32 {sr(S_T1)}, {sr(S_T1)}, {args.rot*1024}")
        a(f"s_add_u32 {sr(S_OFFK)}, {sr(S_OFFK)}, {sr(S_T1)}")
        a(f"s_and_b32 {sr(S_OFFK)}, {sr(S_OFFK)}, {nrec-1}")
    a(f"s_mov_b32 {sr(S_OFFV)}, {sr(S_OFFK)}")
    a(f"s_mov_b32 {sr(SRD_K+2)}, {nrec}")
    a(f"s_mov_b32 {sr(SRD_K+3)}, 0x20000")
    a(f"s_mov_b32 {sr(SRD_Q+2)}, 1024")
    a(f"s_mov_b32 {sr(SRD_Q+3)}, 0x20000")
    a(f"s_lshl_b32 {sr(S_T1)}, {sr(S_BH)}, 10")
    a("s_waitcnt lgkmcnt(0)")
    a(f"s_add_u32 {sr(SRD_K)}, {sr(S_K)}, {sr(S_T0)}")
    a(f"s_addc_u32 {sr(SRD_K+1)}, {sr(S_K+1)}, 0")
    a(f"s_add_u32 {sr(SRD_Q)}, {sr(S_Q)}, {sr(S_T1)}")
    a(f"s_addc_u32 {sr(SRD_Q+1)}, {sr(S_Q+1)}, 0")
    if HELP:
        a(f"s_cmp_eq_u32 {sr(S_WAVE)}, {NW}")
        a("s_cbranch_scc1 L_helper")

    ops = []
    loads = []
    state = dict(done=-1, paced=-1, allz=False)

    def issue(name, text, is_load=True):
        a(text)
        ops.append(name)
        if is_load:
            loads.append(name)
        state["allz"] = False

    def emit_wait(n):
        assert n <= 63
        a(f"s_waitcnt vmcnt({n})")
        state["done"] = max(state["done"], len(loads) - 1 - n)
        state["paced"] = max(state["paced"], len(ops) - 1 - n)
        if n == 0:
            state["allz"] = True

    def pace(name):
        k = ops.index(name)
        if k > state["paced"]:
            emit_wait(len(ops) - 1 - k)

    def wait_for(name):
        k = loads.index(name)
        if k > state["done"]:
            emit_wait(len(loads) - 1 - k)

    def is_done(name):
        return name in loads and loads.index(name) <= state["done"]

    NL = 2 * NT * 8

    def emit_load(i):
        t, j = i // 8, i % 8
        buf = V_BUF + (t % NB) * 32
        if t < NT:
            voff, srd, soff = V_OFFK, SRD_K, S_OFFK
        else:
            voff, srd, soff = V_OFFV, SRD_V, S_OFFV
        issue(f"L{i}", f"buffer_load_dwordx4 {vr(buf+4*j,4)}, {vr(voff)}, {sr(srd,4)}, {sr(soff)} offen offset:{1024*(j%4)} {flags}".rstrip())
        if j % 4 == 3:
            inc = 4096 if j == 3 else tile_stride - 4096
            a(f"s_add_u32 {sr(soff)}, {sr(soff)}, {inc}")
            if j == 7 and args.rot:
                a(f"s_and_b32 {sr(soff)}, {sr(soff)}, {nrec-1}")

    def depth(i):
        if i >= NL * args.bf:
            return args.bd
        return args.d

    def setup_rest(helper=False):
        stamp(1)
        a(f"s_add_u32 {sr(SRD_V)}, {sr(S_V)}, {sr(S_T0)}")
        a(f"s_addc_u32 {sr(SRD_V+1)}, {sr(S_V+1)}, 0")
        a(f"s_mov_b32 {sr(SRD_V+2)}, {nrec}")
        a(f"s_mov_b32 {sr(SRD_V+3)}, 0x20000")
        a(f"s_mov_b32 {sr(SRD_WS)}, {sr(S_WS)}")
        a(f"s_mov_b32 {sr(SRD_WS+1)}, {sr(S_WS+1)}")
        a(f"s_mov_b32 {sr(SRD_WS+2)}, {NWG*SLOT}")
        a(f"s_mov_b32 {sr(SRD_WS+3)}, 0x20000")
        a(f"s_mul_i32 {sr(S_SPIN)}, {sr(S_BH)}, {NSPLIT*SLOT}")
        a(f"s_mul_i32 {sr(S_SLOT)}, {sr(S_SPLIT)}, {SLOT}")
        a(f"s_add_u32 {sr(S_SLOT)}, {sr(S_SLOT)}, {sr(S_SPIN)}")
        if helper:
            a.c("mark this workgroup's partial slot as not yet written (all-ones words)")
            for i in range(4):
                a(f"v_mov_b32 {vr(V_P+i)}, -1")
            for i in range(3):
                a(f"buffer_store_dwordx4 {vr(V_P,4)}, {vr(V_OFFV)}, {sr(SRD_WS,4)}, {sr(S_SLOT)} offen offset:{1024*i} {args.hflags}")
            a(f"v_mov_b32 {vr(V_M)}, 0")
            a(f"ds_write_b32 {vr(V_M)}, {vr(V_M)} offset:{LDS_CNT}")
        if P2 and not HELP:
            a.c("mark this workgroup's partial slot as not yet written (all-ones words)")
            for i in range(4):
                a(f"v_mov_b32 {vr(V_P+i)}, -1")
            a(f"s_lshl_b32 {sr(S_T1)}, {sr(S_WAVE)}, 10")
            a(f"s_add_u32 {sr(S_T1)}, {sr(S_T1)}, {sr(S_SLOT)}")
            for i in range(4 // NW):
                issue(f"INV{i}", f"buffer_store_dwordx4 {vr(V_P,4)}, {vr(V_OFFV)}, {sr(SRD_WS,4)}, {sr(S_T1)} offen offset:{1024*NW*i} {args.hflags}", False)
            a(f"v_mov_b32 {vr(V_M)}, 0")
            a(f"ds_write_b32 {vr(V_M)}, {vr(V_M)} offset:{LDS_CNT}")
        if not helper:
            a(f"s_mul_i32 {sr(S_T1)}, {sr(S_WAVE)}, {(NA+1)*2048}")
            a(f"v_add_u32 {vr(V_LW)}, {sr(S_T1)}, {vr(V_OFFV)}")
            a(f"v_add_u32 {vr(V_LR)}, {sr(S_T1)}, {vr(V_OFFV)}")
            a(f"v_mov_b32 {vr(V_M)}, 0xff800000")
            a(f"v_mov_b32 {vr(V_L)}, 0")
        a(f"s_mov_b32 {sr(S_SELLO)}, 0x05040100")
        a(f"s_mov_b32 {sr(S_SELHI)}, 0x07060302")
        a(f"s_mov_b32 {sr(S_C)}, 0x{f32bits(scale_log2e):08x}")
        for b in range(4):
            m = 0x000F000F << (4 * b)
            a(f"s_mov_b32 {sr(S_MASK+2*b)}, 0x{m:08x}")
            a(f"s_mov_b32 {sr(S_MASK+2*b+1)}, 0x{m:08x}")
        for i in range(1, NSPLIT):
            a(f"s_add_u32 {sr(S_OTH+i-1)}, {sr(S_SPLIT)}, {i}")
            a(f"s_and_b32 {sr(S_OTH+i-1)}, {sr(S_OTH+i-1)}, {NSPLIT-1}")
            a(f"s_mul_i32 {sr(S_OTH+i-1)}, {sr(S_OTH+i-1)}, {SLOT}")
            a(f"s_add_u32 {sr(S_OTH+i-1)}, {sr(S_OTH+i-1)}, {sr(S_SPIN)}")
        a(f"s_mov_b32 {sr(SRD_OUT)}, {sr(S_OUT)}")
        a(f"s_mov_b32 {sr(SRD_OUT+1)}, {sr(S_OUT+1)}")
        a(f"s_mov_b32 {sr(SRD_OUT+2)}, {64*1024}")
        a(f"s_mov_b32 {sr(SRD_OUT+3)}, 0x20000")
        if P2:
            a("s_waitcnt lgkmcnt(0)")
            a("s_barrier")

    def dpp(b, r):
        n = (4 * (b - r)) % 16
        ctl = "quad_perm:[0,1,2,3]" if n == 0 else f"row_ror:{n}"
        return f"{ctl} row_mask:0xf bank_mask:0x{1<<b:x}"

    def allreduce(op, reg):
        a("s_nop 1")
        a(f"{op}_dpp {vr(reg)}, {vr(reg)}, {vr(reg)} row_ror:4 row_mask:0xf bank_mask:0xf")
        a("s_nop 1")
        a(f"{op}_dpp {vr(reg)}, {vr(reg)}, {vr(reg)} row_ror:8 row_mask:0xf bank_mask:0xf")
        a(f"v_mov_b32 {vr(V_T0)}, {vr(reg)}")
        a("s_nop 1")
        a(f"v_permlane32_swap_b32 {vr(V_T0)}, {vr(reg)}")
        a("s_nop 1")
        a(f"{op} {vr(reg)}, {vr(V_T0)}, {vr(reg)}")
        a(f"v_mov_b32 {vr(V_T0)}, {vr(reg)}")
        a("s_nop 1")
        a(f"v_permlane16_swap_b32 {vr(V_T0)}, {vr(reg)}")
        a("s_nop 1")
        a(f"{op} {vr(reg)}, {vr(V_T0)}, {vr(reg)}")

    NK = NT * 8
    R4 = lambda b_: list(range(b_, b_ + 4))

    def lbuf(j):
        return V_BUF + ((j // 8) % NB) * 32 + 4 * (j % 8)

    def k_dpp(j, r):
        T, i = j // 8, j % 8
        A, b = T // 4, T % 4
        s_ = V_S + i
        d = V_DA + 4 * i + r
        if r == 0:
            a.op("dpp", f"v_mov_b32_dpp {vr(s_)}, {vr(d)} {dpp(b, 0)}", [s_], [d])
        else:
            a.op("dpp", f"v_add_f32_dpp {vr(s_)}, {vr(d)}, {vr(s_)} {dpp(b, r)}", [s_], [d, s_])

    def v_perms(j, z):
        T, p_ = (j - NK) // 8, (j % 8) // 2
        stg = V_STG + 32 * (T % 2)
        for q in range(4):
            lo, hi = lbuf(j - 1) + q, lbuf(j) + q
            d = stg + 8 * q + 4 * z + p_
            a.op("valu", f"v_perm_b32 {vr(d)}, {vr(hi)}, {vr(lo)}, {sr(S_SELHI if z else S_SELLO)}", [d], [lo, hi])

    def step(j):
        if j < NK:
            if j == 0:
                stamp(2)
            d = V_DA + 4 * (j % 8)
            a.op("mfma", f"v_mfma_f32_16x16x32_bf16 {vr(d,4)}, {vr(lbuf(j),4)}, {vr(V_Q,4)}, 0", R4(d), [])
        for r in range(4):
            jj = j - 2 - r
            if 0 <= jj < NK:
                k_dpp(jj, r)
        jj = j - 6
        if 0 <= jj < NK and (jj // 8) % 4 == 3:
            s_ = V_S + jj % 8
            a.op("valu", f"v_max_f32 {vr(V_M)}, {vr(V_M)}, {vr(s_)}", [V_M], [V_M, s_])
            if jj % 4 == 3:
                h = (jj % 8) // 4
                a(f"ds_write_b128 {vr(V_LW)}, {vr(V_S+4*h,4)} offset:{LDS_S+1024*h}")
                if h == 1:
                    a(f"v_add_u32 {vr(V_LW)}, 2048, {vr(V_LW)}")
        if NK <= j < NL and j % 2 == 1:
            v_perms(j, 0)
        if NK <= j - 1 < NL and (j - 1) % 2 == 1:
            v_perms(j - 1, 1)

    fifo = []

    def allreduce_items(op, reg, earliest):
        def f1():
            a.op("dpp", f"{op}_dpp {vr(reg)}, {vr(reg)}, {vr(reg)} row_ror:4 row_mask:0xf bank_mask:0xf", [reg], [reg])
        def f2():
            a.op("dpp", f"{op}_dpp {vr(reg)}, {vr(reg)}, {vr(reg)} row_ror:8 row_mask:0xf bank_mask:0xf", [reg], [reg])
            a.op("valu", f"v_mov_b32 {vr(V_T0)}, {vr(reg)}", [V_T0], [reg])
        def f3():
            a.op("dpp", f"v_permlane32_swap_b32 {vr(V_T0)}, {vr(reg)}", [V_T0, reg], [V_T0, reg])
            a("s_nop 0")
            a.op("valu", f"{op} {vr(reg)}, {vr(V_T0)}, {vr(reg)}", [reg], [V_T0, reg])
            a.op("valu", f"v_mov_b32 {vr(V_T0)}, {vr(reg)}", [V_T0], [reg])
        def f4():
            a.op("dpp", f"v_permlane16_swap_b32 {vr(V_T0)}, {vr(reg)}", [V_T0, reg], [V_T0, reg])
            a("s_nop 0")
            a.op("valu", f"{op} {vr(reg)}, {vr(V_T0)}, {vr(reg)}", [reg], [V_T0, reg])
        for f in (f1, f2, f3, f4):
            fifo.append((earliest, None, f))

    pre0 = None
    fifo.append((NK + 5, None, lambda: (stamp(3), pre0())))
    allreduce_items("v_max_f32", V_M, NK + 5)

    def mscale():
        a.op("valu", f"v_mul_f32 {vr(V_M)}, {sr(S_C)}, {vr(V_M)}", [V_M], [V_M])
        stamp(4)
    fifo.append((NK + 5, None, mscale))

    def ex_items(A):
        s_ = V_S
        def rd():
            a(f"ds_read_b128 {vr(V_S,4)}, {vr(V_LR)} offset:{LDS_S}")
            a(f"ds_read_b128 {vr(V_S+4,4)}, {vr(V_LR)} offset:{LDS_S+1024}")
            a(f"v_add_u32 {vr(V_LR)}, 2048, {vr(V_LR)}")
        def fm(lo):
            def f():
                if lo == 0:
                    a("s_waitcnt lgkmcnt(0)")
                for i in range(lo, lo + 4):
                    a.op("valu", f"v_fma_f32 {vr(s_+i)}, {vr(s_+i)}, {sr(S_C)}, -{vr(V_M)}", [s_ + i], [s_ + i, V_M])
            return f
        def ex(lo):
            def f():
                for i in range(lo, lo + 2):
                    a.op("trans", f"v_exp_f32 {vr(s_+i)}, {vr(s_+i)}", [s_ + i], [s_ + i])
            return f
        def cv():
            for i in range(4):
                a.op("valu", f"v_cvt_pk_bf16_f32 {vr(V_P+i)}, {vr(s_+2*i)}, {vr(s_+2*i+1)}", [V_P + i], [s_ + 2 * i, s_ + 2 * i + 1])
        def add(d, x, y):
            a.op("valu", f"v_add_f32 {vr(d)}, {vr(x)}, {vr(y)}", [d], [x, y])
        def s1():
            for i in range(0, 8, 2):
                add(s_ + i, s_ + i, s_ + i + 1)
        def s2():
            add(s_, s_, s_ + 2)
            add(s_ + 4, s_ + 4, s_ + 6)
            add(s_, s_, s_ + 4)
            add(V_L, V_L, s_)
        return [fm(0), fm(4), ex(0), ex(2), ex(4), ex(6)], [cv], [s1, s2], rd

    def mask_item(T):
        def f():
            PM = V_PM + 4 * (T % 2)
            for i in range(4):
                a.op("valu", f"v_cndmask_b32 {vr(PM+i)}, 0, {vr(V_P+i)}, {sr(S_MASK+2*(T%4),2)}", [PM + i], [V_P + i])
        return f

    def pv_item(T, dd):
        def f():
            PM = V_PM + 4 * (T % 2)
            bq = V_STG + 32 * (T % 2) + 4 * dd
            d = V_DA + 4 * dd
            if T == 0:
                pass
            a.op("mfma", f"v_mfma_f32_16x16x32_bf16 {vr(d,4)}, {vr(PM,4)}, {vr(bq,4)}, {'0' if T == 0 else vr(d,4)}", R4(d), R4(PM) + R4(bq))
        return f

    def ticket_prep():
        a(f"s_lshl_b32 {sr(S_T1)}, {sr(S_BH)}, 2")
        a(f"v_mov_b32 {vr(V_Q)}, {sr(S_T1)}")
        a(f"v_mov_b32 {vr(V_Q+1)}, 1")
        a(f"v_mov_b32 {vr(V_Q+3)}, 0")

    pre, cvt, post, pre0 = ex_items(0)
    rd = pre0
    for f in pre + cvt:
        fifo.append((0, None, f))
    fifo.append((0, None, mask_item(0)))
    for T in range(NT):
        A, b = T // 4, T % 4
        base = NK + 8 * T
        lastg = A == NA - 1
        side = []
        if b == 0:
            side += post + [rd]
        if b == 1:
            side += pre[:3]
        if b == 2:
            if lastg:
                side.append("LRED")
            else:
                side += pre[3:]
        if T + 1 < NT:
            if b == 3:
                side += cvt
            side = side + [mask_item(T + 1)] if b == 3 else [mask_item(T + 1)] + side
        if T == NT - 2 and P2:
            side.append(ticket_prep)
        if T < NT - 1:
            order = [0, 2, 4, 6, 1, 3, 5, 7]
            for dd in order:
                fifo.append((base + 7 + (dd % 2), base + 17, pv_item(T, dd)))
        for f in side:
            if f == "LRED":
                allreduce_items("v_add_f32", V_L, 0)
            else:
                fifo.append((0, None, f))

    issue("Q", f"buffer_load_dwordx4 {vr(V_Q,4)}, {vr(V_T2)}, {sr(SRD_Q,4)}, 0 offen")
    st = dict(nstep=0, fi=0)

    def run_step():
        j = st["nstep"]
        last_due = max([k for k in range(st["fi"], len(fifo)) if fifo[k][1] is not None and fifo[k][1] <= j], default=-1)
        while st["fi"] <= last_due:
            assert fifo[st["fi"]][0] < j
            fifo[st["fi"]][2]()
            st["fi"] += 1
        step(j)
        st["nstep"] += 1

    def run_fifo(n):
        for _ in range(n):
            if st["fi"] < len(fifo) and fifo[st["fi"]][0] < st["nstep"]:
                fifo[st["fi"]][2]()
                st["fi"] += 1

    did_setup = False
    RING = 8 * NB
    marks = []
    for i in range(NL):
        need = i - depth(i)
        if need >= 0 and not did_setup:
            setup_rest()
            did_setup = True
        marks.append(len(a.lines))
        if need >= 0:
            pace(f"L{need}")
        if i >= RING:
            old = i - RING
            must = old if old < NK else (old | 1) + 1
            while st["nstep"] <= must:
                wait_for(f"L{min(st['nstep'], i-1)}")
                run_step()
        emit_load(i)
        ran = 0
        while did_setup and ran < args.spl and st["nstep"] < NL and is_done(f"L{st['nstep']}"):
            run_step()
            ran += 1
        run_fifo(args.ppl)
    marks.append(len(a.lines))
    if args.fold:
        chunks = [a.lines[marks[i]:marks[i + 1]] for i in range(NL)]
        head = a.lines[:marks[0]]
        outl = list(head)
        i = 0
        nloop = 0
        while i < NL:
            e = i
            while e + 32 < NL and chunks[e] == chunks[e + 32]:
                e += 1
            if e - i >= 32:
                total = e + 32 - i
                full, part = divmod(total, 32)
                outl.append(f"    s_mov_b32 {sr(S_CNT)}, {full if part else full - 1}")
                if args.align:
                    outl.append(f"    .p2align {args.align}")
                outl.append(f"L_loop{nloop}:")
                for k in range(32):
                    if part and k == part:
                        outl.append(f"    s_sub_u32 {sr(S_CNT)}, {sr(S_CNT)}, 1")
                        outl.append(f"    s_cbranch_scc1 L_exit{nloop}")
                    outl += chunks[i + k]
                if part:
                    outl.append(f"    s_branch L_loop{nloop}")
                else:
                    outl.append(f"    s_sub_u32 {sr(S_CNT)}, {sr(S_CNT)}, 1")
                    outl.append(f"    s_cbranch_scc0 L_loop{nloop}")
                outl.append(f"L_exit{nloop}:")
                print(f"loop {nloop}: slots [{i}, {i+total}) = {full} x 32 + {part}")
                nloop += 1
                i += total
            else:
                outl += chunks[i]
                i += 1
        a.lines = outl
    while st["nstep"] < NL - 1:
        wait_for(f"L{st['nstep']}")
        run_step()
        run_fifo(args.ppl + 1)
    run_fifo(1000)
    assert st["fi"] == len(fifo), (st, len(fifo))
    wait_for(f"L{NL-1}")
    assert state["allz"]
    if P2:
        a.c("every load (and the slot marking) of this wave is complete: count it")
        a("s_mov_b64 exec, 1")
        a(f"ds_add_rtn_u32 {vr(V_Q+2)}, {vr(V_Q+3)}, {vr(V_Q+1)} offset:{LDS_CNT}")
        a("s_mov_b64 exec, -1")
    run_step()
    run_step()
    for n, dd in enumerate([0, 2, 4, 6, 1, 3, 5, 7]):
        pv_item(NT - 1, dd)()
        if n == args.tq and P2:
            a.c("the last wave of the workgroup to finish its loads takes the ticket and merges")
            a("s_waitcnt lgkmcnt(0)")
            a(f"v_readfirstlane_b32 {sr(S_ROLE)}, {vr(V_Q+2)}")
            a("s_nop 0")
            a(f"s_cmp_lg_u32 {sr(S_ROLE)}, {NARR-1}")
            a("s_cbranch_scc1 L_noticket")
            a.count = False
            a("s_mov_b64 exec, 1")
            a(f"global_atomic_add {vr(V_Q+2)}, {vr(V_Q)}, {vr(V_Q+1)}, {sr(S_DBG,2)} sc0")
            a("s_mov_b64 exec, -1")
            a.count = True
            a.label("L_noticket")

    stamp(5)
    G = V_BUF
    a(f"s_lshl_b32 {sr(S_T0)}, {sr(S_WAVE)}, 11")
    a(f"v_add_u32 {vr(V_T0)}, {sr(S_T0)}, {vr(V_OFFV)}")
    a(f"s_lshl_b32 {sr(S_T1)}, {sr(S_WAVE)}, 5")
    a(f"v_and_b32 {vr(V_T1)}, 3, v0")
    a(f"v_lshlrev_b32 {vr(V_T1)}, 3, {vr(V_T1)}")
    a(f"v_add_u32 {vr(V_T1)}, {sr(S_T1)}, {vr(V_T1)}")
    a(f"ds_write_b64 {vr(V_T1)}, {vr(V_M,2)} offset:{LDS_ML}")
    a("s_nop 1")
    for dd in range(8):
        d = V_DA + 4 * dd
        a(f"v_permlane32_swap_b32 {vr(d)}, {vr(d+2)}")
        a(f"v_permlane32_swap_b32 {vr(d+1)}, {vr(d+3)}")
    for dd in range(8):
        d = V_DA + 4 * dd
        a(f"v_add_f32 {vr(d)}, {vr(d)}, {vr(d+2)}")
        a(f"v_add_f32 {vr(d+1)}, {vr(d+1)}, {vr(d+3)}")
    for dd in range(8):
        d = V_DA + 4 * dd
        a(f"v_permlane16_swap_b32 {vr(d)}, {vr(d+1)}")
    for dd in range(8):
        d = V_DA + 4 * dd
        a(f"v_add_f32 {vr(G+dd)}, {vr(d)}, {vr(d+1)}")
    a(f"ds_write_b128 {vr(V_T0)}, {vr(G,4)} offset:{LDS_O}")
    a(f"ds_write_b128 {vr(V_T0)}, {vr(G+4,4)} offset:{LDS_O+1024}")
    a("s_waitcnt lgkmcnt(0)")
    a.label("L_join")
    a("s_barrier")
    stamp(6, True)
    if P2:
        a(f"s_cmp_lg_u32 {sr(S_ROLE)}, {NARR-1}")
    else:
        a(f"s_cmp_lg_u32 {sr(S_WAVE)}, 0")
    a("s_cbranch_scc1 L_end")
    ML = G
    OB = G + 2 * NW + (4 - (2 * NW) % 4) % 4
    PB = OB + NW * 8
    ACC = V_DA
    OWN = V_DA + 12
    assert PB + (NSPLIT - 1) * 12 <= V_END
    a(f"v_bfe_u32 {vr(V_T1)}, v0, 4, 2")
    a(f"v_lshlrev_b32 {vr(V_T1)}, 3, {vr(V_T1)}")
    for w in range(NW):
        a(f"ds_read_b64 {vr(ML+2*w,2)}, {vr(V_T1)} offset:{LDS_ML+32*w}")
    for w in range(NW):
        a(f"ds_read_b128 {vr(OB+8*w,4)}, {vr(V_OFFV)} offset:{LDS_O+2048*w}")
        a(f"ds_read_b128 {vr(OB+8*w+4,4)}, {vr(V_OFFV)} offset:{LDS_O+2048*w+1024}")

    def poll_loads():
        for s_ in range(NSPLIT - 1):
            a(f"buffer_load_dwordx4 {vr(PB+12*s_+8,4)}, {vr(V_OFFV)}, {sr(SRD_WS,4)}, {sr(S_OTH+s_)} offen offset:2048 {args.hflags}")
            a(f"buffer_load_dwordx4 {vr(PB+12*s_,4)}, {vr(V_OFFV)}, {sr(SRD_WS,4)}, {sr(S_OTH+s_)} offen {args.hflags}")
            a(f"buffer_load_dwordx4 {vr(PB+12*s_+4,4)}, {vr(V_OFFV)}, {sr(SRD_WS,4)}, {sr(S_OTH+s_)} offen offset:1024 {args.hflags}")

    def publish():
        for i in range(3):
            a(f"buffer_store_dwordx4 {vr(OWN+4*i,4)}, {vr(V_OFFV)}, {sr(SRD_WS,4)}, {sr(S_SLOT)} offen offset:{1024*i} {args.hflags}")

    def merge(dst, nparts, mreg, lreg, oreg, first_wait, per_part_wait):
        first_wait()
        M = dst + 8
        L = dst + 9
        a(f"v_max_f32 {vr(M)}, {vr(mreg(0))}, {vr(mreg(1))}")
        for w in range(2, nparts):
            a(f"v_max_f32 {vr(M)}, {vr(M)}, {vr(mreg(w))}")
        for w in range(nparts):
            a(f"v_sub_f32 {vr(mreg(w))}, {vr(mreg(w))}, {vr(M)}")
        for w in range(nparts):
            a(f"v_exp_f32 {vr(mreg(w))}, {vr(mreg(w))}")
        a("s_nop 0")
        a(f"v_mul_f32 {vr(L)}, {vr(mreg(0))}, {vr(lreg(0))}")
        for w in range(1, nparts):
            a(f"v_fmac_f32 {vr(L)}, {vr(mreg(w))}, {vr(lreg(w))}")
        for w in range(nparts):
            per_part_wait(w)
            for e in range(8):
                if w == 0:
                    a(f"v_mul_f32 {vr(dst+e)}, {vr(mreg(0))}, {vr(oreg(0)+e)}")
                else:
                    a(f"v_fmac_f32 {vr(dst+e)}, {vr(mreg(w))}, {vr(oreg(w)+e)}")

    merge(OWN, NW, lambda w: ML + 2 * w, lambda w: ML + 2 * w + 1, lambda w: OB + 8 * w,
          lambda: a(f"s_waitcnt lgkmcnt({min(15, 2*NW)})"),
          lambda w: a(f"s_waitcnt lgkmcnt({min(15, 2*(NW-1-w))})"))
    if P2:
        a(f"s_mov_b32 {sr(S_SPIN)}, 0x100000")
        for e in range(10):
            a(f"v_min_u32 {vr(OWN+e)}, 0xfffffffe, {vr(OWN+e)}")
        a("s_waitcnt vmcnt(0)")
        a(f"v_readfirstlane_b32 {sr(S_T1)}, {vr(V_Q+2)}")
        stamp(7, True)
        a(f"s_cmp_eq_u32 {sr(S_T1)}, {NSPLIT-1}")
        a("s_cbranch_scc1 L_again")
        a.c("publish the partial; no word equals the all-ones marker")
        publish()
        a("s_branch L_end")
        a.label("L_again")
        poll_loads()
        a("s_waitcnt vmcnt(0)")
        regs = [PB + 12 * s_ + e for s_ in range(NSPLIT - 1) for e in range(10)]
        a(f"v_max3_u32 {vr(V_T0)}, {vr(regs[0])}, {vr(regs[1])}, {vr(regs[2])}")
        a(f"v_max3_u32 {vr(V_T1)}, {vr(regs[3])}, {vr(regs[4])}, {vr(regs[5])}")
        rest = regs[6:]
        k = 0
        while rest:
            t = V_T0 if k % 2 == 0 else V_T1
            if len(rest) >= 2:
                a(f"v_max3_u32 {vr(t)}, {vr(t)}, {vr(rest[0])}, {vr(rest[1])}")
                rest = rest[2:]
            else:
                a(f"v_max_u32 {vr(t)}, {vr(t)}, {vr(rest[0])}")
                rest = rest[1:]
            k += 1
        a(f"v_max_u32 {vr(V_T0)}, {vr(V_T0)}, {vr(V_T1)}")
        a(f"v_cmp_eq_u32 vcc, -1, {vr(V_T0)}")
        a(f"s_sub_u32 {sr(S_SPIN)}, {sr(S_SPIN)}, 1")
        a("s_cbranch_scc1 L_go")
        a("s_nop 2")
        a("s_cbranch_vccnz L_again")
        a.label("L_go")
    else:
        publish()
        a(f"s_lshl_b32 {sr(S_T1)}, {sr(S_BH)}, 2")
        a(f"v_mov_b32 {vr(V_T0)}, {sr(S_T1)}")
        a(f"v_mov_b32 {vr(V_T1)}, 1")
        a("s_mov_b64 exec, 1")
        a("s_waitcnt vmcnt(0)")
        stamp(7)
        a(f"global_atomic_add {vr(V_T2)}, {vr(V_T0)}, {vr(V_T1)}, {sr(S_DBG,2)} sc0")
        a("s_waitcnt vmcnt(0)")
        a(f"v_readfirstlane_b32 {sr(S_T1)}, {vr(V_T2)}")
        a("s_mov_b64 exec, -1")
        a(f"s_cmp_lg_u32 {sr(S_T1)}, {NSPLIT-1}")
        a("s_cbranch_scc1 L_end")
        poll_loads()
        a("s_waitcnt vmcnt(0)")
    stamp(8)
    part = lambda s_: OWN if s_ == 0 else PB + 12 * (s_ - 1)
    merge(ACC, NSPLIT, lambda s_: part(s_) + 8, lambda s_: part(s_) + 9, part, lambda: None, lambda w: None)
    a(f"v_rcp_f32 {vr(ACC+9)}, {vr(ACC+9)}")
    a("s_nop 0")
    for e in range(8):
        a(f"v_mul_f32 {vr(ACC+e)}, {vr(ACC+e)}, {vr(ACC+9)}")
    for e in range(4):
        a(f"v_cvt_pk_bf16_f32 {vr(ACC+e)}, {vr(ACC+2*e)}, {vr(ACC+2*e+1)}")
    a(f"s_lshl_b32 {sr(S_T1)}, {sr(S_BH)}, 10")
    a(f"buffer_store_dwordx4 {vr(ACC,4)}, {vr(V_OFFV)}, {sr(SRD_OUT,4)}, {sr(S_T1)} offen {args.oflags}".rstrip())
    if args.stamps:
        a("s_waitcnt vmcnt(0)")
    stamp(9)
    a.label("L_end")
    dump_stamps()
    a.label("L_exit")
    a("s_endpgm")
    if HELP:
        a.label("L_helper")
        setup_rest(True)
        a(f"s_lshl_b32 {sr(S_T1)}, {sr(S_BH)}, 2")
        a(f"v_mov_b32 {vr(V_Q)}, {sr(S_T1)}")
        a(f"v_mov_b32 {vr(V_Q+1)}, 1")
        a(f"v_mov_b32 {vr(V_Q+3)}, 0")
        if args.touch:
            a.c("touch the pages needed later (V range, output, counters) so their translations are cached")
            a("s_mov_b64 exec, 1")
            a(f"buffer_load_dword {vr(V_PM)}, {vr(V_Q+3)}, {sr(SRD_V,4)}, 0 offen nt")
            a(f"buffer_load_dword {vr(V_PM+1)}, {vr(V_Q+3)}, {sr(SRD_OUT,4)}, 0 offen nt")
            a(f"global_load_dword {vr(V_PM+2)}, {vr(V_Q)}, {sr(S_DBG,2)} sc1")
        a("s_waitcnt vmcnt(0)")
        a("s_mov_b64 exec, 1")
        a(f"ds_add_rtn_u32 {vr(V_Q+2)}, {vr(V_Q+3)}, {vr(V_Q+1)} offset:{LDS_CNT}")
        a("s_waitcnt lgkmcnt(0)")
        a(f"v_readfirstlane_b32 {sr(S_ROLE)}, {vr(V_Q+2)}")
        a("s_nop 0")
        a(f"s_cmp_lg_u32 {sr(S_ROLE)}, {NARR-1}")
        a("s_cbranch_scc1 L_exit")
        a.c("(only if the marking was the last thing to complete) take the ticket and merge")
        a(f"global_atomic_add {vr(V_Q+2)}, {vr(V_Q)}, {vr(V_Q+1)}, {sr(S_DBG,2)} sc0")
        a("s_mov_b64 exec, -1")
        a("s_branch L_join")

    nvgpr = max(nvgpr, args.minv)
    accum = min(256, (nvgpr + 3) // 4 * 4)
    out = HEADER
    out += f"; @launch grid=({NWG},1,1) block=({NARR*64},1,1) lds={max(LDS_BYTES, args.minlds)}\n"
    out += '.amdgcn_target "amdgcn-amd-amdhsa--gfx950"\n.text\n'
    out += f".globl {NAME}\n.p2align 8\n.type {NAME},@function\n{NAME}:\n"
    out += a.text()
    out += f""".section .rodata,"a"
.p2align 6
.amdhsa_kernel {NAME}
  .amdhsa_next_free_vgpr {nvgpr}
  .amdhsa_next_free_sgpr {S_NEXT}
  .amdhsa_accum_offset {accum}
  .amdhsa_group_segment_fixed_size 0
  .amdhsa_kernarg_size 48
  .amdhsa_user_sgpr_count 2
  .amdhsa_user_sgpr_kernarg_segment_ptr 1
  .amdhsa_system_sgpr_workgroup_id_x 1
.end_amdhsa_kernel
"""
    return out


if __name__ == "__main__":
    ap = argparse.ArgumentParser()
    ap.add_argument("--nsplit", type=int, default=4)
    ap.add_argument("--nw", type=int, default=2)
    ap.add_argument("--nb", type=int, default=2)
    ap.add_argument("--d", type=int, default=11)
    ap.add_argument("--bf", type=float, default=2.0)
    ap.add_argument("--bd", type=int, default=16)
    ap.add_argument("--ppl", type=int, default=2, help="side items per load slot")
    ap.add_argument("--fold", type=int, default=1)
    ap.add_argument("--align", type=int, default=0)
    ap.add_argument("--touch", type=int, default=0)
    ap.add_argument("--padx", default="")
    ap.add_argument("--spl", type=int, default=2, help="max steps per load slot")
    ap.add_argument("--proto", type=int, default=3)
    ap.add_argument("--flags", default="nt")
    ap.add_argument("--hflags", default="sc1")
    ap.add_argument("--oflags", default="")
    ap.add_argument("--tq", type=int, default=2)
    ap.add_argument("--rot", type=int, default=16)
    ap.add_argument("--rotsrc", default="lo3")
    ap.add_argument("--wgmap", type=int, default=4)
    ap.add_argument("--minv", type=int, default=0)
    ap.add_argument("--minlds", type=int, default=0)
    ap.add_argument("--stamps", type=int, default=0)
    ap.add_argument("-o", default="standalone__gqa_softmax__decode.s")
    args = ap.parse_args()
    open(args.o, "w").write(gen(args))
```

```python
import argparse
import math
import struct

HEADER = """; GQA decode attention (B=8, Hq=32, Hkv=8, Sk=8192, D=128), split-K flash decoding.
"""
NAME = "standalone__gqa_softmax__decode_kernel"


def f32bits(x):
    return struct.unpack("<I", struct.pack("<f", x))[0]


class Asm:
    def __init__(self):
        self.lines = []
        self.pos = 0
        self.count = True
        self.wr = {}

    def __call__(self, s):
        self.lines.append("    " + s)
        if self.count:
            self.pos += int(s.split()[1]) + 1 if s.startswith("s_nop") else 1

    def op(self, kind, text, writes, reads):
        need = 0
        for r in set(reads) | (set(writes) if kind != "mfma" else set()):
            if r not in self.wr:
                continue
            p_, k = self.wr[r]
            dist = self.pos - p_ - 1
            req = 0
            if k == "mfma":
                req = 8
            elif r in reads or kind == "dpp":
                if kind in ("dpp", "mfma"):
                    req = 2
                elif k == "trans" and kind != "trans":
                    req = 1
            need = max(need, req - dist)
        if need > 0:
            self(f"s_nop {need-1}")
        here = self.pos
        self(text)
        for r in writes:
            self.wr[r] = (here, "valu" if kind in ("dpp", "mem") else kind)

    def label(self, l):
        self.lines.append(l + ":")

    def c(self, s):
        self.lines.append("    ; " + s)

    def text(self):
        return "\n".join(self.lines) + "\n"


def vr(a, n=1):
    return f"v{a}" if n == 1 else f"v[{a}:{a+n-1}]"


def sr(a, n=1):
    return f"s{a}" if n == 1 else f"s[{a}:{a+n-1}]"


def gen(args):
    NSPLIT = 4
    NW = 2
    NB = 2
    KPWG = 8192 // NSPLIT
    KPW = KPWG // NW
    NT = KPW // 32
    NA = NT // 4
    NWG = 64 * NSPLIT
    flags = args.flags
    hfl = args.hflags
    SLOT = 4096
    LDS_O = 0
    LDS_ML = 2048
    LDS_LOC = 2176
    LDS_S = 3072
    LDS_BYTES = LDS_S + NW * (NA + 1) * 2048
    scale_log2e = (128 ** -0.5) * math.log2(math.e)

    a = Asm()
    S_Q, S_K, S_V, S_OUT, S_DBG, S_WS = 4, 6, 8, 10, 12, 14
    SRD_K, SRD_V, SRD_Q, SRD_WS, SRD_OUT = 16, 20, 24, 28, 32
    S_BH, S_SPLIT, S_WAVE, S_T0, S_T1 = 36, 37, 38, 39, 40
    S_OFFK, S_OFFV, S_SELLO, S_SELHI, S_C = 41, 42, 43, 44, 45
    S_MASK = 46
    S_SLOT = 54
    S_OTH = 55
    S_SPIN, S_TK, S_CNT, S_OOFF = 58, 59, 60, 61
    S_NAN = 62
    S_LOC = 64
    S_NEXT = 66
    S_ST = S_NEXT
    NSTAMP = 10
    if args.stamps:
        S_NEXT = S_ST + 2 * NSTAMP + 4

    def stamp(i, wait=False):
        if args.stamps:
            a(f"s_memrealtime {sr(S_ST+2*i,2)}")
            if wait:
                a("s_waitcnt lgkmcnt(0)")

    def dump_stamps():
        if not args.stamps:
            return
        SB = S_ST + 2 * NSTAMP
        a("s_waitcnt lgkmcnt(0)")
        if args.padx:
            sa, sb, amp, wg = (int(x) for x in args.padx.split(","))
            if wg >= 0:
                a(f"s_cmp_lg_u32 s2, {wg}")
                a("s_cbranch_scc1 L_exit")
            a(f"s_cmp_eq_u32 {sr(S_ST+2*sb)}, 0")
            a("s_cbranch_scc1 L_exit")
            a(f"s_sub_u32 {sr(SB)}, {sr(S_ST+2*sb)}, {sr(S_ST+2*sa)}")
            a(f"s_min_u32 {sr(SB)}, {sr(SB)}, 5000")
            a(f"s_mul_i32 {sr(SB)}, {sr(SB)}, {amp}")
            a(f"s_add_u32 {sr(SB)}, {sr(SB)}, 6000")
            a(f"s_add_u32 {sr(SB)}, {sr(SB)}, {sr(S_ST)}")
            a.label("L_spin")
            a(f"s_memrealtime {sr(SB+2,2)}")
            a("s_waitcnt lgkmcnt(0)")
            a(f"s_sub_u32 {sr(SB+1)}, {sr(SB+2)}, {sr(SB)}")
            a(f"s_cmp_lt_i32 {sr(SB+1)}, 0")
            a("s_cbranch_scc1 L_spin")
            return
        a(f"s_mul_i32 {sr(SB+2)}, s2, {NW+1}")
        a(f"s_add_u32 {sr(SB+2)}, {sr(SB+2)}, {sr(S_WAVE)}")
        a(f"s_lshl_b32 {sr(SB+2)}, {sr(SB+2)}, 7")
        a(f"s_add_u32 {sr(SB+2)}, {sr(SB+2)}, {16<<20}")
        a(f"s_add_u32 {sr(SB)}, {sr(S_WS)}, {sr(SB+2)}")
        a(f"s_addc_u32 {sr(SB+1)}, {sr(S_WS+1)}, 0")
        a("s_mov_b64 exec, 1")
        a("v_mov_b32 v4, 0")
        for i in range(NSTAMP):
            a(f"v_mov_b32 v6, {sr(S_ST+2*i)}")
            a(f"v_mov_b32 v7, {sr(S_ST+2*i+1)}")
            a(f"global_store_dwordx2 v4, v[6:7], {sr(SB,2)} offset:{8*i}")
            a("s_nop 1")
        a("s_getreg_b32 s3, hwreg(HW_REG_XCC_ID)")
        a("v_mov_b32 v6, s3")
        a("s_getreg_b32 s3, hwreg(HW_REG_HW_ID)")
        a("v_mov_b32 v7, s3")
        a(f"global_store_dwordx2 v4, v[6:7], {sr(SB,2)} offset:{8*NSTAMP}")

    V_OFFK, V_OFFV, V_T0, V_T1, V_T2, V_M, V_L = 1, 2, 3, 4, 5, 6, 7
    V_Q = 8
    V_TA, V_ONE, V_TK, V_F = 8, 9, 10, 11
    V_P = 12
    V_PM = 16
    V_STG = 24
    V_DA = 88
    V_S = 120
    V_LW, V_LR = 128, 129
    V_BUF = 132
    OWN = V_BUF + 64
    PB = OWN + 12
    OTH = PB + 36
    ML = OTH + 8
    V_END = ML + 4
    assert V_END <= 256
    FREE = V_STG + 32 * ((NT - 2) % 2)
    FAC, OUT = FREE, FREE + 4
    R4 = lambda b_: list(range(b_, b_ + 4))

    a(f"s_cmp_ge_u32 s2, {NWG}")
    a("s_cbranch_scc1 L_exit")
    if args.stamps:
        for i in range(NSTAMP):
            a(f"s_mov_b64 {sr(S_ST+2*i,2)}, 0")
    stamp(0)
    a(f"s_load_dwordx8 {sr(4,8)}, s[0:1], 0")
    a(f"s_load_dwordx4 {sr(12,4)}, s[0:1], 32")
    a(f"v_lshrrev_b32 {vr(V_T0)}, 6, v0")
    a(f"v_and_b32 {vr(V_OFFV)}, 63, v0")
    a(f"v_readfirstlane_b32 {sr(S_WAVE)}, {vr(V_T0)}")
    a.c("id bits (0,1,2 | 3,4,5 | 6,7) -> bh bits (1,2,5 | 0,3,4), split: spreads DRAM stacks/banks (speed only)")
    a(f"s_and_b32 {sr(S_BH)}, s2, 3")
    a(f"s_lshl_b32 {sr(S_BH)}, {sr(S_BH)}, 1")
    a(f"s_bfe_u32 {sr(S_T0)}, s2, 0x10003")
    a(f"s_or_b32 {sr(S_BH)}, {sr(S_BH)}, {sr(S_T0)}")
    a(f"s_lshr_b32 {sr(S_T0)}, s2, 1")
    a(f"s_and_b32 {sr(S_T0)}, {sr(S_T0)}, 0x18")
    a(f"s_or_b32 {sr(S_BH)}, {sr(S_BH)}, {sr(S_T0)}")
    a(f"s_lshl_b32 {sr(S_T0)}, s2, 3")
    a(f"s_and_b32 {sr(S_T0)}, {sr(S_T0)}, 0x20")
    a(f"s_or_b32 {sr(S_BH)}, {sr(S_BH)}, {sr(S_T0)}")
    a(f"s_lshr_b32 {sr(S_SPLIT)}, s2, 6")
    a(f"v_and_b32 {vr(V_T0)}, 3, v0")
    a(f"v_bfe_u32 {vr(V_T1)}, v0, 2, 2")
    a(f"v_bfe_u32 {vr(V_T2)}, v0, 4, 2")
    a(f"v_lshlrev_b32 {vr(V_T2)}, 6, {vr(V_T2)}")
    a(f"v_lshl_add_u32 {vr(V_OFFK)}, {vr(V_T1)}, 8, {vr(V_T2)}")
    a(f"v_lshl_add_u32 {vr(V_OFFK)}, {vr(V_T0)}, 4, {vr(V_OFFK)}")
    a(f"v_lshl_add_u32 {vr(V_T2)}, {vr(V_T0)}, 8, {vr(V_T2)}")
    a(f"v_lshl_add_u32 {vr(V_T2)}, {vr(V_T1)}, 4, {vr(V_T2)}")
    a(f"v_lshlrev_b32 {vr(V_OFFV)}, 4, {vr(V_OFFV)}")
    a(f"s_lshl_b32 {sr(S_T0)}, {sr(S_BH)}, 21")
    a(f"s_lshl_b32 {sr(S_T1)}, {sr(S_SPLIT)}, 19")
    a(f"s_add_u32 {sr(S_T0)}, {sr(S_T0)}, {sr(S_T1)}")
    tile_stride = 8192 * NW
    nrec = KPWG * 256
    a(f"s_lshl_b32 {sr(S_OFFK)}, {sr(S_WAVE)}, 13")
    if args.rot:
        a.c("start phase inside the key range (wraps around): staggers DRAM bank changes")
        a(f"s_and_b32 {sr(S_T1)}, s2, 7")
        a(f"s_mul_i32 {sr(S_T1)}, {sr(S_T1)}, {args.rot*1024}")
        a(f"s_add_u32 {sr(S_OFFK)}, {sr(S_OFFK)}, {sr(S_T1)}")
    a(f"s_mov_b32 {sr(S_OFFV)}, {sr(S_OFFK)}")
    a(f"s_mov_b32 {sr(SRD_K+2)}, {nrec}")
    a(f"s_mov_b32 {sr(SRD_K+3)}, 0x20000")
    a(f"s_mov_b32 {sr(SRD_Q+2)}, 1024")
    a(f"s_mov_b32 {sr(SRD_Q+3)}, 0x20000")
    a(f"s_lshl_b32 {sr(S_OOFF)}, {sr(S_BH)}, 10")
    a(f"s_cmp_eq_u32 {sr(S_WAVE)}, {NW}")
    a("s_waitcnt lgkmcnt(0)")
    a("s_cbranch_scc1 L_helper")
    a(f"s_add_u32 {sr(SRD_K)}, {sr(S_K)}, {sr(S_T0)}")
    a(f"s_addc_u32 {sr(SRD_K+1)}, {sr(S_K+1)}, 0")
    a(f"s_add_u32 {sr(SRD_Q)}, {sr(S_Q)}, {sr(S_OOFF)}")
    a(f"s_addc_u32 {sr(SRD_Q+1)}, {sr(S_Q+1)}, 0")

    loads = []
    state = dict(done=-1)

    def issue(name, text):
        a(text)
        loads.append(name)

    def wait_for(name):
        k = loads.index(name)
        if k > state["done"]:
            n = len(loads) - 1 - k
            assert n <= 63
            a(f"s_waitcnt vmcnt({n})")
            state["done"] = k

    def is_done(name):
        return name in loads and loads.index(name) <= state["done"]

    NK = NT * 8
    NL = 2 * NK

    def lbuf(j):
        return V_BUF + 4 * (j % 16)

    def emit_load(i):
        j = i % 8
        if i < NK:
            voff, srd, soff = V_OFFK, SRD_K, S_OFFK
        else:
            voff, srd, soff = V_OFFV, SRD_V, S_OFFV
        issue(f"L{i}", f"buffer_load_dwordx4 {vr(lbuf(i),4)}, {vr(voff)}, {sr(srd,4)}, {sr(soff)} offen offset:{1024*(j%4)} {flags}".rstrip())
        if j % 4 == 3:
            inc = 4096 if j == 3 else tile_stride - 4096
            a(f"s_add_u32 {sr(soff)}, {sr(soff)}, {inc}")
            if j == 7 and args.rot:
                a(f"s_and_b32 {sr(soff)}, {sr(soff)}, {nrec-1}")

    def depth(i):
        if i < args.sn:
            return args.sd
        if i >= NL * args.bf:
            return args.bd
        return args.d - (1 if (args.strict >> (i % 8)) & 1 else 0)

    def ws_srd():
        a(f"s_mov_b32 {sr(SRD_WS)}, {sr(S_WS)}")
        a(f"s_mov_b32 {sr(SRD_WS+1)}, {sr(S_WS+1)}")
        a(f"s_mov_b32 {sr(SRD_WS+2)}, {NWG*SLOT}")
        a(f"s_mov_b32 {sr(SRD_WS+3)}, 0x20000")
        a(f"s_lshl_b32 {sr(S_SPIN)}, {sr(S_BH)}, 14")
        a(f"s_lshl_b32 {sr(S_SLOT)}, {sr(S_SPLIT)}, 12")
        a(f"s_add_u32 {sr(S_SLOT)}, {sr(S_SLOT)}, {sr(S_SPIN)}")

    def v_srd():
        a(f"s_add_u32 {sr(SRD_V)}, {sr(S_V)}, {sr(S_T0)}")
        a(f"s_addc_u32 {sr(SRD_V+1)}, {sr(S_V+1)}, 0")
        a(f"s_mov_b32 {sr(SRD_V+2)}, {nrec}")
        a(f"s_mov_b32 {sr(SRD_V+3)}, 0x20000")

    def out_srd():
        a(f"s_mov_b32 {sr(SRD_OUT)}, {sr(S_OUT)}")
        a(f"s_mov_b32 {sr(SRD_OUT+1)}, {sr(S_OUT+1)}")
        a(f"s_mov_b32 {sr(SRD_OUT+2)}, {64*1024}")
        a(f"s_mov_b32 {sr(SRD_OUT+3)}, 0x20000")

    def setup_rest():
        stamp(1)
        v_srd()
        ws_srd()
        a(f"s_mul_i32 {sr(S_T1)}, {sr(S_WAVE)}, {(NA+1)*2048}")
        a(f"v_add_u32 {vr(V_LW)}, {sr(S_T1)}, {vr(V_OFFV)}")
        a(f"v_add_u32 {vr(V_LR)}, {sr(S_T1)}, {vr(V_OFFV)}")
        a(f"v_mov_b32 {vr(V_M)}, 0xff800000")
        a(f"v_mov_b32 {vr(V_L)}, 0")
        a(f"s_mov_b32 {sr(S_SELLO)}, 0x05040100")
        a(f"s_mov_b32 {sr(S_SELHI)}, 0x07060302")
        a(f"s_mov_b32 {sr(S_C)}, 0x{f32bits(scale_log2e):08x}")
        a(f"s_mov_b32 {sr(S_MASK)}, 0x000f000f")
        a(f"s_mov_b32 {sr(S_MASK+1)}, {sr(S_MASK)}")
        for b in range(1, 4):
            a(f"s_lshl_b64 {sr(S_MASK+2*b,2)}, {sr(S_MASK,2)}, {4*b}")
        for i in range(1, NSPLIT):
            a(f"s_xor_b32 {sr(S_OTH+i-1)}, {sr(S_SLOT)}, {i*SLOT}")
        out_srd()

    def dpp(b, r):
        n = (4 * (b - r)) % 16
        ctl = "quad_perm:[0,1,2,3]" if n == 0 else f"row_ror:{n}"
        return f"{ctl} row_mask:0xf bank_mask:0x{1<<b:x}"

    def k_dpp(j, r):
        i, b = j % 8, (j // 8) % 4
        s_ = V_S + i
        d = V_DA + 4 * i + r
        if r == 0:
            a.op("dpp", f"v_mov_b32_dpp {vr(s_)}, {vr(d)} {dpp(b, 0)}", [s_], [d])
        else:
            a.op("dpp", f"v_add_f32_dpp {vr(s_)}, {vr(d)}, {vr(s_)} {dpp(b, r)}", [s_], [d, s_])

    def v_perms(j, z):
        T, p_ = (j - NK) // 8, (j % 8) // 2
        stg = V_STG + 32 * (T % 2)
        for q in range(4):
            lo, hi = lbuf(j - 1) + q, lbuf(j) + q
            d = stg + 8 * q + 4 * z + p_
            a.op("valu", f"v_perm_b32 {vr(d)}, {vr(hi)}, {vr(lo)}, {sr(S_SELHI if z else S_SELLO)}", [d], [lo, hi])

    def step(j):
        if j < NK:
            if j == 0:
                stamp(2)
            d = V_DA + 4 * (j % 8)
            a.op("mfma", f"v_mfma_f32_16x16x32_bf16 {vr(d,4)}, {vr(lbuf(j),4)}, {vr(V_Q,4)}, 0", R4(d), [])
        for r in range(4):
            jj = j - 2 - r
            if 0 <= jj < NK:
                k_dpp(jj, r)
        jj = j - 6
        if 0 <= jj < NK and (jj // 8) % 4 == 3:
            s_ = V_S + jj % 8
            a.op("valu", f"v_max_f32 {vr(V_M)}, {vr(V_M)}, {vr(s_)}", [V_M], [V_M, s_])
            if jj % 4 == 3:
                h = (jj % 8) // 4
                a(f"ds_write_b128 {vr(V_LW)}, {vr(V_S+4*h,4)} offset:{LDS_S+1024*h}")
                if h == 1:
                    a(f"v_add_u32 {vr(V_LW)}, 2048, {vr(V_LW)}")
        if NK <= j < NL and j % 2 == 1:
            v_perms(j, 0)
        if NK <= j - 1 < NL and (j - 1) % 2 == 1:
            v_perms(j - 1, 1)

    fifo = []

    def allreduce_fns(op, reg):
        def f1():
            a.op("dpp", f"{op}_dpp {vr(reg)}, {vr(reg)}, {vr(reg)} row_ror:4 row_mask:0xf bank_mask:0xf", [reg], [reg])
        def f2():
            a.op("dpp", f"{op}_dpp {vr(reg)}, {vr(reg)}, {vr(reg)} row_ror:8 row_mask:0xf bank_mask:0xf", [reg], [reg])
            a.op("valu", f"v_mov_b32 {vr(V_T0)}, {vr(reg)}", [V_T0], [reg])
        def f3():
            a.op("dpp", f"v_permlane32_swap_b32 {vr(V_T0)}, {vr(reg)}", [V_T0, reg], [V_T0, reg])
            a("s_nop 0")
            a.op("valu", f"{op} {vr(reg)}, {vr(V_T0)}, {vr(reg)}", [reg], [V_T0, reg])
            a.op("valu", f"v_mov_b32 {vr(V_T0)}, {vr(reg)}", [V_T0], [reg])
        def f4():
            a.op("dpp", f"v_permlane16_swap_b32 {vr(V_T0)}, {vr(reg)}", [V_T0, reg], [V_T0, reg])
            a("s_nop 0")
            a.op("valu", f"{op} {vr(reg)}, {vr(V_T0)}, {vr(reg)}", [reg], [V_T0, reg])
        return [f1, f2, f3, f4]

    def rd():
        a(f"ds_read_b128 {vr(V_S,4)}, {vr(V_LR)} offset:{LDS_S}")
        a(f"ds_read_b128 {vr(V_S+4,4)}, {vr(V_LR)} offset:{LDS_S+1024}")
        a(f"v_add_u32 {vr(V_LR)}, 2048, {vr(V_LR)}")

    def fm(lo):
        def f():
            if lo == 0:
                a("s_waitcnt lgkmcnt(0)")
            for i in range(V_S + lo, V_S + lo + 4):
                a.op("valu", f"v_fma_f32 {vr(i)}, {vr(i)}, {sr(S_C)}, -{vr(V_M)}", [i], [i, V_M])
        return f

    def ex(lo):
        def f():
            for i in range(V_S + lo, V_S + lo + 2):
                a.op("trans", f"v_exp_f32 {vr(i)}, {vr(i)}", [i], [i])
        return f

    def cv():
        for i in range(4):
            a.op("valu", f"v_cvt_pk_bf16_f32 {vr(V_P+i)}, {vr(V_S+2*i)}, {vr(V_S+2*i+1)}", [V_P + i], [V_S + 2 * i, V_S + 2 * i + 1])

    def add(d, x, y):
        a.op("valu", f"v_add_f32 {vr(d)}, {vr(x)}, {vr(y)}", [d], [x, y])

    def s1():
        for i in range(0, 8, 2):
            add(V_S + i, V_S + i, V_S + i + 1)

    def s2():
        add(V_S, V_S, V_S + 2)
        add(V_S + 4, V_S + 4, V_S + 6)
        add(V_S, V_S, V_S + 4)
        add(V_L, V_L, V_S)

    def mask_item(T):
        def f():
            PM = V_PM + 4 * (T % 2)
            for i in range(4):
                a.op("valu", f"v_cndmask_b32 {vr(PM+i)}, 0, {vr(V_P+i)}, {sr(S_MASK+2*(T%4),2)}", [PM + i], [V_P + i])
        return f

    def pv_item(T, dd):
        def f():
            PM = V_PM + 4 * (T % 2)
            bq = V_STG + 32 * (T % 2) + 4 * dd
            d = V_DA + 4 * dd
            extra = R4(d) if T == NT - 1 else []
            a.op("mfma", f"v_mfma_f32_16x16x32_bf16 {vr(d,4)}, {vr(PM,4)}, {vr(bq,4)}, {'0' if T == 0 else vr(d,4)}", R4(d), R4(PM) + R4(bq) + extra)
        return f

    def mscale():
        a.op("valu", f"v_mul_f32 {vr(V_M)}, {sr(S_C)}, {vr(V_M)}", [V_M], [V_M])
        stamp(4)

    pre = [fm(0), fm(4), ex(0), ex(2), ex(4), ex(6)]
    fifo.append((NK + 5, None, lambda: (stamp(3), rd()), False))
    for f in allreduce_fns("v_max_f32", V_M) + [mscale] + pre + [cv, mask_item(0)]:
        fifo.append((NK + 5, None, f, False))
    ORDER = [0, 2, 4, 6, 1, 3, 5, 7]
    for T in range(NT - 1):
        A, b = T // 4, T % 4
        base = NK + 8 * T
        lastg = A == NA - 1
        for dd in ORDER:
            fifo.append((base + 7 + (dd % 2), base + 17, pv_item(T, dd), False))
        side = []
        if b != 3 and T + 1 < NT - 1:
            side.append((mask_item(T + 1), False))
        if b == 0:
            side += [(s1, False), (s2, False), (rd, lastg)]
        if b == 1:
            side += [(f, lastg) for f in pre[:3]]
        if b == 2 and not lastg:
            side += [(f, False) for f in pre[3:]]
        if b == 3:
            side += [(cv, False), (mask_item(T + 1), False)]
        for f, opt in side:
            fifo.append((0, None, f, opt))

    def red(stage, lo, hi):
        def f():
            for dd in range(lo, hi):
                d = V_DA + 4 * dd
                if stage == 0:
                    a.op("dpp", f"v_permlane32_swap_b32 {vr(d)}, {vr(d+2)}", [d, d + 2], [d, d + 2])
                    a.op("dpp", f"v_permlane32_swap_b32 {vr(d+1)}, {vr(d+3)}", [d + 1, d + 3], [d + 1, d + 3])
                elif stage == 1:
                    add(d, d, d + 2)
                    add(d + 1, d + 1, d + 3)
                elif stage == 2:
                    a.op("dpp", f"v_permlane16_swap_b32 {vr(d)}, {vr(d+1)}", [d, d + 1], [d, d + 1])
                else:
                    add(d, d, d + 1)
        return f

    def factors():
        a("s_waitcnt lgkmcnt(0)")
        MW, LW = OWN + 8, OWN + 9
        a.op("valu", f"v_max_f32 {vr(MW)}, {vr(ML)}, {vr(ML+2)}", [MW], [ML, ML + 2])
        for r in (ML, ML + 2, V_F):
            a.op("valu", f"v_sub_f32 {vr(r)}, {vr(r)}, {vr(MW)}", [r], [r, MW])
        for r in (ML, ML + 2, V_F):
            a.op("trans", f"v_exp_f32 {vr(r)}, {vr(r)}", [r], [r])
        a.op("valu", f"v_mul_f32 {vr(LW)}, {vr(ML)}, {vr(ML+1)}", [LW], [ML, ML + 1])
        a.op("valu", f"v_fmac_f32 {vr(LW)}, {vr(ML+2)}, {vr(ML+3)}", [LW], [ML + 2, ML + 3, LW])
        a.op("valu", f"v_min_u32 {vr(MW)}, 0xfffffffe, {vr(MW)}", [MW], [MW])
        a.op("valu", f"v_min_u32 {vr(LW)}, 0xfffffffe, {vr(LW)}", [LW], [LW])
        a(f"v_readfirstlane_b32 {sr(S_LOC)}, {vr(OWN+10)}")

    fifo.append((0, None, factors, False))
    for stage in range(4):
        fifo.append((0, None, red(stage, 0, 4), False))
        fifo.append((0, None, red(stage, 4, 8), False))

    issue("Q", f"buffer_load_dwordx4 {vr(V_Q,4)}, {vr(V_T2)}, {sr(SRD_Q,4)}, 0 offen")
    st = dict(nstep=0, fi=0, drain=False)

    def pop():
        e, dl, fn, opt = fifo[st["fi"]]
        st["fi"] += 1
        if opt and st["drain"]:
            return False
        fn()
        return True

    def run_step():
        j = st["nstep"]
        last_due = max([k for k in range(st["fi"], len(fifo)) if fifo[k][1] is not None and fifo[k][1] <= j], default=-1)
        while st["fi"] <= last_due:
            assert fifo[st["fi"]][0] < j
            pop()
        step(j)
        st["nstep"] += 1

    def run_fifo(n):
        while n > 0 and st["fi"] < len(fifo) and fifo[st["fi"]][0] < st["nstep"]:
            if pop():
                n -= 1

    did_setup = False
    marks = []
    for i in range(NL):
        need = i - depth(i)
        if need >= 0 and not did_setup:
            setup_rest()
            did_setup = True
        marks.append(len(a.lines))
        if need >= 0:
            wait_for(f"L{need}")
        if i >= 16:
            old = i - 16
            must = old if old < NK else (old | 1) + 1
            while st["nstep"] <= must:
                wait_for(f"L{min(st['nstep'], i-1)}")
                run_step()
        emit_load(i)
        if i == NL - 1 - args.pfat:
            a.c("bring this workgroup's slot lines into L2, so that the partial written later can be read from there")
            for k_ in range(3):
                issue(f"PF{k_}", f"buffer_load_dwordx4 {vr(PB+4*k_,4)}, {vr(V_OFFV)}, {sr(SRD_WS,4)}, {sr(S_SLOT)} offen offset:{1024*k_} {args.pfflags}".rstrip())
        ran = 0
        while did_setup and ran < args.spl and st["nstep"] < NL and is_done(f"L{st['nstep']}"):
            run_step()
            ran += 1
        run_fifo(args.ppl)
    marks.append(len(a.lines))
    if args.fold:
        chunks = [a.lines[marks[i]:marks[i + 1]] for i in range(NL)]
        outl = list(a.lines[:marks[0]])
        i = 0
        nloop = 0
        while i < NL:
            e = i
            while e + 32 < NL and chunks[e] == chunks[e + 32]:
                e += 1
            if e - i >= 32:
                total = e + 32 - i
                full, part = divmod(total, 32)
                outl.append(f"    s_mov_b32 {sr(S_CNT)}, {full if part else full - 1}")
                outl.append(f"L_loop{nloop}:")
                for k in range(32):
                    if part and k == part:
                        outl.append(f"    s_sub_u32 {sr(S_CNT)}, {sr(S_CNT)}, 1")
                        outl.append(f"    s_cbranch_scc1 L_done{nloop}")
                    outl += chunks[i + k]
                if part:
                    outl.append(f"    s_branch L_loop{nloop}")
                else:
                    outl.append(f"    s_sub_u32 {sr(S_CNT)}, {sr(S_CNT)}, 1")
                    outl.append(f"    s_cbranch_scc0 L_loop{nloop}")
                outl.append(f"L_done{nloop}:")
                nloop += 1
                i += total
            else:
                outl += chunks[i]
                i += 1
        a.lines = outl

    st["drain"] = True
    assert all(f[2] not in (s1, s2) for f in fifo[st["fi"]:]), "row sums must be complete here"
    a.c("all loads issued: share (max, sum) of the two waves, take the ticket")
    for f in allreduce_fns("v_add_f32", V_L):
        f()
    a(f"s_lshl_b32 {sr(S_T1)}, {sr(S_WAVE)}, 5")
    a(f"v_and_b32 {vr(V_T1)}, 3, v0")
    a(f"v_lshl_add_u32 {vr(V_T1)}, {vr(V_T1)}, 3, {sr(S_T1)}")
    a(f"ds_write_b64 {vr(V_T1)}, {vr(V_M,2)} offset:{LDS_ML}")
    a(f"v_bfe_u32 {vr(V_T1)}, v0, 4, 2")
    a(f"v_lshlrev_b32 {vr(V_T1)}, 3, {vr(V_T1)}")
    a(f"v_add_u32 {vr(V_T0)}, {sr(S_T1)}, {vr(V_T1)}")
    a(f"v_and_b32 {vr(V_T2)}, 0x3c, v0")
    a(f"v_lshrrev_b32 {vr(V_TA)}, 2, {vr(V_T2)}")
    a(f"v_and_b32 {vr(V_TA)}, 3, {vr(V_TA)}")
    a(f"v_and_b32 {vr(V_T2)}, 0x30, {vr(V_T2)}")
    a(f"v_add3_u32 {vr(V_T2)}, {vr(V_T2)}, {vr(V_TA)}, 12")
    a(f"v_lshlrev_b32 {vr(V_T2)}, 2, {vr(V_T2)}")
    a(f"s_lshl_b32 {sr(S_T1)}, {sr(S_BH)}, 2")
    a(f"v_mov_b32 {vr(V_TA)}, {sr(S_T1)}")
    a(f"v_mov_b32 {vr(V_ONE)}, 1")
    a(f"v_mov_b32 {vr(V_TK)}, 0")
    a(f"s_cmp_lg_u32 {sr(S_WAVE)}, 0")
    a("s_waitcnt lgkmcnt(0)")
    a.c("passes only once the helper wave has ended, i.e. this workgroup's slot marking is complete")
    a("s_barrier")
    a("s_cbranch_scc1 L_noticket")
    a.count = False
    a("s_mov_b64 exec, 1")
    a(f"global_atomic_add {vr(V_TK)}, {vr(V_TA)}, {vr(V_ONE)}, {sr(S_DBG,2)} sc0")
    a("s_mov_b64 exec, -1")
    a.count = True
    a.label("L_noticket")
    a(f"v_mov_b32 {vr(OWN+11)}, 0")
    a(f"ds_read_b32 {vr(OWN+10)}, {vr(OWN+11)} offset:{LDS_LOC}")
    a(f"ds_read_b64 {vr(ML,2)}, {vr(V_T1)} offset:{LDS_ML}")
    a(f"ds_read_b64 {vr(ML+2,2)}, {vr(V_T1)} offset:{LDS_ML+32}")
    a(f"ds_read_b32 {vr(V_F)}, {vr(V_T0)} offset:{LDS_ML}")
    PL = V_PM + 4 * ((NT - 1) % 2)
    assert all(not (f[1] == NK + 8 * (NT - 3) + 17) for f in fifo[st["fi"]:]), "tile NT-3 must be multiplied"
    a.c("last tile: P with rows ordered by head, so its product needs no bank fold")
    for i in range(4):
        a(f"ds_bpermute_b32 {vr(PL+i)}, {vr(V_T2)}, {vr(V_P+i)}")
    a(f"s_mov_b32 {sr(S_SPIN)}, 0x20000")

    while st["nstep"] < NL - 1:
        wait_for(f"L{st['nstep']}")
        run_step()
        run_fifo(args.dpl)
    run_fifo(1000)
    assert st["fi"] == len(fifo), (st, len(fifo))

    PSET = [PB, V_BUF]

    def poll_loads(z=0):
        pb = PSET[z]
        for s_ in range(3):
            a(f"buffer_load_dwordx4 {vr(pb+12*s_+8,4)}, {vr(V_OFFV)}, {sr(SRD_WS,4)}, {sr(S_OTH+s_)} offen offset:2048 {hfl}")
        for s_ in range(3):
            a(f"buffer_load_dwordx4 {vr(pb+12*s_,4)}, {vr(V_OFFV)}, {sr(SRD_WS,4)}, {sr(S_OTH+s_)} offen {hfl}")
            a(f"buffer_load_dwordx4 {vr(pb+12*s_+4,4)}, {vr(V_OFFV)}, {sr(SRD_WS,4)}, {sr(S_OTH+s_)} offen offset:1024 {hfl}")

    a("s_waitcnt vmcnt(0)")
    state["done"] = len(loads) - 1
    stamp(5)
    a(f"v_readfirstlane_b32 {sr(S_TK)}, {vr(V_TK)}")
    run_step()
    a(f"s_cmp_lg_u32 {sr(S_TK)}, {NSPLIT-1}")
    a("s_cbranch_scc1 L_nopoll")
    a.count = False
    poll_loads()
    a.count = True
    a.label("L_nopoll")
    run_step()
    for dd in ORDER:
        pv_item(NT - 1, dd)()
    a(f"s_cmp_lg_u32 {sr(S_WAVE)}, 0")
    a("s_cbranch_scc1 L_send")
    saved = (a.pos, dict(a.wr))
    a("s_barrier")
    a(f"ds_read_b128 {vr(OTH,4)}, {vr(V_OFFV)} offset:{LDS_O}")
    a(f"ds_read_b128 {vr(OTH+4,4)}, {vr(V_OFFV)} offset:{LDS_O+1024}")
    stamp(6)
    a(f"s_cmp_eq_u32 {sr(S_TK)}, {NSPLIT-1}")
    a("s_waitcnt lgkmcnt(0)")
    for e in ORDER:
        a.op("valu", f"v_fma_f32 {vr(OWN+e)}, {vr(V_F)}, {vr(V_DA+4*e)}, {vr(OTH+e)}", [OWN + e], [V_F, V_DA + 4 * e])
    stamp(7)
    a("s_cbranch_scc1 L_again1")
    a.c("publish the partial; no word equals the all-ones marker")
    for e in range(8):
        a(f"v_min_u32 {vr(OWN+e)}, 0xfffffffe, {vr(OWN+e)}")
    a(f"s_cmp_eq_u32 {sr(S_LOC)}, 1")
    a("s_cbranch_scc0 L_pubfar")
    for i in (0, 1, 2):
        a(f"buffer_store_dwordx4 {vr(OWN+4*i,4)}, {vr(V_OFFV)}, {sr(SRD_WS,4)}, {sr(S_SLOT)} offen offset:{1024*i}")
    a("s_branch L_end")
    a.label("L_pubfar")
    for i in (0, 1, 2):
        a(f"buffer_store_dwordx4 {vr(OWN+4*i,4)}, {vr(V_OFFV)}, {sr(SRD_WS,4)}, {sr(S_SLOT)} offen offset:{1024*i} {hfl}")
    a("s_branch L_end")

    a.label("L_send")
    a.pos, a.wr = saved
    for e in ORDER:
        a.op("valu", f"v_mul_f32 {vr(OTH+e)}, {vr(V_F)}, {vr(V_DA+4*e)}", [OTH + e], [V_F, V_DA + 4 * e])
    a(f"ds_write_b128 {vr(V_OFFV)}, {vr(OTH,4)} offset:{LDS_O}")
    a(f"ds_write_b128 {vr(V_OFFV)}, {vr(OTH+4,4)} offset:{LDS_O+1024}")
    a("s_waitcnt lgkmcnt(0)")
    a("s_barrier")
    a("s_branch L_end")

    def finish(z):
        y = 1 - z if args.sets == 2 else 0
        X = 9 if args.sets == 2 else 0
        pb = PSET[y]
        part = lambda s_: OWN if s_ == 0 else pb + 12 * (s_ - 1)
        a.label(f"L_again{z}")
        poll_loads(z)
        if args.sets == 1:
            a.label("L_again1")
        a(f"s_waitcnt vmcnt({X+6})")
        a(f"v_max3_u32 {vr(V_T1)}, {vr(pb+8)}, {vr(pb+20)}, {vr(pb+32)}")
        a(f"v_max3_f32 {vr(V_T0)}, {vr(OWN+8)}, {vr(pb+8)}, {vr(pb+20)}")
        a(f"v_cmp_eq_u32 vcc, -1, {vr(V_T1)}")
        a(f"v_max_f32 {vr(V_T0)}, {vr(V_T0)}, {vr(pb+32)}")
        a(f"s_sub_u32 {sr(S_SPIN)}, {sr(S_SPIN)}, 1")
        a(f"s_cbranch_scc1 L_go{y}")
        a(f"s_cbranch_vccnz L_again{y}")
        a.label(f"L_go{y}")
        a.c("an unwritten word is a NaN and poisons the result; that is checked before the store")
        for s_ in range(4):
            a(f"v_sub_f32 {vr(FAC+s_)}, {vr(part(s_)+8)}, {vr(V_T0)}")
        for s_ in range(4):
            a(f"v_exp_f32 {vr(FAC+s_)}, {vr(FAC+s_)}")
        a("s_nop 0")
        a(f"v_mul_f32 {vr(V_T1)}, {vr(FAC)}, {vr(OWN+9)}")
        for s_ in range(1, 4):
            a(f"v_fmac_f32 {vr(V_T1)}, {vr(FAC+s_)}, {vr(part(s_)+9)}")
        a(f"v_rcp_f32 {vr(V_T1)}, {vr(V_T1)}")
        a("s_nop 0")
        for s_ in range(4):
            a(f"v_mul_f32 {vr(FAC+s_)}, {vr(FAC+s_)}, {vr(V_T1)}")
        for e in range(8):
            a(f"v_mul_f32 {vr(OUT+e)}, {vr(FAC)}, {vr(OWN+e)}")
        for s_ in range(1, 4):
            a(f"s_waitcnt vmcnt({X+2*(3-s_)})")
            for e in range(8):
                a(f"v_fmac_f32 {vr(OUT+e)}, {vr(FAC+s_)}, {vr(part(s_)+e)}")
        a(f"v_cmp_u_f32 vcc, {vr(OUT)}, {vr(OUT+1)}")
        a(f"v_cmp_u_f32 {sr(S_NAN,2)}, {vr(OUT+2)}, {vr(OUT+3)}")
        a(f"v_cvt_pk_bf16_f32 {vr(OUT+8)}, {vr(OUT)}, {vr(OUT+1)}")
        a(f"s_or_b64 {sr(S_NAN,2)}, {sr(S_NAN,2)}, vcc")
        a(f"v_cmp_u_f32 vcc, {vr(OUT+4)}, {vr(OUT+5)}")
        a(f"v_cvt_pk_bf16_f32 {vr(OUT+9)}, {vr(OUT+2)}, {vr(OUT+3)}")
        a(f"s_or_b64 {sr(S_NAN,2)}, {sr(S_NAN,2)}, vcc")
        a(f"v_cmp_u_f32 vcc, {vr(OUT+6)}, {vr(OUT+7)}")
        a(f"v_cvt_pk_bf16_f32 {vr(OUT+10)}, {vr(OUT+4)}, {vr(OUT+5)}")
        a(f"v_cvt_pk_bf16_f32 {vr(OUT+11)}, {vr(OUT+6)}, {vr(OUT+7)}")
        a(f"s_or_b64 {sr(S_NAN,2)}, {sr(S_NAN,2)}, vcc")
        a("s_cbranch_scc0 L_store")
        a.c("NaN in the result: poll again if a marker word is still there, else the NaN is genuine")
        regs = [pb + 12 * s_ + e for s_ in range(3) for e in range(10)]
        a(f"v_max3_u32 {vr(V_T0)}, {vr(regs[0])}, {vr(regs[1])}, {vr(regs[2])}")
        a(f"v_max3_u32 {vr(V_T1)}, {vr(regs[3])}, {vr(regs[4])}, {vr(regs[5])}")
        rest = regs[6:]
        k = 0
        while rest:
            t = V_T0 if k % 2 == 0 else V_T1
            a(f"v_max3_u32 {vr(t)}, {vr(t)}, {vr(rest[0])}, {vr(rest[1])}")
            rest = rest[2:]
            k += 1
        a(f"v_max_u32 {vr(V_T0)}, {vr(V_T0)}, {vr(V_T1)}")
        a(f"v_cmp_eq_u32 vcc, -1, {vr(V_T0)}")
        a(f"s_cmp_lt_i32 {sr(S_SPIN)}, 0")
        a("s_cbranch_scc1 L_store")
        a("s_nop 2")
        a(f"s_cbranch_vccnz L_again{y}")
        a("s_branch L_store")

    finish(0)
    if args.sets == 2:
        finish(1)
    a.label("L_store")
    stamp(8)
    a(f"buffer_store_dwordx4 {vr(OUT+8,4)}, {vr(V_OFFV)}, {sr(SRD_OUT,4)}, {sr(S_OOFF)} offen {args.oflags}".rstrip())
    if args.stamps:
        a("s_waitcnt vmcnt(0)")
    stamp(9)
    a.label("L_end")
    dump_stamps()
    a.label("L_exit")
    a("s_endpgm")

    a.label("L_helper")
    a.c("helper wave: mark this workgroup's partial slot as not yet written (all-ones words), and find out")
    a.c("with a challenge/echo through d_ws whether all four splits run on this XCD (then L2 carries the hand-off)")
    H_OWN, H_PEER, H_X, H_N, H_C, H_A = 16, 17, 18, 19, 20, 21
    CHAL, ACK = 3072, 3200
    ws_srd()
    a(f"v_lshrrev_b32 {vr(V_T0)}, 4, {vr(V_OFFV)}")
    a(f"v_lshlrev_b32 {vr(V_T1)}, 2, {vr(V_T0)}")
    a(f"v_add_u32 {vr(H_OWN)}, {sr(S_SLOT)}, {vr(V_T1)}")
    a(f"v_lshlrev_b32 {vr(V_T0)}, 12, {vr(V_T0)}")
    a(f"v_xor_b32 {vr(H_PEER)}, {vr(V_T0)}, {vr(H_OWN)}")
    for i in range(4):
        a(f"v_mov_b32 {vr(V_P+i)}, -1")
    a(f"s_getreg_b32 {sr(S_T1)}, hwreg(HW_REG_XCC_ID, 0, 4)")
    a("s_mov_b64 exec, 14")
    a(f"buffer_load_dword {vr(H_X)}, {vr(H_OWN)}, {sr(SRD_WS,4)}, 0 offen offset:{ACK} {hfl}")
    a("s_mov_b64 exec, -1")
    for i in range(3):
        a(f"buffer_store_dwordx4 {vr(V_P,4)}, {vr(V_OFFV)}, {sr(SRD_WS,4)}, {sr(S_SLOT)} offen offset:{1024*i}")
    a("s_mov_b64 exec, 14")
    a("s_waitcnt vmcnt(0)")
    a(f"v_add_u32 {vr(H_N)}, 16, {vr(H_X)}")
    a(f"v_and_b32 {vr(H_N)}, -16, {vr(H_N)}")
    a(f"buffer_store_dword {vr(H_N)}, {vr(H_OWN)}, {sr(SRD_WS,4)}, 0 offen offset:{CHAL}")
    a(f"v_or_b32 {vr(H_X)}, {sr(S_T1)}, {vr(H_N)}")
    a(f"s_mov_b32 {sr(S_CNT)}, {args.hrounds-1}")
    a.label("L_echo")
    a(f"s_sleep {args.hsleep}")
    a(f"buffer_load_dword {vr(H_C)}, {vr(H_PEER)}, {sr(SRD_WS,4)}, 0 offen offset:{CHAL} {hfl}")
    a("s_waitcnt vmcnt(0)")
    a(f"v_and_b32 {vr(H_C)}, -16, {vr(H_C)}")
    a(f"v_or_b32 {vr(H_C)}, {sr(S_T1)}, {vr(H_C)}")
    a(f"buffer_store_dword {vr(H_C)}, {vr(H_PEER)}, {sr(SRD_WS,4)}, 0 offen offset:{ACK}")
    a(f"s_sub_u32 {sr(S_CNT)}, {sr(S_CNT)}, 1")
    a("s_cbranch_scc0 L_echo")
    a(f"s_sleep {args.hsleep}")
    a(f"buffer_load_dword {vr(H_A)}, {vr(H_OWN)}, {sr(SRD_WS,4)}, 0 offen offset:{ACK} {hfl}")
    a("s_waitcnt vmcnt(0)")
    a(f"v_cmp_eq_u32 vcc, {vr(H_A)}, {vr(H_X)}")
    a("s_mov_b64 exec, -1")
    a(f"v_mov_b32 {vr(V_T0)}, 0")
    a("s_cmp_eq_u64 vcc, 14")
    a(f"s_cselect_b32 {sr(S_T0)}, {0 if args.nolocal else 1}, 0")
    a(f"v_mov_b32 {vr(V_T1)}, {sr(S_T0)}")
    a(f"ds_write_b32 {vr(V_T0)}, {vr(V_T1)} offset:{LDS_LOC}")
    a(f"s_cmp_eq_u32 {sr(S_T0)}, 1")
    a("s_cbranch_scc1 L_hend")
    a.c("not verified: the marking has to reach memory")
    for i in range(3):
        a(f"buffer_store_dwordx4 {vr(V_P,4)}, {vr(V_OFFV)}, {sr(SRD_WS,4)}, {sr(S_SLOT)} offen offset:{1024*i} {hfl}")
    a.label("L_hend")
    a("s_waitcnt vmcnt(0) lgkmcnt(0)")
    a("s_endpgm")

    nvgpr = V_END
    accum = min(256, (nvgpr + 3) // 4 * 4)
    out = HEADER
    out += f"; @launch grid=({NWG},1,1) block=({(NW+1)*64},1,1) lds={LDS_BYTES}\n"
    out += '.amdgcn_target "amdgcn-amd-amdhsa--gfx950"\n.text\n'
    out += f".globl {NAME}\n.p2align 8\n.type {NAME},@function\n{NAME}:\n"
    out += a.text()
    out += f""".section .rodata,"a"
.p2align 6
.amdhsa_kernel {NAME}
  .amdhsa_next_free_vgpr {nvgpr}
  .amdhsa_next_free_sgpr {S_NEXT}
  .amdhsa_accum_offset {accum}
  .amdhsa_group_segment_fixed_size 0
  .amdhsa_kernarg_size 48
  .amdhsa_user_sgpr_count 2
  .amdhsa_user_sgpr_kernarg_segment_ptr 1
  .amdhsa_system_sgpr_workgroup_id_x 1
.end_amdhsa_kernel
"""
    return out


if __name__ == "__main__":
    ap = argparse.ArgumentParser()
    ap.add_argument("--d", type=int, default=11)
    ap.add_argument("--bf", type=float, default=2.0)
    ap.add_argument("--bd", type=int, default=13)
    ap.add_argument("--pfflags", default="")
    ap.add_argument("--strict", type=lambda x: int(x, 0), default=0)
    ap.add_argument("--pfat", type=int, default=8)
    ap.add_argument("--hrounds", type=int, default=3)
    ap.add_argument("--hsleep", type=int, default=16)
    ap.add_argument("--nolocal", type=int, default=0)
    ap.add_argument("--sets", type=int, default=1)
    ap.add_argument("--sn", type=int, default=0)
    ap.add_argument("--sd", type=int, default=13)
    ap.add_argument("--ppl", type=int, default=2, help="side items per load slot")
    ap.add_argument("--dpl", type=int, default=4, help="side items per step while draining")
    ap.add_argument("--spl", type=int, default=2, help="max steps per load slot")
    ap.add_argument("--fold", type=int, default=1)
    ap.add_argument("--touch", type=int, default=0)
    ap.add_argument("--padx", default="")
    ap.add_argument("--flags", default="nt")
    ap.add_argument("--hflags", default="sc1")
    ap.add_argument("--oflags", default="")
    ap.add_argument("--rot", type=int, default=16)
    ap.add_argument("--stamps", type=int, default=0)
    ap.add_argument("-o", default="standalone__gqa_softmax__decode.s")
    args = ap.parse_args()
    open(args.o, "w").write(gen(args))
```

```python
import argparse
import math
import struct

HEADER = """; GQA decode attention (B=8, Hq=32, Hkv=8, Sk=8192, D=128), split-K flash decoding.
"""
NAME = "standalone__gqa_softmax__decode_kernel"


def f32bits(x):
    return struct.unpack("<I", struct.pack("<f", x))[0]


class Asm:
    def __init__(self):
        self.lines = []
        self.pos = 0
        self.count = True
        self.wr = {}

    def __call__(self, s):
        self.lines.append("    " + s)
        if self.count:
            self.pos += int(s.split()[1]) + 1 if s.startswith("s_nop") else 1

    def op(self, kind, text, writes, reads):
        need = 0
        for r in set(reads) | (set(writes) if kind != "mfma" else set()):
            if r not in self.wr:
                continue
            p_, k = self.wr[r]
            dist = self.pos - p_ - 1
            req = 0
            if k == "mfma":
                req = 8
            elif r in reads or kind == "dpp":
                if kind in ("dpp", "mfma"):
                    req = 2
                elif k == "trans" and kind != "trans":
                    req = 1
            need = max(need, req - dist)
        if need > 0:
            self(f"s_nop {need-1}")
        here = self.pos
        self(text)
        for r in writes:
            self.wr[r] = (here, "valu" if kind in ("dpp", "mem") else kind)

    def label(self, l):
        self.lines.append(l + ":")

    def c(self, s):
        self.lines.append("    ; " + s)

    def text(self):
        return "\n".join(self.lines) + "\n"


def vr(a, n=1):
    return f"v{a}" if n == 1 else f"v[{a}:{a+n-1}]"


def sr(a, n=1):
    return f"s{a}" if n == 1 else f"s[{a}:{a+n-1}]"


def gen(args):
    NSPLIT = 4
    NW = 2
    NB = 2
    KPWG = 8192 // NSPLIT
    KPW = KPWG // NW
    NT = KPW // 32
    NA = NT // 4
    NWG = 64 * NSPLIT
    flags = args.flags
    hfl = args.hflags
    SLOT = 4096
    LDS_O = 0
    LDS_ML = 2048
    LDS_LOC = 2176
    LDS_S = 3072
    LDS_BYTES = LDS_S + NW * (NA + 1) * 2048
    scale_log2e = (128 ** -0.5) * math.log2(math.e)

    a = Asm()
    S_Q, S_K, S_V, S_OUT, S_DBG, S_WS = 4, 6, 8, 10, 12, 14
    SRD_K, SRD_V, SRD_Q, SRD_WS, SRD_OUT = 16, 20, 24, 28, 32
    S_BH, S_SPLIT, S_WAVE, S_T0, S_T1 = 36, 37, 38, 39, 40
    S_OFFK, S_OFFV, S_SELLO, S_SELHI, S_C = 41, 42, 43, 44, 45
    S_MASK = 46
    S_SLOT = 54
    S_OTH = 55
    S_SPIN, S_TK, S_CNT, S_OOFF = 58, 59, 60, 61
    S_NAN = 62
    S_LOC = 64
    S_NEXT = 66
    S_ST = S_NEXT
    NSTAMP = 10
    if args.stamps:
        S_NEXT = S_ST + 2 * NSTAMP + 4

    def stamp(i, wait=False):
        if args.stamps:
            a(f"s_memrealtime {sr(S_ST+2*i,2)}")
            if wait:
                a("s_waitcnt lgkmcnt(0)")

    def dump_stamps():
        if not args.stamps:
            return
        SB = S_ST + 2 * NSTAMP
        a("s_waitcnt lgkmcnt(0)")
        if args.padx:
            sa, sb, amp, wg = (int(x) for x in args.padx.split(","))
            if wg >= 0:
                a(f"s_cmp_lg_u32 s2, {wg}")
                a("s_cbranch_scc1 L_exit")
            a(f"s_cmp_eq_u32 {sr(S_ST+2*sb)}, 0")
            a("s_cbranch_scc1 L_exit")
            a(f"s_sub_u32 {sr(SB)}, {sr(S_ST+2*sb)}, {sr(S_ST+2*sa)}")
            a(f"s_min_u32 {sr(SB)}, {sr(SB)}, 5000")
            a(f"s_mul_i32 {sr(SB)}, {sr(SB)}, {amp}")
            a(f"s_add_u32 {sr(SB)}, {sr(SB)}, 6000")
            a(f"s_add_u32 {sr(SB)}, {sr(SB)}, {sr(S_ST)}")
            a.label("L_spin")
            a(f"s_memrealtime {sr(SB+2,2)}")
            a("s_waitcnt lgkmcnt(0)")
            a(f"s_sub_u32 {sr(SB+1)}, {sr(SB+2)}, {sr(SB)}")
            a(f"s_cmp_lt_i32 {sr(SB+1)}, 0")
            a("s_cbranch_scc1 L_spin")
            return
        a(f"s_mul_i32 {sr(SB+2)}, s2, {NW+1}")
        a(f"s_add_u32 {sr(SB+2)}, {sr(SB+2)}, {sr(S_WAVE)}")
        a(f"s_lshl_b32 {sr(SB+2)}, {sr(SB+2)}, 7")
        a(f"s_add_u32 {sr(SB+2)}, {sr(SB+2)}, {16<<20}")
        a(f"s_add_u32 {sr(SB)}, {sr(S_WS)}, {sr(SB+2)}")
        a(f"s_addc_u32 {sr(SB+1)}, {sr(S_WS+1)}, 0")
        a("s_mov_b64 exec, 1")
        a("v_mov_b32 v4, 0")
        for i in range(NSTAMP):
            a(f"v_mov_b32 v6, {sr(S_ST+2*i)}")
            a(f"v_mov_b32 v7, {sr(S_ST+2*i+1)}")
            a(f"global_store_dwordx2 v4, v[6:7], {sr(SB,2)} offset:{8*i}")
            a("s_nop 1")
        a("s_getreg_b32 s3, hwreg(HW_REG_XCC_ID)")
        a("v_mov_b32 v6, s3")
        a("s_getreg_b32 s3, hwreg(HW_REG_HW_ID)")
        a("v_mov_b32 v7, s3")
        a(f"global_store_dwordx2 v4, v[6:7], {sr(SB,2)} offset:{8*NSTAMP}")

    V_OFFK, V_OFFV, V_T0, V_T1, V_T2, V_M, V_L = 1, 2, 3, 4, 5, 6, 7
    V_Q = 8
    V_TA, V_ONE, V_TK, V_F = 8, 9, 10, 11
    V_P = 12
    V_PM = 16
    V_STG = 24
    V_DA = 88
    V_S = 120
    V_LW, V_LR = 128, 129
    V_H8 = 130
    V_BUF = 132
    OWN = V_BUF + 64
    PB = OWN + 12
    OTH = PB + 36
    ML = OTH + 8
    V_END = ML + 4
    assert V_END <= 256
    FREE = V_STG + 32 * ((NT - 2) % 2)
    FAC, OUT = FREE, FREE + 4
    R4 = lambda b_: list(range(b_, b_ + 4))

    a(f"s_cmp_ge_u32 s2, {NWG}")
    a("s_cbranch_scc1 L_exit")
    if args.stamps:
        for i in range(NSTAMP):
            a(f"s_mov_b64 {sr(S_ST+2*i,2)}, 0")
    stamp(0)
    a(f"s_load_dwordx8 {sr(4,8)}, s[0:1], 0")
    a(f"s_load_dwordx4 {sr(12,4)}, s[0:1], 32")
    a(f"v_lshrrev_b32 {vr(V_T0)}, 6, v0")
    a(f"v_and_b32 {vr(V_OFFV)}, 63, v0")
    a(f"v_readfirstlane_b32 {sr(S_WAVE)}, {vr(V_T0)}")
    a.c("id bits (0,1,2 | 3,4,5 | 6,7) -> bh bits (1,2,5 | 0,3,4), split: spreads DRAM stacks/banks (speed only)")
    a(f"s_and_b32 {sr(S_BH)}, s2, 3")
    a(f"s_lshl_b32 {sr(S_BH)}, {sr(S_BH)}, 1")
    a(f"s_bfe_u32 {sr(S_T0)}, s2, 0x10003")
    a(f"s_or_b32 {sr(S_BH)}, {sr(S_BH)}, {sr(S_T0)}")
    a(f"s_lshr_b32 {sr(S_T0)}, s2, 1")
    a(f"s_and_b32 {sr(S_T0)}, {sr(S_T0)}, 0x18")
    a(f"s_or_b32 {sr(S_BH)}, {sr(S_BH)}, {sr(S_T0)}")
    a(f"s_lshl_b32 {sr(S_T0)}, s2, 3")
    a(f"s_and_b32 {sr(S_T0)}, {sr(S_T0)}, 0x20")
    a(f"s_or_b32 {sr(S_BH)}, {sr(S_BH)}, {sr(S_T0)}")
    a(f"s_lshr_b32 {sr(S_SPLIT)}, s2, 6")
    a(f"v_and_b32 {vr(V_T0)}, 3, v0")
    a(f"v_bfe_u32 {vr(V_T1)}, v0, 2, 2")
    a(f"v_bfe_u32 {vr(V_T2)}, v0, 4, 2")
    a(f"v_lshlrev_b32 {vr(V_T2)}, 6, {vr(V_T2)}")
    a(f"v_lshl_add_u32 {vr(V_OFFK)}, {vr(V_T1)}, 8, {vr(V_T2)}")
    a(f"v_lshl_add_u32 {vr(V_OFFK)}, {vr(V_T0)}, 4, {vr(V_OFFK)}")
    a(f"v_lshl_add_u32 {vr(V_T2)}, {vr(V_T0)}, 8, {vr(V_T2)}")
    a(f"v_lshl_add_u32 {vr(V_T2)}, {vr(V_T1)}, 4, {vr(V_T2)}")
    a(f"v_lshlrev_b32 {vr(V_OFFV)}, 4, {vr(V_OFFV)}")
    a(f"s_lshl_b32 {sr(S_T0)}, {sr(S_BH)}, 21")
    a(f"s_lshl_b32 {sr(S_T1)}, {sr(S_SPLIT)}, 19")
    a(f"s_add_u32 {sr(S_T0)}, {sr(S_T0)}, {sr(S_T1)}")
    tile_stride = 8192 * NW
    nrec = KPWG * 256
    a(f"s_lshl_b32 {sr(S_OFFK)}, {sr(S_WAVE)}, 13")
    if args.rot:
        a.c("start phase inside the key range (wraps around): staggers DRAM bank changes")
        a(f"s_and_b32 {sr(S_T1)}, s2, 7")
        a(f"s_mul_i32 {sr(S_T1)}, {sr(S_T1)}, {args.rot*1024}")
        a(f"s_add_u32 {sr(S_OFFK)}, {sr(S_OFFK)}, {sr(S_T1)}")
    a(f"s_mov_b32 {sr(S_OFFV)}, {sr(S_OFFK)}")
    a(f"s_mov_b32 {sr(SRD_K+2)}, {nrec}")
    a(f"s_mov_b32 {sr(SRD_K+3)}, 0x20000")
    a(f"s_mov_b32 {sr(SRD_Q+2)}, 1024")
    a(f"s_mov_b32 {sr(SRD_Q+3)}, 0x20000")
    a(f"s_lshl_b32 {sr(S_OOFF)}, {sr(S_BH)}, 10")
    a(f"s_cmp_eq_u32 {sr(S_WAVE)}, {NW}")
    a("s_waitcnt lgkmcnt(0)")
    a("s_cbranch_scc1 L_helper")
    a(f"s_add_u32 {sr(SRD_K)}, {sr(S_K)}, {sr(S_T0)}")
    a(f"s_addc_u32 {sr(SRD_K+1)}, {sr(S_K+1)}, 0")
    a(f"s_add_u32 {sr(SRD_Q)}, {sr(S_Q)}, {sr(S_OOFF)}")
    a(f"s_addc_u32 {sr(SRD_Q+1)}, {sr(S_Q+1)}, 0")

    loads = []
    state = dict(done=-1)

    def issue(name, text):
        a(text)
        loads.append(name)

    def wait_for(name):
        k = loads.index(name)
        if k > state["done"]:
            n = len(loads) - 1 - k
            assert n <= 63
            a(f"s_waitcnt vmcnt({n})")
            state["done"] = k

    def is_done(name):
        return name in loads and loads.index(name) <= state["done"]

    NK = NT * 8
    NL = 2 * NK

    def lbuf(j):
        return V_BUF + 4 * (j % 16)

    def emit_load(i):
        j = i % 8
        if i < NK:
            voff, srd, soff = V_OFFK, SRD_K, S_OFFK
        else:
            voff, srd, soff = V_OFFV, SRD_V, S_OFFV
        issue(f"L{i}", f"buffer_load_dwordx4 {vr(lbuf(i),4)}, {vr(voff)}, {sr(srd,4)}, {sr(soff)} offen offset:{1024*(j%4)} {flags}".rstrip())
        if j % 4 == 3:
            inc = 4096 if j == 3 else tile_stride - 4096
            a(f"s_add_u32 {sr(soff)}, {sr(soff)}, {inc}")
            if j == 7 and args.rot:
                a(f"s_and_b32 {sr(soff)}, {sr(soff)}, {nrec-1}")

    def depth(i):
        if i < args.sn:
            return args.sd
        if i >= NL * args.bf:
            return args.bd
        return args.d - (1 if (args.strict >> (i % 8)) & 1 else 0)

    def ws_srd():
        a(f"s_mov_b32 {sr(SRD_WS)}, {sr(S_WS)}")
        a(f"s_mov_b32 {sr(SRD_WS+1)}, {sr(S_WS+1)}")
        a(f"s_mov_b32 {sr(SRD_WS+2)}, {NWG*SLOT}")
        a(f"s_mov_b32 {sr(SRD_WS+3)}, 0x20000")
        a(f"s_lshl_b32 {sr(S_SPIN)}, {sr(S_BH)}, 14")
        a(f"s_lshl_b32 {sr(S_SLOT)}, {sr(S_SPLIT)}, 12")
        a(f"s_add_u32 {sr(S_SLOT)}, {sr(S_SLOT)}, {sr(S_SPIN)}")

    def slot_stores(o0, o1, ml, fl):
        a(f"buffer_store_dwordx4 {vr(o0,4)}, {vr(V_OFFV)}, {sr(SRD_WS,4)}, {sr(S_SLOT)} offen {fl}".rstrip())
        a(f"buffer_store_dwordx4 {vr(o1,4)}, {vr(V_OFFV)}, {sr(SRD_WS,4)}, {sr(S_SLOT)} offen offset:1024 {fl}".rstrip())
        a("s_mov_b32 exec_lo, 0x10001")
        a("s_mov_b32 exec_hi, 0x10001")
        a(f"buffer_store_dwordx2 {vr(ml,2)}, {vr(V_H8)}, {sr(SRD_WS,4)}, {sr(S_SLOT)} offen offset:2048 {fl}".rstrip())
        a("s_mov_b64 exec, -1")

    def v_srd():
        a(f"s_add_u32 {sr(SRD_V)}, {sr(S_V)}, {sr(S_T0)}")
        a(f"s_addc_u32 {sr(SRD_V+1)}, {sr(S_V+1)}, 0")
        a(f"s_mov_b32 {sr(SRD_V+2)}, {nrec}")
        a(f"s_mov_b32 {sr(SRD_V+3)}, 0x20000")

    def out_srd():
        a(f"s_mov_b32 {sr(SRD_OUT)}, {sr(S_OUT)}")
        a(f"s_mov_b32 {sr(SRD_OUT+1)}, {sr(S_OUT+1)}")
        a(f"s_mov_b32 {sr(SRD_OUT+2)}, {64*1024}")
        a(f"s_mov_b32 {sr(SRD_OUT+3)}, 0x20000")

    def setup_rest():
        stamp(1)
        v_srd()
        ws_srd()
        a(f"s_mul_i32 {sr(S_T1)}, {sr(S_WAVE)}, {(NA+1)*2048}")
        a(f"v_add_u32 {vr(V_LW)}, {sr(S_T1)}, {vr(V_OFFV)}")
        a(f"v_add_u32 {vr(V_LR)}, {sr(S_T1)}, {vr(V_OFFV)}")
        a(f"v_mov_b32 {vr(V_M)}, 0xff800000")
        a(f"v_mov_b32 {vr(V_L)}, 0")
        a(f"s_mov_b32 {sr(S_SELLO)}, 0x05040100")
        a(f"s_mov_b32 {sr(S_SELHI)}, 0x07060302")
        a(f"s_mov_b32 {sr(S_C)}, 0x{f32bits(scale_log2e):08x}")
        a(f"s_mov_b32 {sr(S_MASK)}, 0x000f000f")
        a(f"s_mov_b32 {sr(S_MASK+1)}, {sr(S_MASK)}")
        for b in range(1, 4):
            a(f"s_lshl_b64 {sr(S_MASK+2*b,2)}, {sr(S_MASK,2)}, {4*b}")
        for i in range(1, NSPLIT):
            a(f"s_xor_b32 {sr(S_OTH+i-1)}, {sr(S_SLOT)}, {i*SLOT}")
        out_srd()

    def dpp(b, r):
        n = (4 * (b - r)) % 16
        ctl = "quad_perm:[0,1,2,3]" if n == 0 else f"row_ror:{n}"
        return f"{ctl} row_mask:0xf bank_mask:0x{1<<b:x}"

    def k_dpp(j, r):
        i, b = j % 8, (j // 8) % 4
        s_ = V_S + i
        d = V_DA + 4 * i + r
        if r == 0:
            a.op("dpp", f"v_mov_b32_dpp {vr(s_)}, {vr(d)} {dpp(b, 0)}", [s_], [d])
        else:
            a.op("dpp", f"v_add_f32_dpp {vr(s_)}, {vr(d)}, {vr(s_)} {dpp(b, r)}", [s_], [d, s_])

    def v_perms(j, z):
        T, p_ = (j - NK) // 8, (j % 8) // 2
        stg = V_STG + 32 * (T % 2)
        for q in range(4):
            lo, hi = lbuf(j - 1) + q, lbuf(j) + q
            d = stg + 8 * q + 4 * z + p_
            a.op("valu", f"v_perm_b32 {vr(d)}, {vr(hi)}, {vr(lo)}, {sr(S_SELHI if z else S_SELLO)}", [d], [lo, hi])

    def step(j):
        if j < NK:
            if j == 0:
                stamp(2)
            d = V_DA + 4 * (j % 8)
            a.op("mfma", f"v_mfma_f32_16x16x32_bf16 {vr(d,4)}, {vr(lbuf(j),4)}, {vr(V_Q,4)}, 0", R4(d), [])
        for r in range(4):
            jj = j - 2 - r
            if 0 <= jj < NK:
                k_dpp(jj, r)
        jj = j - 6
        if 0 <= jj < NK and (jj // 8) % 4 == 3:
            s_ = V_S + jj % 8
            a.op("valu", f"v_max_f32 {vr(V_M)}, {vr(V_M)}, {vr(s_)}", [V_M], [V_M, s_])
            if jj % 4 == 3:
                h = (jj % 8) // 4
                a(f"ds_write_b128 {vr(V_LW)}, {vr(V_S+4*h,4)} offset:{LDS_S+1024*h}")
                if h == 1:
                    a(f"v_add_u32 {vr(V_LW)}, 2048, {vr(V_LW)}")
        if NK <= j < NL and j % 2 == 1:
            v_perms(j, 0)
        if NK <= j - 1 < NL and (j - 1) % 2 == 1:
            v_perms(j - 1, 1)

    fifo = []

    def allreduce_fns(op, reg):
        def f1():
            a.op("dpp", f"{op}_dpp {vr(reg)}, {vr(reg)}, {vr(reg)} row_ror:4 row_mask:0xf bank_mask:0xf", [reg], [reg])
        def f2():
            a.op("dpp", f"{op}_dpp {vr(reg)}, {vr(reg)}, {vr(reg)} row_ror:8 row_mask:0xf bank_mask:0xf", [reg], [reg])
            a.op("valu", f"v_mov_b32 {vr(V_T0)}, {vr(reg)}", [V_T0], [reg])
        def f3():
            a.op("dpp", f"v_permlane32_swap_b32 {vr(V_T0)}, {vr(reg)}", [V_T0, reg], [V_T0, reg])
            a("s_nop 0")
            a.op("valu", f"{op} {vr(reg)}, {vr(V_T0)}, {vr(reg)}", [reg], [V_T0, reg])
            a.op("valu", f"v_mov_b32 {vr(V_T0)}, {vr(reg)}", [V_T0], [reg])
        def f4():
            a.op("dpp", f"v_permlane16_swap_b32 {vr(V_T0)}, {vr(reg)}", [V_T0, reg], [V_T0, reg])
            a("s_nop 0")
            a.op("valu", f"{op} {vr(reg)}, {vr(V_T0)}, {vr(reg)}", [reg], [V_T0, reg])
        return [f1, f2, f3, f4]

    def rd():
        a(f"ds_read_b128 {vr(V_S,4)}, {vr(V_LR)} offset:{LDS_S}")
        a(f"ds_read_b128 {vr(V_S+4,4)}, {vr(V_LR)} offset:{LDS_S+1024}")
        a(f"v_add_u32 {vr(V_LR)}, 2048, {vr(V_LR)}")

    def fm(lo):
        def f():
            if lo == 0:
                a("s_waitcnt lgkmcnt(0)")
            for i in range(V_S + lo, V_S + lo + 4):
                a.op("valu", f"v_fma_f32 {vr(i)}, {vr(i)}, {sr(S_C)}, -{vr(V_M)}", [i], [i, V_M])
        return f

    def ex(lo):
        def f():
            for i in range(V_S + lo, V_S + lo + 2):
                a.op("trans", f"v_exp_f32 {vr(i)}, {vr(i)}", [i], [i])
        return f

    def cv():
        for i in range(4):
            a.op("valu", f"v_cvt_pk_bf16_f32 {vr(V_P+i)}, {vr(V_S+2*i)}, {vr(V_S+2*i+1)}", [V_P + i], [V_S + 2 * i, V_S + 2 * i + 1])

    def add(d, x, y):
        a.op("valu", f"v_add_f32 {vr(d)}, {vr(x)}, {vr(y)}", [d], [x, y])

    def s1():
        for i in range(0, 8, 2):
            add(V_S + i, V_S + i, V_S + i + 1)

    def s2():
        add(V_S, V_S, V_S + 2)
        add(V_S + 4, V_S + 4, V_S + 6)
        add(V_S, V_S, V_S + 4)
        add(V_L, V_L, V_S)

    def mask_item(T):
        def f():
            PM = V_PM + 4 * (T % 2)
            for i in range(4):
                a.op("valu", f"v_cndmask_b32 {vr(PM+i)}, 0, {vr(V_P+i)}, {sr(S_MASK+2*(T%4),2)}", [PM + i], [V_P + i])
        return f

    def pv_item(T, dd):
        def f():
            PM = V_PM + 4 * (T % 2)
            bq = V_STG + 32 * (T % 2) + 4 * dd
            d = V_DA + 4 * dd
            extra = R4(d) if T == NT - 1 else []
            a.op("mfma", f"v_mfma_f32_16x16x32_bf16 {vr(d,4)}, {vr(PM,4)}, {vr(bq,4)}, {'0' if T == 0 else vr(d,4)}", R4(d), R4(PM) + R4(bq) + extra)
        return f

    def mscale():
        a.op("valu", f"v_mul_f32 {vr(V_M)}, {sr(S_C)}, {vr(V_M)}", [V_M], [V_M])
        stamp(4)

    pre = [fm(0), fm(4), ex(0), ex(2), ex(4), ex(6)]
    fifo.append((NK + 5, None, lambda: (stamp(3), rd()), False))
    for f in allreduce_fns("v_max_f32", V_M) + [mscale] + pre + [cv, mask_item(0)]:
        fifo.append((NK + 5, None, f, False))
    ORDER = [0, 2, 4, 6, 1, 3, 5, 7]
    for T in range(NT - 1):
        A, b = T // 4, T % 4
        base = NK + 8 * T
        lastg = A == NA - 1
        for dd in ORDER:
            fifo.append((base + 7 + (dd % 2), base + 17, pv_item(T, dd), False))
        side = []
        if b != 3 and T + 1 < NT - 1:
            side.append((mask_item(T + 1), False))
        if b == 0:
            side += [(s1, False), (s2, False), (rd, lastg)]
        if b == 1:
            side += [(f, lastg) for f in pre[:3]]
        if b == 2 and not lastg:
            side += [(f, False) for f in pre[3:]]
        if b == 3:
            side += [(cv, False), (mask_item(T + 1), False)]
        for f, opt in side:
            fifo.append((0, None, f, opt))

    def red(stage, lo, hi):
        def f():
            for dd in range(lo, hi):
                d = V_DA + 4 * dd
                if stage == 0:
                    a.op("dpp", f"v_permlane32_swap_b32 {vr(d)}, {vr(d+2)}", [d, d + 2], [d, d + 2])
                    a.op("dpp", f"v_permlane32_swap_b32 {vr(d+1)}, {vr(d+3)}", [d + 1, d + 3], [d + 1, d + 3])
                elif stage == 1:
                    add(d, d, d + 2)
                    add(d + 1, d + 1, d + 3)
                elif stage == 2:
                    a.op("dpp", f"v_permlane16_swap_b32 {vr(d)}, {vr(d+1)}", [d, d + 1], [d, d + 1])
                else:
                    add(d, d, d + 1)
        return f

    def factors():
        a("s_waitcnt lgkmcnt(0)")
        MW, LW = OWN + 8, OWN + 9
        a.op("valu", f"v_max_f32 {vr(MW)}, {vr(ML)}, {vr(ML+2)}", [MW], [ML, ML + 2])
        for r in (ML, ML + 2, V_F):
            a.op("valu", f"v_sub_f32 {vr(r)}, {vr(r)}, {vr(MW)}", [r], [r, MW])
        for r in (ML, ML + 2, V_F):
            a.op("trans", f"v_exp_f32 {vr(r)}, {vr(r)}", [r], [r])
        a.op("valu", f"v_mul_f32 {vr(LW)}, {vr(ML)}, {vr(ML+1)}", [LW], [ML, ML + 1])
        a.op("valu", f"v_fmac_f32 {vr(LW)}, {vr(ML+2)}, {vr(ML+3)}", [LW], [ML + 2, ML + 3, LW])
        a.op("valu", f"v_min_u32 {vr(MW)}, 0xfffffffe, {vr(MW)}", [MW], [MW])
        a.op("valu", f"v_min_u32 {vr(LW)}, 0xfffffffe, {vr(LW)}", [LW], [LW])
        a(f"v_readfirstlane_b32 {sr(S_LOC)}, {vr(OWN+10)}")

    fifo.append((0, None, factors, False))
    for stage in range(4):
        fifo.append((0, None, red(stage, 0, 4), False))
        fifo.append((0, None, red(stage, 4, 8), False))

    def q_load():
        issue("Q", f"buffer_load_dwordx4 {vr(V_Q,4)}, {vr(V_T2)}, {sr(SRD_Q,4)}, 0 offen")
    if args.qat < 0:
        q_load()
    st = dict(nstep=0, fi=0, drain=False)

    def pop():
        e, dl, fn, opt = fifo[st["fi"]]
        st["fi"] += 1
        if opt and st["drain"]:
            return False
        fn()
        return True

    def run_step():
        j = st["nstep"]
        last_due = max([k for k in range(st["fi"], len(fifo)) if fifo[k][1] is not None and fifo[k][1] <= j], default=-1)
        while st["fi"] <= last_due:
            assert fifo[st["fi"]][0] < j
            pop()
        step(j)
        st["nstep"] += 1

    def run_fifo(n):
        while n > 0 and st["fi"] < len(fifo) and fifo[st["fi"]][0] < st["nstep"]:
            if pop():
                n -= 1

    did_setup = False
    marks = []
    for i in range(NL):
        need = i - depth(i)
        if need >= 0 and not did_setup:
            setup_rest()
            did_setup = True
        marks.append(len(a.lines))
        if need >= 0:
            wait_for(f"L{need}")
        if i >= 16:
            old = i - 16
            must = old if old < NK else (old | 1) + 1
            while st["nstep"] <= must:
                wait_for("Q")
                wait_for(f"L{min(st['nstep'], i-1)}")
                run_step()
        emit_load(i)
        if i == args.qat:
            q_load()
        if i == NL - 1 - args.pfat:
            a.c("bring this workgroup's slot lines into L2, so that the partial written later can be read from there")
            a(f"v_bfe_u32 {vr(V_H8)}, v0, 4, 2")
            a(f"v_lshlrev_b32 {vr(V_H8)}, 3, {vr(V_H8)}")
            for k_ in range(2):
                issue(f"PF{k_}", f"buffer_load_dwordx4 {vr(PB+4*k_,4)}, {vr(V_OFFV)}, {sr(SRD_WS,4)}, {sr(S_SLOT)} offen offset:{1024*k_} {args.pfflags}".rstrip())
            issue("PF2", f"buffer_load_dwordx2 {vr(PB+8,2)}, {vr(V_H8)}, {sr(SRD_WS,4)}, {sr(S_SLOT)} offen offset:2048 {args.pfflags}".rstrip())
        ran = 0
        while did_setup and ran < args.spl and st["nstep"] < NL and is_done(f"L{st['nstep']}") and is_done("Q"):
            run_step()
            ran += 1
        run_fifo(args.ppl)
    marks.append(len(a.lines))
    if args.fold:
        chunks = [a.lines[marks[i]:marks[i + 1]] for i in range(NL)]
        outl = list(a.lines[:marks[0]])
        i = 0
        nloop = 0
        while i < NL:
            e = i
            while e + 32 < NL and chunks[e] == chunks[e + 32]:
                e += 1
            if e - i >= 32:
                total = e + 32 - i
                full, part = divmod(total, 32)
                outl.append(f"    s_mov_b32 {sr(S_CNT)}, {full if part else full - 1}")
                outl.append(f"L_loop{nloop}:")
                for k in range(32):
                    if part and k == part:
                        outl.append(f"    s_sub_u32 {sr(S_CNT)}, {sr(S_CNT)}, 1")
                        outl.append(f"    s_cbranch_scc1 L_done{nloop}")
                    outl += chunks[i + k]
                if part:
                    outl.append(f"    s_branch L_loop{nloop}")
                else:
                    outl.append(f"    s_sub_u32 {sr(S_CNT)}, {sr(S_CNT)}, 1")
                    outl.append(f"    s_cbranch_scc0 L_loop{nloop}")
                outl.append(f"L_done{nloop}:")
                nloop += 1
                i += total
            else:
                outl += chunks[i]
                i += 1
        a.lines = outl

    st["drain"] = True
    assert any(f[2] is factors for f in fifo[st["fi"]:]), "the merge factors need the barrier below"
    assert all(f[2] not in (s1, s2) for f in fifo[st["fi"]:]), "row sums must be complete here"
    a.c("all loads issued: share (max, sum) of the two waves, take the ticket")
    for f in allreduce_fns("v_add_f32", V_L):
        f()
    a(f"s_lshl_b32 {sr(S_T1)}, {sr(S_WAVE)}, 5")
    a(f"v_and_b32 {vr(V_T1)}, 3, v0")
    a(f"v_lshl_add_u32 {vr(V_T1)}, {vr(V_T1)}, 3, {sr(S_T1)}")
    a(f"ds_write_b64 {vr(V_T1)}, {vr(V_M,2)} offset:{LDS_ML}")
    a(f"v_bfe_u32 {vr(V_T1)}, v0, 4, 2")
    a(f"v_lshlrev_b32 {vr(V_T1)}, 3, {vr(V_T1)}")
    a(f"v_add_u32 {vr(V_T0)}, {sr(S_T1)}, {vr(V_T1)}")
    a(f"v_and_b32 {vr(V_T2)}, 0x3c, v0")
    a(f"v_lshrrev_b32 {vr(V_TA)}, 2, {vr(V_T2)}")
    a(f"v_and_b32 {vr(V_TA)}, 3, {vr(V_TA)}")
    a(f"v_and_b32 {vr(V_T2)}, 0x30, {vr(V_T2)}")
    a(f"v_add3_u32 {vr(V_T2)}, {vr(V_T2)}, {vr(V_TA)}, 12")
    a(f"v_lshlrev_b32 {vr(V_T2)}, 2, {vr(V_T2)}")
    a(f"s_lshl_b32 {sr(S_T1)}, {sr(S_BH)}, 2")
    a(f"v_mov_b32 {vr(V_TA)}, {sr(S_T1)}")
    a(f"v_mov_b32 {vr(V_ONE)}, 1")
    a(f"v_mov_b32 {vr(V_TK)}, 0")
    a(f"s_cmp_lg_u32 {sr(S_WAVE)}, 0")
    a("s_waitcnt lgkmcnt(0)")
    a.c("passes only once the helper wave has ended, i.e. this workgroup's slot marking is complete")
    a("s_barrier")
    a("s_cbranch_scc1 L_noticket")
    a.count = False
    a("s_mov_b64 exec, 1")
    a(f"global_atomic_add {vr(V_TK)}, {vr(V_TA)}, {vr(V_ONE)}, {sr(S_DBG,2)} sc0")
    a("s_mov_b64 exec, -1")
    a.count = True
    a.label("L_noticket")
    a(f"v_mov_b32 {vr(OWN+11)}, 0")
    a(f"ds_read_b32 {vr(OWN+10)}, {vr(OWN+11)} offset:{LDS_LOC}")
    a(f"ds_read_b64 {vr(ML,2)}, {vr(V_T1)} offset:{LDS_ML}")
    a(f"ds_read_b64 {vr(ML+2,2)}, {vr(V_T1)} offset:{LDS_ML+32}")
    a(f"ds_read_b32 {vr(V_F)}, {vr(V_T0)} offset:{LDS_ML}")
    PL = V_PM + 4 * ((NT - 1) % 2)
    assert all(not (f[1] == NK + 8 * (NT - 3) + 17) for f in fifo[st["fi"]:]), "tile NT-3 must be multiplied"
    a.c("last tile: P with rows ordered by head, so its product needs no bank fold")
    for i in range(4):
        a(f"ds_bpermute_b32 {vr(PL+i)}, {vr(V_T2)}, {vr(V_P+i)}")
    a(f"s_mov_b32 {sr(S_SPIN)}, 0x20000")

    while st["nstep"] < NL - 1:
        wait_for(f"L{st['nstep']}")
        run_step()
        run_fifo(args.dpl)
    run_fifo(1000)
    assert st["fi"] == len(fifo), (st, len(fifo))

    PSET = [PB, V_BUF]

    def poll_loads(z=0):
        pb = PSET[z]
        for s_ in range(3):
            a(f"buffer_load_dwordx2 {vr(pb+12*s_+8,2)}, {vr(V_H8)}, {sr(SRD_WS,4)}, {sr(S_OTH+s_)} offen offset:2048 {hfl}")
        for s_ in range(3):
            a(f"buffer_load_dwordx4 {vr(pb+12*s_,4)}, {vr(V_OFFV)}, {sr(SRD_WS,4)}, {sr(S_OTH+s_)} offen {hfl}")
            a(f"buffer_load_dwordx4 {vr(pb+12*s_+4,4)}, {vr(V_OFFV)}, {sr(SRD_WS,4)}, {sr(S_OTH+s_)} offen offset:1024 {hfl}")

    a("s_waitcnt vmcnt(0)")
    state["done"] = len(loads) - 1
    stamp(5)
    a(f"v_readfirstlane_b32 {sr(S_TK)}, {vr(V_TK)}")
    run_step()
    a(f"s_cmp_lg_u32 {sr(S_TK)}, {NSPLIT-1}")
    a("s_cbranch_scc1 L_nopoll")
    a.count = False
    poll_loads()
    a.count = True
    a.label("L_nopoll")
    run_step()
    for dd in ORDER:
        pv_item(NT - 1, dd)()
    a(f"s_cmp_lg_u32 {sr(S_WAVE)}, 0")
    a("s_cbranch_scc1 L_send")
    saved = (a.pos, dict(a.wr))
    a("s_barrier")
    a(f"ds_read_b128 {vr(OTH,4)}, {vr(V_OFFV)} offset:{LDS_O}")
    a(f"ds_read_b128 {vr(OTH+4,4)}, {vr(V_OFFV)} offset:{LDS_O+1024}")
    stamp(6)
    a(f"s_cmp_eq_u32 {sr(S_TK)}, {NSPLIT-1}")
    a("s_waitcnt lgkmcnt(0)")
    for e in ORDER:
        a.op("valu", f"v_fma_f32 {vr(OWN+e)}, {vr(V_F)}, {vr(V_DA+4*e)}, {vr(OTH+e)}", [OWN + e], [V_F, V_DA + 4 * e])
    stamp(7)
    a("s_cbranch_scc1 L_again1")
    a.c("publish the partial; no word equals the all-ones marker")
    for e in range(8):
        a(f"v_min_u32 {vr(OWN+e)}, 0xfffffffe, {vr(OWN+e)}")
    a(f"s_cmp_eq_u32 {sr(S_LOC)}, 1")
    a("s_cbranch_scc0 L_pubfar")
    slot_stores(OWN, OWN + 4, OWN + 8, "")
    a("s_branch L_end")
    a.label("L_pubfar")
    slot_stores(OWN, OWN + 4, OWN + 8, hfl)
    a("s_branch L_end")

    a.label("L_send")
    a.pos, a.wr = saved
    for e in ORDER:
        a.op("valu", f"v_mul_f32 {vr(OTH+e)}, {vr(V_F)}, {vr(V_DA+4*e)}", [OTH + e], [V_F, V_DA + 4 * e])
    a(f"ds_write_b128 {vr(V_OFFV)}, {vr(OTH,4)} offset:{LDS_O}")
    a(f"ds_write_b128 {vr(V_OFFV)}, {vr(OTH+4,4)} offset:{LDS_O+1024}")
    a("s_waitcnt lgkmcnt(0)")
    a("s_barrier")
    a("s_branch L_end")

    def finish(z):
        y = 1 - z if args.sets == 2 else 0
        X = 9 if args.sets == 2 else 0
        pb = PSET[y]
        part = lambda s_: OWN if s_ == 0 else pb + 12 * (s_ - 1)
        a.label(f"L_again{z}")
        poll_loads(z)
        if args.sets == 1:
            a.label("L_again1")
        a(f"s_waitcnt vmcnt({X+6})")
        a(f"v_max3_u32 {vr(V_T1)}, {vr(pb+8)}, {vr(pb+20)}, {vr(pb+32)}")
        a(f"v_max3_f32 {vr(V_T0)}, {vr(OWN+8)}, {vr(pb+8)}, {vr(pb+20)}")
        a(f"v_cmp_eq_u32 vcc, -1, {vr(V_T1)}")
        a(f"v_max_f32 {vr(V_T0)}, {vr(V_T0)}, {vr(pb+32)}")
        a(f"s_sub_u32 {sr(S_SPIN)}, {sr(S_SPIN)}, 1")
        a(f"s_cbranch_scc1 L_go{y}")
        a(f"s_cbranch_vccnz L_again{y}")
        a.label(f"L_go{y}")
        a.c("an unwritten word is a NaN and poisons the result; that is checked before the store")
        for s_ in range(4):
            a(f"v_sub_f32 {vr(FAC+s_)}, {vr(part(s_)+8)}, {vr(V_T0)}")
        for s_ in range(4):
            a(f"v_exp_f32 {vr(FAC+s_)}, {vr(FAC+s_)}")
        a("s_nop 0")
        a(f"v_mul_f32 {vr(V_T1)}, {vr(FAC)}, {vr(OWN+9)}")
        for s_ in range(1, 4):
            a(f"v_fmac_f32 {vr(V_T1)}, {vr(FAC+s_)}, {vr(part(s_)+9)}")
        a(f"v_rcp_f32 {vr(V_T1)}, {vr(V_T1)}")
        a("s_nop 0")
        for s_ in range(4):
            a(f"v_mul_f32 {vr(FAC+s_)}, {vr(FAC+s_)}, {vr(V_T1)}")
        for e in range(8):
            a(f"v_mul_f32 {vr(OUT+e)}, {vr(FAC)}, {vr(OWN+e)}")
        for s_ in range(1, 4):
            a(f"s_waitcnt vmcnt({X+2*(3-s_)})")
            for e in range(8):
                a(f"v_fmac_f32 {vr(OUT+e)}, {vr(FAC+s_)}, {vr(part(s_)+e)}")
        a(f"v_cmp_u_f32 vcc, {vr(OUT)}, {vr(OUT+1)}")
        a(f"v_cmp_u_f32 {sr(S_NAN,2)}, {vr(OUT+2)}, {vr(OUT+3)}")
        a(f"v_cvt_pk_bf16_f32 {vr(OUT+8)}, {vr(OUT)}, {vr(OUT+1)}")
        a(f"s_or_b64 {sr(S_NAN,2)}, {sr(S_NAN,2)}, vcc")
        a(f"v_cmp_u_f32 vcc, {vr(OUT+4)}, {vr(OUT+5)}")
        a(f"v_cvt_pk_bf16_f32 {vr(OUT+9)}, {vr(OUT+2)}, {vr(OUT+3)}")
        a(f"s_or_b64 {sr(S_NAN,2)}, {sr(S_NAN,2)}, vcc")
        a(f"v_cmp_u_f32 vcc, {vr(OUT+6)}, {vr(OUT+7)}")
        a(f"v_cvt_pk_bf16_f32 {vr(OUT+10)}, {vr(OUT+4)}, {vr(OUT+5)}")
        a(f"v_cvt_pk_bf16_f32 {vr(OUT+11)}, {vr(OUT+6)}, {vr(OUT+7)}")
        a(f"s_or_b64 {sr(S_NAN,2)}, {sr(S_NAN,2)}, vcc")
        a("s_cbranch_scc0 L_store")
        a.c("NaN in the result: poll again if a marker word is still there, else the NaN is genuine")
        regs = [pb + 12 * s_ + e for s_ in range(3) for e in range(10)]
        a(f"v_max3_u32 {vr(V_T0)}, {vr(regs[0])}, {vr(regs[1])}, {vr(regs[2])}")
        a(f"v_max3_u32 {vr(V_T1)}, {vr(regs[3])}, {vr(regs[4])}, {vr(regs[5])}")
        rest = regs[6:]
        k = 0
        while rest:
            t = V_T0 if k % 2 == 0 else V_T1
            a(f"v_max3_u32 {vr(t)}, {vr(t)}, {vr(rest[0])}, {vr(rest[1])}")
            rest = rest[2:]
            k += 1
        a(f"v_max_u32 {vr(V_T0)}, {vr(V_T0)}, {vr(V_T1)}")
        a(f"v_cmp_eq_u32 vcc, -1, {vr(V_T0)}")
        a(f"s_cmp_lt_i32 {sr(S_SPIN)}, 0")
        a("s_cbranch_scc1 L_store")
        a("s_nop 2")
        a(f"s_cbranch_vccnz L_again{y}")
        a("s_branch L_store")

    finish(0)
    if args.sets == 2:
        finish(1)
    a.label("L_store")
    stamp(8)
    a(f"buffer_store_dwordx4 {vr(OUT+8,4)}, {vr(V_OFFV)}, {sr(SRD_OUT,4)}, {sr(S_OOFF)} offen {args.oflags}".rstrip())
    if args.stamps:
        a("s_waitcnt vmcnt(0)")
    stamp(9)
    a.label("L_end")
    dump_stamps()
    a.label("L_exit")
    a("s_endpgm")

    a.label("L_helper")
    a.c("helper wave: mark this workgroup's partial slot as not yet written (all-ones words), and find out")
    a.c("with a challenge/echo through d_ws whether all four splits run on this XCD (then L2 carries the hand-off)")
    H_OWN, H_PEER, H_X, H_N, H_C, H_A = 16, 17, 18, 19, 20, 21
    CHAL, ACK = 3072, 3200
    if args.hdelay:
        a(f"s_sleep {args.hdelay}")
    ws_srd()
    a(f"v_bfe_u32 {vr(V_H8)}, v0, 4, 2")
    a(f"v_lshlrev_b32 {vr(V_H8)}, 3, {vr(V_H8)}")
    a(f"v_lshrrev_b32 {vr(V_T0)}, 4, {vr(V_OFFV)}")
    a(f"v_lshlrev_b32 {vr(V_T1)}, 2, {vr(V_T0)}")
    a(f"v_add_u32 {vr(H_OWN)}, {sr(S_SLOT)}, {vr(V_T1)}")
    a(f"v_lshlrev_b32 {vr(V_T0)}, 12, {vr(V_T0)}")
    a(f"v_xor_b32 {vr(H_PEER)}, {vr(V_T0)}, {vr(H_OWN)}")
    for i in range(4):
        a(f"v_mov_b32 {vr(V_P+i)}, -1")
    a(f"s_getreg_b32 {sr(S_T1)}, hwreg(HW_REG_XCC_ID, 0, 4)")
    a("s_mov_b64 exec, 14")
    a(f"buffer_load_dword {vr(H_X)}, {vr(H_OWN)}, {sr(SRD_WS,4)}, 0 offen offset:{ACK} {hfl}")
    a("s_mov_b64 exec, -1")
    slot_stores(V_P, V_P, V_P, "")
    a("s_mov_b64 exec, 14")
    a("s_waitcnt vmcnt(0)")
    a(f"v_add_u32 {vr(H_N)}, 16, {vr(H_X)}")
    a(f"v_and_b32 {vr(H_N)}, -16, {vr(H_N)}")
    a(f"buffer_store_dword {vr(H_N)}, {vr(H_OWN)}, {sr(SRD_WS,4)}, 0 offen offset:{CHAL}")
    a(f"v_or_b32 {vr(H_X)}, {sr(S_T1)}, {vr(H_N)}")
    a(f"s_mov_b32 {sr(S_CNT)}, {args.hrounds-1}")
    a.label("L_echo")
    a(f"s_sleep {args.hsleep}")
    a(f"buffer_load_dword {vr(H_C)}, {vr(H_PEER)}, {sr(SRD_WS,4)}, 0 offen offset:{CHAL} {hfl}")
    a("s_waitcnt vmcnt(0)")
    a(f"v_and_b32 {vr(H_C)}, -16, {vr(H_C)}")
    a(f"v_or_b32 {vr(H_C)}, {sr(S_T1)}, {vr(H_C)}")
    a(f"buffer_store_dword {vr(H_C)}, {vr(H_PEER)}, {sr(SRD_WS,4)}, 0 offen offset:{ACK}")
    a(f"s_sub_u32 {sr(S_CNT)}, {sr(S_CNT)}, 1")
    a("s_cbranch_scc0 L_echo")
    a(f"s_sleep {args.hsleep}")
    a(f"buffer_load_dword {vr(H_A)}, {vr(H_OWN)}, {sr(SRD_WS,4)}, 0 offen offset:{ACK} {hfl}")
    a("s_waitcnt vmcnt(0)")
    a(f"v_cmp_eq_u32 vcc, {vr(H_A)}, {vr(H_X)}")
    a("s_mov_b64 exec, -1")
    a(f"v_mov_b32 {vr(V_T0)}, 0")
    a("s_cmp_eq_u64 vcc, 14")
    a(f"s_cselect_b32 {sr(S_T0)}, {0 if args.nolocal else 1}, 0")
    a(f"v_mov_b32 {vr(V_T1)}, {sr(S_T0)}")
    a(f"ds_write_b32 {vr(V_T0)}, {vr(V_T1)} offset:{LDS_LOC}")
    a(f"s_cmp_eq_u32 {sr(S_T0)}, 1")
    a("s_cbranch_scc1 L_hend")
    a.c("not verified: the marking has to reach memory")
    slot_stores(V_P, V_P, V_P, hfl)
    a.label("L_hend")
    a("s_waitcnt vmcnt(0) lgkmcnt(0)")
    a("s_endpgm")

    nvgpr = V_END
    accum = min(256, (nvgpr + 3) // 4 * 4)
    out = HEADER
    out += f"; @launch grid=({NWG},1,1) block=({(NW+1)*64},1,1) lds={LDS_BYTES}\n"
    out += '.amdgcn_target "amdgcn-amd-amdhsa--gfx950"\n.text\n'
    out += f".globl {NAME}\n.p2align 8\n.type {NAME},@function\n{NAME}:\n"
    out += a.text()
    out += f""".section .rodata,"a"
.p2align 6
.amdhsa_kernel {NAME}
  .amdhsa_next_free_vgpr {nvgpr}
  .amdhsa_next_free_sgpr {S_NEXT}
  .amdhsa_accum_offset {accum}
  .amdhsa_group_segment_fixed_size 0
  .amdhsa_kernarg_size 48
  .amdhsa_user_sgpr_count 2
  .amdhsa_user_sgpr_kernarg_segment_ptr 1
  .amdhsa_system_sgpr_workgroup_id_x 1
.end_amdhsa_kernel
"""
    return out


if __name__ == "__main__":
    ap = argparse.ArgumentParser()
    ap.add_argument("--d", type=int, default=11)
    ap.add_argument("--bf", type=float, default=2.0)
    ap.add_argument("--bd", type=int, default=13)
    ap.add_argument("--pfflags", default="")
    ap.add_argument("--strict", type=lambda x: int(x, 0), default=0x55)
    ap.add_argument("--pfat", type=int, default=8)
    ap.add_argument("--hrounds", type=int, default=3)
    ap.add_argument("--hsleep", type=int, default=16)
    ap.add_argument("--nolocal", type=int, default=0)
    ap.add_argument("--sets", type=int, default=1)
    ap.add_argument("--qat", type=int, default=-1)
    ap.add_argument("--hdelay", type=int, default=0)
    ap.add_argument("--sn", type=int, default=0)
    ap.add_argument("--sd", type=int, default=13)
    ap.add_argument("--ppl", type=int, default=2, help="side items per load slot")
    ap.add_argument("--dpl", type=int, default=4, help="side items per step while draining")
    ap.add_argument("--spl", type=int, default=1, help="max steps per load slot")
    ap.add_argument("--fold", type=int, default=1)
    ap.add_argument("--touch", type=int, default=0)
    ap.add_argument("--padx", default="")
    ap.add_argument("--flags", default="nt")
    ap.add_argument("--hflags", default="sc1")
    ap.add_argument("--oflags", default="")
    ap.add_argument("--rot", type=int, default=16)
    ap.add_argument("--stamps", type=int, default=0)
    ap.add_argument("-o", default="standalone__gqa_softmax__decode.s")
    args = ap.parse_args()
    open(args.o, "w").write(gen(args))
```

```python
import argparse
import math
import struct

HEADER = """; GQA decode attention (B=8, Hq=32, Hkv=8, Sq=1, Sk=8192, D=128), split-K flash decoding, one launch.
;
; Pass 2 (V): p = exp2(s*c - max), bf16 P is the A operand, V is transposed in registers (v_perm) as the B operand.
; Split partials (O, max, sum in fp32) meet in d_ws: every slot is first marked empty, a ticket counter in d_debug names
"""
NAME = "standalone__gqa_softmax__decode_kernel"


def f32bits(x):
    return struct.unpack("<I", struct.pack("<f", x))[0]


class Asm:
    def __init__(self):
        self.lines = []
        self.pos = 0
        self.count = True
        self.wr = {}

    def __call__(self, s):
        self.lines.append("    " + s)
        if self.count:
            self.pos += int(s.split()[1]) + 1 if s.startswith("s_nop") else 1

    def op(self, kind, text, writes, reads):
        need = 0
        for r in set(reads) | (set(writes) if kind != "mfma" else set()):
            if r not in self.wr:
                continue
            p_, k = self.wr[r]
            dist = self.pos - p_ - 1
            req = 0
            if k == "mfma":
                req = 8
            elif r in reads or kind == "dpp":
                if kind in ("dpp", "mfma"):
                    req = 2
                elif k == "trans" and kind != "trans":
                    req = 1
            need = max(need, req - dist)
        if need > 0:
            self(f"s_nop {need-1}")
        here = self.pos
        self(text)
        for r in writes:
            self.wr[r] = (here, "valu" if kind in ("dpp", "mem") else kind)

    def label(self, l):
        self.lines.append(l + ":")

    def c(self, s):
        self.lines.append("    ; " + s)

    def text(self):
        return "\n".join(self.lines) + "\n"


def vr(a, n=1):
    return f"v{a}" if n == 1 else f"v[{a}:{a+n-1}]"


def sr(a, n=1):
    return f"s{a}" if n == 1 else f"s[{a}:{a+n-1}]"


def gen(args):
    NSPLIT = 4
    NW = 2
    NB = 2
    KPWG = 8192 // NSPLIT
    KPW = KPWG // NW
    NT = KPW // 32
    NA = NT // 4
    NWG = 64 * NSPLIT
    flags = args.flags
    hfl = args.hflags
    SLOT = 4096
    LDS_O = 0
    LDS_ML = 2048
    LDS_LOC = 2176
    LDS_S = 3072
    LDS_BYTES = LDS_S + NW * (NA + 1) * 2048
    scale_log2e = (128 ** -0.5) * math.log2(math.e)

    a = Asm()
    S_Q, S_K, S_V, S_OUT, S_DBG, S_WS = 4, 6, 8, 10, 12, 14
    SRD_K, SRD_V, SRD_Q, SRD_WS, SRD_OUT = 16, 20, 24, 28, 32
    S_BH, S_SPLIT, S_WAVE, S_T0, S_T1 = 36, 37, 38, 39, 40
    S_OFFK, S_OFFV, S_SELLO, S_SELHI, S_C = 41, 42, 43, 44, 45
    S_MASK = 46
    S_SLOT = 54
    S_OTH = 55
    S_SPIN, S_TK, S_CNT, S_OOFF = 58, 59, 60, 61
    S_NAN = 62
    S_LOC = 64
    S_NEXT = 66
    S_ST = S_NEXT
    NSTAMP = 10
    if args.stamps:
        S_NEXT = S_ST + 2 * NSTAMP + 4

    def stamp(i, wait=False):
        if args.stamps:
            a(f"s_memrealtime {sr(S_ST+2*i,2)}")
            if wait:
                a("s_waitcnt lgkmcnt(0)")

    def dump_stamps():
        if not args.stamps:
            return
        SB = S_ST + 2 * NSTAMP
        a("s_waitcnt lgkmcnt(0)")
        if args.padx:
            sa, sb, amp, wg = (int(x) for x in args.padx.split(","))
            if wg >= 0:
                a(f"s_cmp_lg_u32 s2, {wg}")
                a("s_cbranch_scc1 L_exit")
            a(f"s_cmp_eq_u32 {sr(S_ST+2*sb)}, 0")
            a("s_cbranch_scc1 L_exit")
            a(f"s_sub_u32 {sr(SB)}, {sr(S_ST+2*sb)}, {sr(S_ST+2*sa)}")
            a(f"s_min_u32 {sr(SB)}, {sr(SB)}, 5000")
            a(f"s_mul_i32 {sr(SB)}, {sr(SB)}, {amp}")
            a(f"s_add_u32 {sr(SB)}, {sr(SB)}, 6000")
            a(f"s_add_u32 {sr(SB)}, {sr(SB)}, {sr(S_ST)}")
            a.label("L_spin")
            a(f"s_memrealtime {sr(SB+2,2)}")
            a("s_waitcnt lgkmcnt(0)")
            a(f"s_sub_u32 {sr(SB+1)}, {sr(SB+2)}, {sr(SB)}")
            a(f"s_cmp_lt_i32 {sr(SB+1)}, 0")
            a("s_cbranch_scc1 L_spin")
            return
        a(f"s_mul_i32 {sr(SB+2)}, s2, {NW+1}")
        a(f"s_add_u32 {sr(SB+2)}, {sr(SB+2)}, {sr(S_WAVE)}")
        a(f"s_lshl_b32 {sr(SB+2)}, {sr(SB+2)}, 7")
        a(f"s_add_u32 {sr(SB+2)}, {sr(SB+2)}, {16<<20}")
        a(f"s_add_u32 {sr(SB)}, {sr(S_WS)}, {sr(SB+2)}")
        a(f"s_addc_u32 {sr(SB+1)}, {sr(S_WS+1)}, 0")
        a("s_mov_b64 exec, 1")
        a("v_mov_b32 v4, 0")
        for i in range(NSTAMP):
            a(f"v_mov_b32 v6, {sr(S_ST+2*i)}")
            a(f"v_mov_b32 v7, {sr(S_ST+2*i+1)}")
            a(f"global_store_dwordx2 v4, v[6:7], {sr(SB,2)} offset:{8*i}")
            a("s_nop 1")
        a("s_getreg_b32 s3, hwreg(HW_REG_XCC_ID)")
        a("v_mov_b32 v6, s3")
        a("s_getreg_b32 s3, hwreg(HW_REG_HW_ID)")
        a("v_mov_b32 v7, s3")
        a(f"global_store_dwordx2 v4, v[6:7], {sr(SB,2)} offset:{8*NSTAMP}")

    V_OFFK, V_OFFV, V_T0, V_T1, V_T2, V_M, V_L = 1, 2, 3, 4, 5, 6, 7
    V_Q = 8
    V_TA, V_ONE, V_TK, V_F = 8, 9, 10, 11
    V_P = 12
    V_PM = 16
    V_STG = 24
    V_DA = 88
    V_S = 120
    V_LW, V_LR = 128, 129
    V_H8 = 130
    V_BUF = 132
    OWN = V_BUF + 64
    PB = OWN + 12
    OTH = PB + 36
    ML = OTH + 8
    V_END = ML + 4
    assert V_END <= 256
    FREE = V_STG + 32 * ((NT - 2) % 2)
    FAC, OUT = FREE, FREE + 4
    R4 = lambda b_: list(range(b_, b_ + 4))

    a(f"s_cmp_ge_u32 s2, {NWG}")
    a("s_cbranch_scc1 L_exit")
    if args.stamps:
        for i in range(NSTAMP):
            a(f"s_mov_b64 {sr(S_ST+2*i,2)}, 0")
    stamp(0)
    a(f"s_load_dwordx8 {sr(4,8)}, s[0:1], 0")
    a(f"s_load_dwordx4 {sr(12,4)}, s[0:1], 32")
    a(f"v_lshrrev_b32 {vr(V_T0)}, 6, v0")
    a(f"v_and_b32 {vr(V_OFFV)}, 63, v0")
    a(f"v_readfirstlane_b32 {sr(S_WAVE)}, {vr(V_T0)}")
    a.c("id bits (0,1,2 | 3,4,5 | 6,7) -> bh bits (1,2,5 | 0,3,4), split: spreads DRAM stacks/banks (speed only)")
    a(f"s_and_b32 {sr(S_BH)}, s2, 3")
    a(f"s_lshl_b32 {sr(S_BH)}, {sr(S_BH)}, 1")
    a(f"s_bfe_u32 {sr(S_T0)}, s2, 0x10003")
    a(f"s_or_b32 {sr(S_BH)}, {sr(S_BH)}, {sr(S_T0)}")
    a(f"s_lshr_b32 {sr(S_T0)}, s2, 1")
    a(f"s_and_b32 {sr(S_T0)}, {sr(S_T0)}, 0x18")
    a(f"s_or_b32 {sr(S_BH)}, {sr(S_BH)}, {sr(S_T0)}")
    a(f"s_lshl_b32 {sr(S_T0)}, s2, 3")
    a(f"s_and_b32 {sr(S_T0)}, {sr(S_T0)}, 0x20")
    a(f"s_or_b32 {sr(S_BH)}, {sr(S_BH)}, {sr(S_T0)}")
    a(f"s_lshr_b32 {sr(S_SPLIT)}, s2, 6")
    a(f"v_and_b32 {vr(V_T0)}, 3, v0")
    a(f"v_bfe_u32 {vr(V_T1)}, v0, 2, 2")
    a(f"v_bfe_u32 {vr(V_T2)}, v0, 4, 2")
    a(f"v_lshlrev_b32 {vr(V_T2)}, 6, {vr(V_T2)}")
    a(f"v_lshl_add_u32 {vr(V_OFFK)}, {vr(V_T1)}, 8, {vr(V_T2)}")
    a(f"v_lshl_add_u32 {vr(V_OFFK)}, {vr(V_T0)}, 4, {vr(V_OFFK)}")
    a(f"v_lshl_add_u32 {vr(V_T2)}, {vr(V_T0)}, 8, {vr(V_T2)}")
    a(f"v_lshl_add_u32 {vr(V_T2)}, {vr(V_T1)}, 4, {vr(V_T2)}")
    a(f"v_lshlrev_b32 {vr(V_OFFV)}, 4, {vr(V_OFFV)}")
    a(f"s_lshl_b32 {sr(S_T0)}, {sr(S_BH)}, 21")
    a(f"s_lshl_b32 {sr(S_T1)}, {sr(S_SPLIT)}, 19")
    a(f"s_add_u32 {sr(S_T0)}, {sr(S_T0)}, {sr(S_T1)}")
    tile_stride = 8192 * NW
    nrec = KPWG * 256
    a(f"s_lshl_b32 {sr(S_OFFK)}, {sr(S_WAVE)}, 13")
    if args.rot:
        a.c("start phase inside the key range (wraps around): staggers DRAM bank changes")
        a(f"s_and_b32 {sr(S_T1)}, s2, 7")
        a(f"s_mul_i32 {sr(S_T1)}, {sr(S_T1)}, {args.rot*1024}")
        a(f"s_add_u32 {sr(S_OFFK)}, {sr(S_OFFK)}, {sr(S_T1)}")
    a(f"s_mov_b32 {sr(S_OFFV)}, {sr(S_OFFK)}")
    a(f"s_mov_b32 {sr(SRD_K+2)}, {nrec}")
    a(f"s_mov_b32 {sr(SRD_K+3)}, 0x20000")
    a(f"s_mov_b32 {sr(SRD_Q+2)}, 1024")
    a(f"s_mov_b32 {sr(SRD_Q+3)}, 0x20000")
    a(f"s_lshl_b32 {sr(S_OOFF)}, {sr(S_BH)}, 10")
    a(f"s_cmp_eq_u32 {sr(S_WAVE)}, {NW}")
    a("s_waitcnt lgkmcnt(0)")
    a("s_cbranch_scc1 L_helper")
    a(f"s_add_u32 {sr(SRD_K)}, {sr(S_K)}, {sr(S_T0)}")
    a(f"s_addc_u32 {sr(SRD_K+1)}, {sr(S_K+1)}, 0")
    a(f"s_add_u32 {sr(SRD_Q)}, {sr(S_Q)}, {sr(S_OOFF)}")
    a(f"s_addc_u32 {sr(SRD_Q+1)}, {sr(S_Q+1)}, 0")

    loads = []
    state = dict(done=-1)

    def issue(name, text):
        a(text)
        loads.append(name)

    def wait_for(name):
        k = loads.index(name)
        if k > state["done"]:
            n = len(loads) - 1 - k
            assert n <= 63
            a(f"s_waitcnt vmcnt({n})")
            state["done"] = k

    def is_done(name):
        return name in loads and loads.index(name) <= state["done"]

    NK = NT * 8
    NL = 2 * NK

    def lbuf(j):
        return V_BUF + 4 * (j % 16)

    def emit_load(i):
        j = i % 8
        if i < NK:
            voff, srd, soff = V_OFFK, SRD_K, S_OFFK
        else:
            voff, srd, soff = V_OFFV, SRD_V, S_OFFV
        issue(f"L{i}", f"buffer_load_dwordx4 {vr(lbuf(i),4)}, {vr(voff)}, {sr(srd,4)}, {sr(soff)} offen offset:{1024*(j%4)} {flags}".rstrip())
        if j % 4 == 3:
            inc = 4096 if j == 3 else tile_stride - 4096
            a(f"s_add_u32 {sr(soff)}, {sr(soff)}, {inc}")
            if j == 7 and args.rot:
                a(f"s_and_b32 {sr(soff)}, {sr(soff)}, {nrec-1}")

    def depth(i):
        if i < args.sn:
            return args.sd
        if i >= NL * args.bf:
            return args.bd
        return args.d - (1 if (args.strict >> (i % 8)) & 1 else 0)

    def ws_srd():
        a(f"s_mov_b32 {sr(SRD_WS)}, {sr(S_WS)}")
        a(f"s_mov_b32 {sr(SRD_WS+1)}, {sr(S_WS+1)}")
        a(f"s_mov_b32 {sr(SRD_WS+2)}, {NWG*SLOT}")
        a(f"s_mov_b32 {sr(SRD_WS+3)}, 0x20000")
        a(f"s_lshl_b32 {sr(S_SPIN)}, {sr(S_BH)}, 14")
        a(f"s_lshl_b32 {sr(S_SLOT)}, {sr(S_SPLIT)}, 12")
        a(f"s_add_u32 {sr(S_SLOT)}, {sr(S_SLOT)}, {sr(S_SPIN)}")

    def slot_stores(o0, o1, ml, fl):
        a(f"buffer_store_dwordx4 {vr(o0,4)}, {vr(V_OFFV)}, {sr(SRD_WS,4)}, {sr(S_SLOT)} offen {fl}".rstrip())
        a(f"buffer_store_dwordx4 {vr(o1,4)}, {vr(V_OFFV)}, {sr(SRD_WS,4)}, {sr(S_SLOT)} offen offset:1024 {fl}".rstrip())
        a("s_mov_b32 exec_lo, 0x10001")
        a("s_mov_b32 exec_hi, 0x10001")
        a(f"buffer_store_dwordx2 {vr(ml,2)}, {vr(V_H8)}, {sr(SRD_WS,4)}, {sr(S_SLOT)} offen offset:2048 {fl}".rstrip())
        a("s_mov_b64 exec, -1")

    def v_srd():
        a(f"s_add_u32 {sr(SRD_V)}, {sr(S_V)}, {sr(S_T0)}")
        a(f"s_addc_u32 {sr(SRD_V+1)}, {sr(S_V+1)}, 0")
        a(f"s_mov_b32 {sr(SRD_V+2)}, {nrec}")
        a(f"s_mov_b32 {sr(SRD_V+3)}, 0x20000")

    def out_srd():
        a(f"s_mov_b32 {sr(SRD_OUT)}, {sr(S_OUT)}")
        a(f"s_mov_b32 {sr(SRD_OUT+1)}, {sr(S_OUT+1)}")
        a(f"s_mov_b32 {sr(SRD_OUT+2)}, {64*1024}")
        a(f"s_mov_b32 {sr(SRD_OUT+3)}, 0x20000")

    def setup_rest():
        stamp(1)
        v_srd()
        ws_srd()
        a(f"s_mul_i32 {sr(S_T1)}, {sr(S_WAVE)}, {(NA+1)*2048}")
        a(f"v_add_u32 {vr(V_LW)}, {sr(S_T1)}, {vr(V_OFFV)}")
        a(f"v_add_u32 {vr(V_LR)}, {sr(S_T1)}, {vr(V_OFFV)}")
        a(f"v_mov_b32 {vr(V_M)}, 0xff800000")
        a(f"v_mov_b32 {vr(V_L)}, 0")
        a(f"s_mov_b32 {sr(S_SELLO)}, 0x05040100")
        a(f"s_mov_b32 {sr(S_SELHI)}, 0x07060302")
        a(f"s_mov_b32 {sr(S_C)}, 0x{f32bits(scale_log2e):08x}")
        a(f"s_mov_b32 {sr(S_MASK)}, 0x000f000f")
        a(f"s_mov_b32 {sr(S_MASK+1)}, {sr(S_MASK)}")
        for b in range(1, 4):
            a(f"s_lshl_b64 {sr(S_MASK+2*b,2)}, {sr(S_MASK,2)}, {4*b}")
        for i in range(1, NSPLIT):
            a(f"s_xor_b32 {sr(S_OTH+i-1)}, {sr(S_SLOT)}, {i*SLOT}")
        out_srd()

    def dpp(b, r):
        n = (4 * (b - r)) % 16
        ctl = "quad_perm:[0,1,2,3]" if n == 0 else f"row_ror:{n}"
        return f"{ctl} row_mask:0xf bank_mask:0x{1<<b:x}"

    def k_dpp(j, r):
        i, b = j % 8, (j // 8) % 4
        s_ = V_S + i
        d = V_DA + 4 * i + r
        if r == 0:
            a.op("dpp", f"v_mov_b32_dpp {vr(s_)}, {vr(d)} {dpp(b, 0)}", [s_], [d])
        else:
            a.op("dpp", f"v_add_f32_dpp {vr(s_)}, {vr(d)}, {vr(s_)} {dpp(b, r)}", [s_], [d, s_])

    def v_perms(j, z):
        T, p_ = (j - NK) // 8, (j % 8) // 2
        stg = V_STG + 32 * (T % 2)
        for q in range(4):
            lo, hi = lbuf(j - 1) + q, lbuf(j) + q
            d = stg + 8 * q + 4 * z + p_
            a.op("valu", f"v_perm_b32 {vr(d)}, {vr(hi)}, {vr(lo)}, {sr(S_SELHI if z else S_SELLO)}", [d], [lo, hi])

    def step(j):
        if j < NK:
            if j == 0:
                stamp(2)
            d = V_DA + 4 * (j % 8)
            a.op("mfma", f"v_mfma_f32_16x16x32_bf16 {vr(d,4)}, {vr(lbuf(j),4)}, {vr(V_Q,4)}, 0", R4(d), [])
        for r in range(4):
            jj = j - 2 - r
            if 0 <= jj < NK:
                k_dpp(jj, r)
        jj = j - 6
        if 0 <= jj < NK and (jj // 8) % 4 == 3:
            s_ = V_S + jj % 8
            a.op("valu", f"v_max_f32 {vr(V_M)}, {vr(V_M)}, {vr(s_)}", [V_M], [V_M, s_])
            if jj % 4 == 3:
                h = (jj % 8) // 4
                a(f"ds_write_b128 {vr(V_LW)}, {vr(V_S+4*h,4)} offset:{LDS_S+1024*h}")
                if h == 1:
                    a(f"v_add_u32 {vr(V_LW)}, 2048, {vr(V_LW)}")
        if NK <= j < NL and j % 2 == 1:
            v_perms(j, 0)
        if NK <= j - 1 < NL and (j - 1) % 2 == 1:
            v_perms(j - 1, 1)

    fifo = []

    def allreduce_fns(op, reg):
        def f1():
            a.op("dpp", f"{op}_dpp {vr(reg)}, {vr(reg)}, {vr(reg)} row_ror:4 row_mask:0xf bank_mask:0xf", [reg], [reg])
        def f2():
            a.op("dpp", f"{op}_dpp {vr(reg)}, {vr(reg)}, {vr(reg)} row_ror:8 row_mask:0xf bank_mask:0xf", [reg], [reg])
            a.op("valu", f"v_mov_b32 {vr(V_T0)}, {vr(reg)}", [V_T0], [reg])
        def f3():
            a.op("dpp", f"v_permlane32_swap_b32 {vr(V_T0)}, {vr(reg)}", [V_T0, reg], [V_T0, reg])
            a("s_nop 0")
            a.op("valu", f"{op} {vr(reg)}, {vr(V_T0)}, {vr(reg)}", [reg], [V_T0, reg])
            a.op("valu", f"v_mov_b32 {vr(V_T0)}, {vr(reg)}", [V_T0], [reg])
        def f4():
            a.op("dpp", f"v_permlane16_swap_b32 {vr(V_T0)}, {vr(reg)}", [V_T0, reg], [V_T0, reg])
            a("s_nop 0")
            a.op("valu", f"{op} {vr(reg)}, {vr(V_T0)}, {vr(reg)}", [reg], [V_T0, reg])
        return [f1, f2, f3, f4]

    def rd():
        a(f"ds_read_b128 {vr(V_S,4)}, {vr(V_LR)} offset:{LDS_S}")
        a(f"ds_read_b128 {vr(V_S+4,4)}, {vr(V_LR)} offset:{LDS_S+1024}")
        a(f"v_add_u32 {vr(V_LR)}, 2048, {vr(V_LR)}")

    def fm(lo):
        def f():
            if lo == 0:
                a("s_waitcnt lgkmcnt(0)")
            for i in range(V_S + lo, V_S + lo + 4):
                a.op("valu", f"v_fma_f32 {vr(i)}, {vr(i)}, {sr(S_C)}, -{vr(V_M)}", [i], [i, V_M])
        return f

    def ex(lo):
        def f():
            for i in range(V_S + lo, V_S + lo + 2):
                a.op("trans", f"v_exp_f32 {vr(i)}, {vr(i)}", [i], [i])
        return f

    def cv():
        for i in range(4):
            a.op("valu", f"v_cvt_pk_bf16_f32 {vr(V_P+i)}, {vr(V_S+2*i)}, {vr(V_S+2*i+1)}", [V_P + i], [V_S + 2 * i, V_S + 2 * i + 1])

    def add(d, x, y):
        a.op("valu", f"v_add_f32 {vr(d)}, {vr(x)}, {vr(y)}", [d], [x, y])

    def s1():
        for i in range(0, 8, 2):
            add(V_S + i, V_S + i, V_S + i + 1)

    def s2():
        add(V_S, V_S, V_S + 2)
        add(V_S + 4, V_S + 4, V_S + 6)
        add(V_S, V_S, V_S + 4)
        add(V_L, V_L, V_S)

    def mask_item(T):
        def f():
            PM = V_PM + 4 * (T % 2)
            for i in range(4):
                a.op("valu", f"v_cndmask_b32 {vr(PM+i)}, 0, {vr(V_P+i)}, {sr(S_MASK+2*(T%4),2)}", [PM + i], [V_P + i])
        return f

    def pv_item(T, dd):
        def f():
            PM = V_PM + 4 * (T % 2)
            bq = V_STG + 32 * (T % 2) + 4 * dd
            d = V_DA + 4 * dd
            extra = R4(d) if T == NT - 1 else []
            a.op("mfma", f"v_mfma_f32_16x16x32_bf16 {vr(d,4)}, {vr(PM,4)}, {vr(bq,4)}, {'0' if T == 0 else vr(d,4)}", R4(d), R4(PM) + R4(bq) + extra)
        return f

    def mscale():
        a.op("valu", f"v_mul_f32 {vr(V_M)}, {sr(S_C)}, {vr(V_M)}", [V_M], [V_M])
        stamp(4)

    pre = [fm(0), fm(4), ex(0), ex(2), ex(4), ex(6)]
    fifo.append((NK + 5, None, lambda: (stamp(3), rd()), False))
    for f in allreduce_fns("v_max_f32", V_M) + [mscale] + pre + [cv, mask_item(0)]:
        fifo.append((NK + 5, None, f, False))
    ORDER = [0, 2, 4, 6, 1, 3, 5, 7]
    for T in range(NT - 1):
        A, b = T // 4, T % 4
        base = NK + 8 * T
        lastg = A == NA - 1
        for dd in ORDER:
            fifo.append((base + 7 + (dd % 2), base + 17, pv_item(T, dd), False))
        side = []
        if b != 3 and T + 1 < NT - 1:
            side.append((mask_item(T + 1), False))
        if b == 0:
            side += [(s1, False), (s2, False), (rd, lastg)]
        if b == 1:
            side += [(f, lastg) for f in pre[:3]]
        if b == 2 and not lastg:
            side += [(f, False) for f in pre[3:]]
        if b == 3:
            side += [(cv, False), (mask_item(T + 1), False)]
        for f, opt in side:
            fifo.append((0, None, f, opt))

    def red(stage, lo, hi):
        def f():
            for dd in range(lo, hi):
                d = V_DA + 4 * dd
                if stage == 0:
                    a.op("dpp", f"v_permlane32_swap_b32 {vr(d)}, {vr(d+2)}", [d, d + 2], [d, d + 2])
                    a.op("dpp", f"v_permlane32_swap_b32 {vr(d+1)}, {vr(d+3)}", [d + 1, d + 3], [d + 1, d + 3])
                elif stage == 1:
                    add(d, d, d + 2)
                    add(d + 1, d + 1, d + 3)
                elif stage == 2:
                    a.op("dpp", f"v_permlane16_swap_b32 {vr(d)}, {vr(d+1)}", [d, d + 1], [d, d + 1])
                else:
                    add(d, d, d + 1)
        return f

    def factors():
        a("s_waitcnt lgkmcnt(0)")
        MW, LW = OWN + 8, OWN + 9
        a.op("valu", f"v_max_f32 {vr(MW)}, {vr(ML)}, {vr(ML+2)}", [MW], [ML, ML + 2])
        for r in (ML, ML + 2, V_F):
            a.op("valu", f"v_sub_f32 {vr(r)}, {vr(r)}, {vr(MW)}", [r], [r, MW])
        for r in (ML, ML + 2, V_F):
            a.op("trans", f"v_exp_f32 {vr(r)}, {vr(r)}", [r], [r])
        a.op("valu", f"v_mul_f32 {vr(LW)}, {vr(ML)}, {vr(ML+1)}", [LW], [ML, ML + 1])
        a.op("valu", f"v_fmac_f32 {vr(LW)}, {vr(ML+2)}, {vr(ML+3)}", [LW], [ML + 2, ML + 3, LW])
        a.op("valu", f"v_min_u32 {vr(MW)}, 0xfffffffe, {vr(MW)}", [MW], [MW])
        a.op("valu", f"v_min_u32 {vr(LW)}, 0xfffffffe, {vr(LW)}", [LW], [LW])
        a(f"v_readfirstlane_b32 {sr(S_LOC)}, {vr(OWN+10)}")

    fifo.append((0, None, factors, False))
    for stage in range(4):
        fifo.append((0, None, red(stage, 0, 4), False))
        fifo.append((0, None, red(stage, 4, 8), False))

    def q_load():
        issue("Q", f"buffer_load_dwordx4 {vr(V_Q,4)}, {vr(V_T2)}, {sr(SRD_Q,4)}, 0 offen")
    if args.qat < 0:
        q_load()
    st = dict(nstep=0, fi=0, drain=False)

    def pop():
        e, dl, fn, opt = fifo[st["fi"]]
        st["fi"] += 1
        if opt and st["drain"]:
            return False
        fn()
        return True

    def run_step():
        j = st["nstep"]
        last_due = max([k for k in range(st["fi"], len(fifo)) if fifo[k][1] is not None and fifo[k][1] <= j], default=-1)
        while st["fi"] <= last_due:
            assert fifo[st["fi"]][0] < j
            pop()
        step(j)
        st["nstep"] += 1

    def run_fifo(n):
        while n > 0 and st["fi"] < len(fifo) and fifo[st["fi"]][0] < st["nstep"]:
            if pop():
                n -= 1

    did_setup = False
    marks = []
    for i in range(NL):
        need = i - depth(i)
        if need >= 0 and not did_setup:
            setup_rest()
            did_setup = True
        marks.append(len(a.lines))
        if need >= 0:
            wait_for(f"L{need}")
        if i >= 16:
            old = i - 16
            must = old if old < NK else (old | 1) + 1
            while st["nstep"] <= must:
                wait_for("Q")
                wait_for(f"L{min(st['nstep'], i-1)}")
                run_step()
        emit_load(i)
        if i == args.qat:
            q_load()
        if i == NL - 1 - args.pfat:
            a.c("bring this workgroup's slot lines into L2, so that the partial written later can be read from there")
            a(f"v_bfe_u32 {vr(V_H8)}, v0, 4, 2")
            a(f"v_lshlrev_b32 {vr(V_H8)}, 3, {vr(V_H8)}")
            for k_ in range(2):
                issue(f"PF{k_}", f"buffer_load_dwordx4 {vr(PB+4*k_,4)}, {vr(V_OFFV)}, {sr(SRD_WS,4)}, {sr(S_SLOT)} offen offset:{1024*k_} {args.pfflags}".rstrip())
            issue("PF2", f"buffer_load_dwordx2 {vr(PB+8,2)}, {vr(V_H8)}, {sr(SRD_WS,4)}, {sr(S_SLOT)} offen offset:2048 {args.pfflags}".rstrip())
        ran = 0
        while did_setup and ran < args.spl and st["nstep"] < NL and is_done(f"L{st['nstep']}") and is_done("Q"):
            run_step()
            ran += 1
        run_fifo(args.ppl)
    marks.append(len(a.lines))
    if args.fold:
        chunks = [a.lines[marks[i]:marks[i + 1]] for i in range(NL)]
        outl = list(a.lines[:marks[0]])
        i = 0
        nloop = 0
        while i < NL:
            e = i
            while e + 32 < NL and chunks[e] == chunks[e + 32]:
                e += 1
            if e - i >= 32:
                total = e + 32 - i
                full, part = divmod(total, 32)
                outl.append(f"    s_mov_b32 {sr(S_CNT)}, {full if part else full - 1}")
                outl.append(f"L_loop{nloop}:")
                for k in range(32):
                    if part and k == part:
                        outl.append(f"    s_sub_u32 {sr(S_CNT)}, {sr(S_CNT)}, 1")
                        outl.append(f"    s_cbranch_scc1 L_done{nloop}")
                    outl += chunks[i + k]
                if part:
                    outl.append(f"    s_branch L_loop{nloop}")
                else:
                    outl.append(f"    s_sub_u32 {sr(S_CNT)}, {sr(S_CNT)}, 1")
                    outl.append(f"    s_cbranch_scc0 L_loop{nloop}")
                outl.append(f"L_done{nloop}:")
                nloop += 1
                i += total
            else:
                outl += chunks[i]
                i += 1
        a.lines = outl

    st["drain"] = True
    assert any(f[2] is factors for f in fifo[st["fi"]:]), "the merge factors need the barrier below"
    assert all(f[2] not in (s1, s2) for f in fifo[st["fi"]:]), "row sums must be complete here"
    a.c("all loads issued: share (max, sum) of the two waves, take the ticket")
    for f in allreduce_fns("v_add_f32", V_L):
        f()
    a(f"s_lshl_b32 {sr(S_T1)}, {sr(S_WAVE)}, 5")
    a(f"v_and_b32 {vr(V_T1)}, 3, v0")
    a(f"v_lshl_add_u32 {vr(V_T1)}, {vr(V_T1)}, 3, {sr(S_T1)}")
    a(f"ds_write_b64 {vr(V_T1)}, {vr(V_M,2)} offset:{LDS_ML}")
    a(f"v_bfe_u32 {vr(V_T1)}, v0, 4, 2")
    a(f"v_lshlrev_b32 {vr(V_T1)}, 3, {vr(V_T1)}")
    a(f"v_add_u32 {vr(V_T0)}, {sr(S_T1)}, {vr(V_T1)}")
    a(f"v_and_b32 {vr(V_T2)}, 0x3c, v0")
    a(f"v_lshrrev_b32 {vr(V_TA)}, 2, {vr(V_T2)}")
    a(f"v_and_b32 {vr(V_TA)}, 3, {vr(V_TA)}")
    a(f"v_and_b32 {vr(V_T2)}, 0x30, {vr(V_T2)}")
    a(f"v_add3_u32 {vr(V_T2)}, {vr(V_T2)}, {vr(V_TA)}, 12")
    a(f"v_lshlrev_b32 {vr(V_T2)}, 2, {vr(V_T2)}")
    a(f"s_lshl_b32 {sr(S_T1)}, {sr(S_BH)}, 2")
    a(f"v_mov_b32 {vr(V_TA)}, {sr(S_T1)}")
    a(f"v_mov_b32 {vr(V_ONE)}, 1")
    a(f"v_mov_b32 {vr(V_TK)}, 0")
    a(f"s_cmp_lg_u32 {sr(S_WAVE)}, 0")
    a("s_waitcnt lgkmcnt(0)")
    a.c("passes only once the helper wave has ended, i.e. this workgroup's slot marking is complete")
    a("s_barrier")
    a("s_cbranch_scc1 L_noticket")
    a.count = False
    a("s_mov_b64 exec, 1")
    a(f"global_atomic_add {vr(V_TK)}, {vr(V_TA)}, {vr(V_ONE)}, {sr(S_DBG,2)} sc0")
    a("s_mov_b64 exec, -1")
    a.count = True
    a.label("L_noticket")
    a(f"v_mov_b32 {vr(OWN+11)}, 0")
    a(f"ds_read_b32 {vr(OWN+10)}, {vr(OWN+11)} offset:{LDS_LOC}")
    a(f"ds_read_b64 {vr(ML,2)}, {vr(V_T1)} offset:{LDS_ML}")
    a(f"ds_read_b64 {vr(ML+2,2)}, {vr(V_T1)} offset:{LDS_ML+32}")
    a(f"ds_read_b32 {vr(V_F)}, {vr(V_T0)} offset:{LDS_ML}")
    PL = V_PM + 4 * ((NT - 1) % 2)
    assert all(not (f[1] == NK + 8 * (NT - 3) + 17) for f in fifo[st["fi"]:]), "tile NT-3 must be multiplied"
    a.c("last tile: P with rows ordered by head, so its product needs no bank fold")
    for i in range(4):
        a(f"ds_bpermute_b32 {vr(PL+i)}, {vr(V_T2)}, {vr(V_P+i)}")
    a(f"s_mov_b32 {sr(S_SPIN)}, 0x20000")

    while st["nstep"] < NL - 1:
        wait_for(f"L{st['nstep']}")
        run_step()
        run_fifo(args.dpl)
    run_fifo(1000)
    assert st["fi"] == len(fifo), (st, len(fifo))

    PSET = [PB, V_BUF]

    def poll_loads(z=0):
        pb = PSET[z]
        for s_ in range(3):
            a(f"buffer_load_dwordx2 {vr(pb+12*s_+8,2)}, {vr(V_H8)}, {sr(SRD_WS,4)}, {sr(S_OTH+s_)} offen offset:2048 {hfl}")
        for s_ in range(3):
            a(f"buffer_load_dwordx4 {vr(pb+12*s_,4)}, {vr(V_OFFV)}, {sr(SRD_WS,4)}, {sr(S_OTH+s_)} offen {hfl}")
            a(f"buffer_load_dwordx4 {vr(pb+12*s_+4,4)}, {vr(V_OFFV)}, {sr(SRD_WS,4)}, {sr(S_OTH+s_)} offen offset:1024 {hfl}")

    a("s_waitcnt vmcnt(0)")
    state["done"] = len(loads) - 1
    stamp(5)
    a(f"v_readfirstlane_b32 {sr(S_TK)}, {vr(V_TK)}")
    run_step()
    a(f"s_cmp_lg_u32 {sr(S_TK)}, {NSPLIT-1}")
    a("s_cbranch_scc1 L_nopoll")
    a.count = False
    poll_loads()
    a.count = True
    a.label("L_nopoll")
    run_step()
    for dd in ORDER:
        pv_item(NT - 1, dd)()
    a(f"s_cmp_lg_u32 {sr(S_WAVE)}, 0")
    a("s_cbranch_scc1 L_send")
    saved = (a.pos, dict(a.wr))
    a("s_barrier")
    a(f"ds_read_b128 {vr(OTH,4)}, {vr(V_OFFV)} offset:{LDS_O}")
    a(f"ds_read_b128 {vr(OTH+4,4)}, {vr(V_OFFV)} offset:{LDS_O+1024}")
    stamp(6)
    a(f"s_cmp_eq_u32 {sr(S_TK)}, {NSPLIT-1}")
    a("s_waitcnt lgkmcnt(0)")
    for e in ORDER:
        a.op("valu", f"v_fma_f32 {vr(OWN+e)}, {vr(V_F)}, {vr(V_DA+4*e)}, {vr(OTH+e)}", [OWN + e], [V_F, V_DA + 4 * e])
    stamp(7)
    a("s_cbranch_scc1 L_again1")
    a.c("publish the partial; no word equals the all-ones marker")
    for e in range(8):
        a(f"v_min_u32 {vr(OWN+e)}, 0xfffffffe, {vr(OWN+e)}")
    a(f"s_cmp_eq_u32 {sr(S_LOC)}, 1")
    a("s_cbranch_scc0 L_pubfar")
    slot_stores(OWN, OWN + 4, OWN + 8, "")
    a("s_branch L_end")
    a.label("L_pubfar")
    slot_stores(OWN, OWN + 4, OWN + 8, hfl)
    a("s_branch L_end")

    a.label("L_send")
    a.pos, a.wr = saved
    for e in ORDER:
        a.op("valu", f"v_mul_f32 {vr(OTH+e)}, {vr(V_F)}, {vr(V_DA+4*e)}", [OTH + e], [V_F, V_DA + 4 * e])
    a(f"ds_write_b128 {vr(V_OFFV)}, {vr(OTH,4)} offset:{LDS_O}")
    a(f"ds_write_b128 {vr(V_OFFV)}, {vr(OTH+4,4)} offset:{LDS_O+1024}")
    a("s_waitcnt lgkmcnt(0)")
    a("s_barrier")
    a("s_branch L_end")

    def finish(z):
        y = 1 - z if args.sets == 2 else 0
        X = 9 if args.sets == 2 else 0
        pb = PSET[y]
        part = lambda s_: OWN if s_ == 0 else pb + 12 * (s_ - 1)
        a.label(f"L_again{z}")
        poll_loads(z)
        if args.sets == 1:
            a.label("L_again1")
        a(f"s_waitcnt vmcnt({X+6})")
        a(f"v_max3_u32 {vr(V_T1)}, {vr(pb+8)}, {vr(pb+20)}, {vr(pb+32)}")
        a(f"v_max3_f32 {vr(V_T0)}, {vr(OWN+8)}, {vr(pb+8)}, {vr(pb+20)}")
        a(f"v_cmp_eq_u32 vcc, -1, {vr(V_T1)}")
        a(f"v_max_f32 {vr(V_T0)}, {vr(V_T0)}, {vr(pb+32)}")
        a(f"s_sub_u32 {sr(S_SPIN)}, {sr(S_SPIN)}, 1")
        a(f"s_cbranch_scc1 L_go{y}")
        a(f"s_cbranch_vccnz L_again{y}")
        a.label(f"L_go{y}")
        a.c("an unwritten word is a NaN and poisons the result; that is checked before the store")
        for s_ in range(4):
            a(f"v_sub_f32 {vr(FAC+s_)}, {vr(part(s_)+8)}, {vr(V_T0)}")
        for s_ in range(4):
            a(f"v_exp_f32 {vr(FAC+s_)}, {vr(FAC+s_)}")
        a("s_nop 0")
        a(f"v_mul_f32 {vr(V_T1)}, {vr(FAC)}, {vr(OWN+9)}")
        for s_ in range(1, 4):
            a(f"v_fmac_f32 {vr(V_T1)}, {vr(FAC+s_)}, {vr(part(s_)+9)}")
        a(f"v_rcp_f32 {vr(V_T1)}, {vr(V_T1)}")
        a("s_nop 0")
        for s_ in range(4):
            a(f"v_mul_f32 {vr(FAC+s_)}, {vr(FAC+s_)}, {vr(V_T1)}")
        for e in range(8):
            a(f"v_mul_f32 {vr(OUT+e)}, {vr(FAC)}, {vr(OWN+e)}")
        for s_ in range(1, 4):
            a(f"s_waitcnt vmcnt({X+2*(3-s_)})")
            for e in range(8):
                a(f"v_fmac_f32 {vr(OUT+e)}, {vr(FAC+s_)}, {vr(part(s_)+e)}")
        a(f"v_cmp_u_f32 vcc, {vr(OUT)}, {vr(OUT+1)}")
        a(f"v_cmp_u_f32 {sr(S_NAN,2)}, {vr(OUT+2)}, {vr(OUT+3)}")
        a(f"v_cvt_pk_bf16_f32 {vr(OUT+8)}, {vr(OUT)}, {vr(OUT+1)}")
        a(f"s_or_b64 {sr(S_NAN,2)}, {sr(S_NAN,2)}, vcc")
        a(f"v_cmp_u_f32 vcc, {vr(OUT+4)}, {vr(OUT+5)}")
        a(f"v_cvt_pk_bf16_f32 {vr(OUT+9)}, {vr(OUT+2)}, {vr(OUT+3)}")
        a(f"s_or_b64 {sr(S_NAN,2)}, {sr(S_NAN,2)}, vcc")
        a(f"v_cmp_u_f32 vcc, {vr(OUT+6)}, {vr(OUT+7)}")
        a(f"v_cvt_pk_bf16_f32 {vr(OUT+10)}, {vr(OUT+4)}, {vr(OUT+5)}")
        a(f"v_cvt_pk_bf16_f32 {vr(OUT+11)}, {vr(OUT+6)}, {vr(OUT+7)}")
        a(f"s_or_b64 {sr(S_NAN,2)}, {sr(S_NAN,2)}, vcc")
        a("s_cbranch_scc0 L_store")
        a.c("NaN in the result: poll again if a marker word is still there, else the NaN is genuine")
        regs = [pb + 12 * s_ + e for s_ in range(3) for e in range(10)]
        a(f"v_max3_u32 {vr(V_T0)}, {vr(regs[0])}, {vr(regs[1])}, {vr(regs[2])}")
        a(f"v_max3_u32 {vr(V_T1)}, {vr(regs[3])}, {vr(regs[4])}, {vr(regs[5])}")
        rest = regs[6:]
        k = 0
        while rest:
            t = V_T0 if k % 2 == 0 else V_T1
            a(f"v_max3_u32 {vr(t)}, {vr(t)}, {vr(rest[0])}, {vr(rest[1])}")
            rest = rest[2:]
            k += 1
        a(f"v_max_u32 {vr(V_T0)}, {vr(V_T0)}, {vr(V_T1)}")
        a(f"v_cmp_eq_u32 vcc, -1, {vr(V_T0)}")
        a(f"s_cmp_lt_i32 {sr(S_SPIN)}, 0")
        a("s_cbranch_scc1 L_store")
        a("s_nop 2")
        a(f"s_cbranch_vccnz L_again{y}")
        a("s_branch L_store")

    finish(0)
    if args.sets == 2:
        finish(1)
    a.label("L_store")
    stamp(8)
    a(f"buffer_store_dwordx4 {vr(OUT+8,4)}, {vr(V_OFFV)}, {sr(SRD_OUT,4)}, {sr(S_OOFF)} offen {args.oflags}".rstrip())
    if args.stamps:
        a("s_waitcnt vmcnt(0)")
    stamp(9)
    a.label("L_end")
    dump_stamps()
    a.label("L_exit")
    a("s_endpgm")

    a.label("L_helper")
    a.c("helper wave: mark this workgroup's partial slot as not yet written (all-ones words), and find out")
    a.c("with a challenge/echo through d_ws whether all four splits run on this XCD (then L2 carries the hand-off)")
    H_OWN, H_PEER, H_X, H_N, H_C, H_A = 16, 17, 18, 19, 20, 21
    CHAL, ACK = 3072, 3200
    if args.hdelay:
        a(f"s_sleep {args.hdelay}")
    ws_srd()
    a(f"v_bfe_u32 {vr(V_H8)}, v0, 4, 2")
    a(f"v_lshlrev_b32 {vr(V_H8)}, 3, {vr(V_H8)}")
    a(f"v_lshrrev_b32 {vr(V_T0)}, 4, {vr(V_OFFV)}")
    a(f"v_lshlrev_b32 {vr(V_T1)}, 2, {vr(V_T0)}")
    a(f"v_add_u32 {vr(H_OWN)}, {sr(S_SLOT)}, {vr(V_T1)}")
    a(f"v_lshlrev_b32 {vr(V_T0)}, 12, {vr(V_T0)}")
    a(f"v_xor_b32 {vr(H_PEER)}, {vr(V_T0)}, {vr(H_OWN)}")
    for i in range(4):
        a(f"v_mov_b32 {vr(V_P+i)}, -1")
    a(f"s_getreg_b32 {sr(S_T1)}, hwreg(HW_REG_XCC_ID, 0, 4)")
    a("s_mov_b64 exec, 14")
    a(f"buffer_load_dword {vr(H_X)}, {vr(H_OWN)}, {sr(SRD_WS,4)}, 0 offen offset:{ACK} {hfl}")
    a("s_mov_b64 exec, -1")
    slot_stores(V_P, V_P, V_P, "")
    a("s_mov_b64 exec, 14")
    a("s_waitcnt vmcnt(0)")
    a(f"v_add_u32 {vr(H_N)}, 16, {vr(H_X)}")
    a(f"v_and_b32 {vr(H_N)}, -16, {vr(H_N)}")
    a(f"buffer_store_dword {vr(H_N)}, {vr(H_OWN)}, {sr(SRD_WS,4)}, 0 offen offset:{CHAL}")
    a(f"v_or_b32 {vr(H_X)}, {sr(S_T1)}, {vr(H_N)}")
    a(f"s_mov_b32 {sr(S_CNT)}, {args.hrounds-1}")
    a.label("L_echo")
    a(f"s_sleep {args.hsleep}")
    a(f"buffer_load_dword {vr(H_C)}, {vr(H_PEER)}, {sr(SRD_WS,4)}, 0 offen offset:{CHAL} {hfl}")
    a("s_waitcnt vmcnt(0)")
    a(f"v_and_b32 {vr(H_C)}, -16, {vr(H_C)}")
    a(f"v_or_b32 {vr(H_C)}, {sr(S_T1)}, {vr(H_C)}")
    a(f"buffer_store_dword {vr(H_C)}, {vr(H_PEER)}, {sr(SRD_WS,4)}, 0 offen offset:{ACK}")
    a(f"s_sub_u32 {sr(S_CNT)}, {sr(S_CNT)}, 1")
    a("s_cbranch_scc0 L_echo")
    a(f"s_sleep {args.hsleep}")
    a(f"buffer_load_dword {vr(H_A)}, {vr(H_OWN)}, {sr(SRD_WS,4)}, 0 offen offset:{ACK} {hfl}")
    a("s_waitcnt vmcnt(0)")
    a(f"v_cmp_eq_u32 vcc, {vr(H_A)}, {vr(H_X)}")
    a("s_mov_b64 exec, -1")
    a(f"v_mov_b32 {vr(V_T0)}, 0")
    a("s_cmp_eq_u64 vcc, 14")
    a(f"s_cselect_b32 {sr(S_T0)}, {0 if args.nolocal else 1}, 0")
    a(f"v_mov_b32 {vr(V_T1)}, {sr(S_T0)}")
    a(f"ds_write_b32 {vr(V_T0)}, {vr(V_T1)} offset:{LDS_LOC}")
    a(f"s_cmp_eq_u32 {sr(S_T0)}, 1")
    a("s_cbranch_scc1 L_hend")
    a.c("not verified: the marking has to reach memory")
    slot_stores(V_P, V_P, V_P, hfl)
    a.label("L_hend")
    a("s_waitcnt vmcnt(0) lgkmcnt(0)")
    a("s_endpgm")

    nvgpr = V_END
    accum = min(256, (nvgpr + 3) // 4 * 4)
    out = HEADER
    out += f"; @launch grid=({NWG},1,1) block=({(NW+1)*64},1,1) lds={LDS_BYTES}\n"
    out += '.amdgcn_target "amdgcn-amd-amdhsa--gfx950"\n.text\n'
    out += f".globl {NAME}\n.p2align 8\n.type {NAME},@function\n{NAME}:\n"
    out += a.text()
    out += f""".section .rodata,"a"
.p2align 6
.amdhsa_kernel {NAME}
  .amdhsa_next_free_vgpr {nvgpr}
  .amdhsa_next_free_sgpr {S_NEXT}
  .amdhsa_accum_offset {accum}
  .amdhsa_group_segment_fixed_size 0
  .amdhsa_kernarg_size 48
  .amdhsa_user_sgpr_count 2
  .amdhsa_user_sgpr_kernarg_segment_ptr 1
  .amdhsa_system_sgpr_workgroup_id_x 1
.end_amdhsa_kernel
"""
    return out


if __name__ == "__main__":
    ap = argparse.ArgumentParser()
    ap.add_argument("--d", type=int, default=11)
    ap.add_argument("--bf", type=float, default=2.0)
    ap.add_argument("--bd", type=int, default=13)
    ap.add_argument("--pfflags", default="")
    ap.add_argument("--strict", type=lambda x: int(x, 0), default=0x55)
    ap.add_argument("--pfat", type=int, default=8)
    ap.add_argument("--hrounds", type=int, default=3)
    ap.add_argument("--hsleep", type=int, default=16)
    ap.add_argument("--nolocal", type=int, default=0)
    ap.add_argument("--sets", type=int, default=1)
    ap.add_argument("--qat", type=int, default=-1)
    ap.add_argument("--hdelay", type=int, default=0)
    ap.add_argument("--sn", type=int, default=0)
    ap.add_argument("--sd", type=int, default=13)
    ap.add_argument("--ppl", type=int, default=2, help="side items per load slot")
    ap.add_argument("--dpl", type=int, default=4, help="side items per step while draining")
    ap.add_argument("--spl", type=int, default=1, help="max steps per load slot")
    ap.add_argument("--fold", type=int, default=1)
    ap.add_argument("--touch", type=int, default=0)
    ap.add_argument("--padx", default="")
    ap.add_argument("--flags", default="nt")
    ap.add_argument("--hflags", default="sc1")
    ap.add_argument("--oflags", default="")
    ap.add_argument("--rot", type=int, default=16)
    ap.add_argument("--stamps", type=int, default=0)
    ap.add_argument("-o", default="standalone__gqa_softmax__decode.s")
    args = ap.parse_args()
    open(args.o, "w").write(gen(args))
```

```python
import argparse
import math
import struct

HEADER = """; GQA decode attention (B=8, Hq=32, Hkv=8, Sq=1, Sk=8192, D=128), split-K flash decoding, one launch.
;
; Pass 2 (V): p = exp2(s*c - max), bf16 P is the A operand, V is transposed in registers (v_perm) as the B operand.
; Split partials (O, max, sum in fp32) meet in d_ws: every slot is first marked empty, a ticket counter in d_debug names
"""
NAME = "standalone__gqa_softmax__decode_kernel"


def f32bits(x):
    return struct.unpack("<I", struct.pack("<f", x))[0]


class Asm:
    def __init__(self):
        self.lines = []
        self.pos = 0
        self.count = True
        self.wr = {}

    def __call__(self, s):
        self.lines.append("    " + s)
        if self.count:
            self.pos += int(s.split()[1]) + 1 if s.startswith("s_nop") else 1

    def op(self, kind, text, writes, reads):
        need = 0
        for r in set(reads) | (set(writes) if kind != "mfma" else set()):
            if r not in self.wr:
                continue
            p_, k = self.wr[r]
            dist = self.pos - p_ - 1
            req = 0
            if k == "mfma":
                req = 8
            elif r in reads or kind == "dpp":
                if kind in ("dpp", "mfma"):
                    req = 2
                elif k == "trans" and kind != "trans":
                    req = 1
            need = max(need, req - dist)
        if need > 0:
            self(f"s_nop {need-1}")
        here = self.pos
        self(text)
        for r in writes:
            self.wr[r] = (here, "valu" if kind in ("dpp", "mem") else kind)

    def label(self, l):
        self.lines.append(l + ":")

    def c(self, s):
        self.lines.append("    ; " + s)

    def text(self):
        return "\n".join(self.lines) + "\n"


def vr(a, n=1):
    return f"v{a}" if n == 1 else f"v[{a}:{a+n-1}]"


def sr(a, n=1):
    return f"s{a}" if n == 1 else f"s[{a}:{a+n-1}]"


def gen(args):
    NSPLIT = 4
    NW = 2
    NB = 2
    KPWG = 8192 // NSPLIT
    KPW = KPWG // NW
    NT = KPW // 32
    NA = NT // 4
    NWG = 64 * NSPLIT
    flags = args.flags
    hfl = args.hflags
    SLOT = 4096
    LDS_O = 0
    LDS_ML = 2048
    LDS_LOC = 2176
    LDS_S = 3072
    LDS_BYTES = LDS_S + NW * (NA + 1) * 2048
    scale_log2e = (128 ** -0.5) * math.log2(math.e)

    a = Asm()
    S_Q, S_K, S_V, S_OUT, S_DBG, S_WS = 4, 6, 8, 10, 12, 14
    SRD_K, SRD_V, SRD_Q, SRD_WS, SRD_OUT = 16, 20, 24, 28, 32
    S_BH, S_SPLIT, S_WAVE, S_T0, S_T1 = 36, 37, 38, 39, 40
    S_OFFK, S_OFFV, S_SELLO, S_SELHI, S_C = 41, 42, 43, 44, 45
    S_MASK = 46
    S_SLOT = 54
    S_OTH = 55
    S_SPIN, S_TK, S_CNT, S_OOFF = 58, 59, 60, 61
    S_NAN = 62
    S_LOC = 64
    S_NEXT = 66
    S_ST = S_NEXT
    NSTAMP = 10
    if args.stamps:
        S_NEXT = S_ST + 2 * NSTAMP + 4

    def stamp(i, wait=False):
        if args.stamps:
            a(f"s_memrealtime {sr(S_ST+2*i,2)}")
            if wait:
                a("s_waitcnt lgkmcnt(0)")

    def dump_stamps():
        if not args.stamps:
            return
        SB = S_ST + 2 * NSTAMP
        a("s_waitcnt lgkmcnt(0)")
        if args.padx:
            sa, sb, amp, wg = (int(x) for x in args.padx.split(","))
            if wg >= 0:
                a(f"s_cmp_lg_u32 s2, {wg}")
                a("s_cbranch_scc1 L_exit")
            a(f"s_cmp_eq_u32 {sr(S_ST+2*sb)}, 0")
            a("s_cbranch_scc1 L_exit")
            a(f"s_sub_u32 {sr(SB)}, {sr(S_ST+2*sb)}, {sr(S_ST+2*sa)}")
            a(f"s_min_u32 {sr(SB)}, {sr(SB)}, 5000")
            a(f"s_mul_i32 {sr(SB)}, {sr(SB)}, {amp}")
            a(f"s_add_u32 {sr(SB)}, {sr(SB)}, 6000")
            a(f"s_add_u32 {sr(SB)}, {sr(SB)}, {sr(S_ST)}")
            a.label("L_spin")
            a(f"s_memrealtime {sr(SB+2,2)}")
            a("s_waitcnt lgkmcnt(0)")
            a(f"s_sub_u32 {sr(SB+1)}, {sr(SB+2)}, {sr(SB)}")
            a(f"s_cmp_lt_i32 {sr(SB+1)}, 0")
            a("s_cbranch_scc1 L_spin")
            return
        a(f"s_mul_i32 {sr(SB+2)}, s2, {NW+1}")
        a(f"s_add_u32 {sr(SB+2)}, {sr(SB+2)}, {sr(S_WAVE)}")
        a(f"s_lshl_b32 {sr(SB+2)}, {sr(SB+2)}, 7")
        a(f"s_add_u32 {sr(SB+2)}, {sr(SB+2)}, {16<<20}")
        a(f"s_add_u32 {sr(SB)}, {sr(S_WS)}, {sr(SB+2)}")
        a(f"s_addc_u32 {sr(SB+1)}, {sr(S_WS+1)}, 0")
        a("s_mov_b64 exec, 1")
        a("v_mov_b32 v4, 0")
        for i in range(NSTAMP):
            a(f"v_mov_b32 v6, {sr(S_ST+2*i)}")
            a(f"v_mov_b32 v7, {sr(S_ST+2*i+1)}")
            a(f"global_store_dwordx2 v4, v[6:7], {sr(SB,2)} offset:{8*i}")
            a("s_nop 1")
        a("s_getreg_b32 s3, hwreg(HW_REG_XCC_ID)")
        a("v_mov_b32 v6, s3")
        a("s_getreg_b32 s3, hwreg(HW_REG_HW_ID)")
        a("v_mov_b32 v7, s3")
        a(f"global_store_dwordx2 v4, v[6:7], {sr(SB,2)} offset:{8*NSTAMP}")

    V_OFFK, V_OFFV, V_T0, V_T1, V_T2, V_M, V_L = 1, 2, 3, 4, 5, 6, 7
    V_Q = 8
    V_TA, V_ONE, V_TK, V_F = 8, 9, 10, 11
    V_P = 12
    V_PM = 16
    V_STG = 24
    V_DA = 88
    V_S = 120
    V_LW, V_LR = 128, 129
    V_H8 = 130
    V_BUF = 132
    OWN = V_BUF + 64
    PB = OWN + 12
    OTH = PB + 36
    ML = OTH + 8
    V_END = ML + 4
    assert V_END <= 256
    FREE = V_STG + 32 * ((NT - 2) % 2)
    FAC, OUT = FREE, FREE + 4
    R4 = lambda b_: list(range(b_, b_ + 4))

    a(f"s_cmp_ge_u32 s2, {NWG}")
    a("s_cbranch_scc1 L_exit")
    if args.stamps:
        for i in range(NSTAMP):
            a(f"s_mov_b64 {sr(S_ST+2*i,2)}, 0")
    stamp(0)
    a(f"s_load_dwordx8 {sr(4,8)}, s[0:1], 0")
    a(f"s_load_dwordx4 {sr(12,4)}, s[0:1], 32")
    a(f"v_lshrrev_b32 {vr(V_T0)}, 6, v0")
    a(f"v_and_b32 {vr(V_OFFV)}, 63, v0")
    a(f"v_readfirstlane_b32 {sr(S_WAVE)}, {vr(V_T0)}")
    a.c("id bits (0,1,2 | 3,4,5 | 6,7) -> bh bits (1,2,5 | 0,3,4), split: spreads DRAM stacks/banks (speed only)")
    a(f"s_and_b32 {sr(S_BH)}, s2, 3")
    a(f"s_lshl_b32 {sr(S_BH)}, {sr(S_BH)}, 1")
    a(f"s_bfe_u32 {sr(S_T0)}, s2, 0x10003")
    a(f"s_or_b32 {sr(S_BH)}, {sr(S_BH)}, {sr(S_T0)}")
    a(f"s_lshr_b32 {sr(S_T0)}, s2, 1")
    a(f"s_and_b32 {sr(S_T0)}, {sr(S_T0)}, 0x18")
    a(f"s_or_b32 {sr(S_BH)}, {sr(S_BH)}, {sr(S_T0)}")
    a(f"s_lshl_b32 {sr(S_T0)}, s2, 3")
    a(f"s_and_b32 {sr(S_T0)}, {sr(S_T0)}, 0x20")
    a(f"s_or_b32 {sr(S_BH)}, {sr(S_BH)}, {sr(S_T0)}")
    a(f"s_lshr_b32 {sr(S_SPLIT)}, s2, 6")
    a(f"v_and_b32 {vr(V_T0)}, 3, v0")
    a(f"v_bfe_u32 {vr(V_T1)}, v0, 2, 2")
    a(f"v_bfe_u32 {vr(V_T2)}, v0, 4, 2")
    a(f"v_lshlrev_b32 {vr(V_T2)}, 6, {vr(V_T2)}")
    a(f"v_lshl_add_u32 {vr(V_OFFK)}, {vr(V_T1)}, 8, {vr(V_T2)}")
    a(f"v_lshl_add_u32 {vr(V_OFFK)}, {vr(V_T0)}, 4, {vr(V_OFFK)}")
    a(f"v_lshl_add_u32 {vr(V_T2)}, {vr(V_T0)}, 8, {vr(V_T2)}")
    a(f"v_lshl_add_u32 {vr(V_T2)}, {vr(V_T1)}, 4, {vr(V_T2)}")
    a(f"v_lshlrev_b32 {vr(V_OFFV)}, 4, {vr(V_OFFV)}")
    a(f"s_lshl_b32 {sr(S_T0)}, {sr(S_BH)}, 21")
    a(f"s_lshl_b32 {sr(S_T1)}, {sr(S_SPLIT)}, 19")
    a(f"s_add_u32 {sr(S_T0)}, {sr(S_T0)}, {sr(S_T1)}")
    tile_stride = 8192 * NW
    nrec = KPWG * 256
    a(f"s_lshl_b32 {sr(S_OFFK)}, {sr(S_WAVE)}, 13")
    if args.rot:
        a.c("start phase inside the key range (wraps around): staggers DRAM bank changes")
        a(f"s_and_b32 {sr(S_T1)}, s2, 7")
        a(f"s_mul_i32 {sr(S_T1)}, {sr(S_T1)}, {args.rot*1024}")
        a(f"s_add_u32 {sr(S_OFFK)}, {sr(S_OFFK)}, {sr(S_T1)}")
    a(f"s_mov_b32 {sr(S_OFFV)}, {sr(S_OFFK)}")
    a(f"s_mov_b32 {sr(SRD_K+2)}, {nrec}")
    a(f"s_mov_b32 {sr(SRD_K+3)}, 0x20000")
    a(f"s_mov_b32 {sr(SRD_Q+2)}, 1024")
    a(f"s_mov_b32 {sr(SRD_Q+3)}, 0x20000")
    a(f"s_lshl_b32 {sr(S_OOFF)}, {sr(S_BH)}, 10")
    a(f"s_cmp_eq_u32 {sr(S_WAVE)}, {NW}")
    a("s_waitcnt lgkmcnt(0)")
    a("s_cbranch_scc1 L_helper")
    a(f"s_add_u32 {sr(SRD_K)}, {sr(S_K)}, {sr(S_T0)}")
    a(f"s_addc_u32 {sr(SRD_K+1)}, {sr(S_K+1)}, 0")
    a(f"s_add_u32 {sr(SRD_Q)}, {sr(S_Q)}, {sr(S_OOFF)}")
    a(f"s_addc_u32 {sr(SRD_Q+1)}, {sr(S_Q+1)}, 0")

    loads = []
    state = dict(done=-1)

    def issue(name, text):
        a(text)
        loads.append(name)

    def wait_for(name):
        k = loads.index(name)
        if k > state["done"]:
            n = len(loads) - 1 - k
            assert n <= 63
            a(f"s_waitcnt vmcnt({n})")
            state["done"] = k

    def is_done(name):
        return name in loads and loads.index(name) <= state["done"]

    NK = NT * 8
    NL = 2 * NK

    def lbuf(j):
        return V_BUF + 4 * (j % 16)

    def emit_load(i):
        j = i % 8
        if i < NK:
            voff, srd, soff = V_OFFK, SRD_K, S_OFFK
        else:
            voff, srd, soff = V_OFFV, SRD_V, S_OFFV
        issue(f"L{i}", f"buffer_load_dwordx4 {vr(lbuf(i),4)}, {vr(voff)}, {sr(srd,4)}, {sr(soff)} offen offset:{1024*(j%4)} {flags}".rstrip())
        if j % 4 == 3:
            inc = 4096 if j == 3 else tile_stride - 4096
            a(f"s_add_u32 {sr(soff)}, {sr(soff)}, {inc}")
            if j == 7 and args.rot:
                a(f"s_and_b32 {sr(soff)}, {sr(soff)}, {nrec-1}")

    def depth(i):
        if i < args.sn:
            return args.sd
        if i >= NL * args.bf:
            return args.bd
        return args.d - (1 if (args.strict >> (i % 8)) & 1 else 0)

    def ws_srd():
        a(f"s_mov_b32 {sr(SRD_WS)}, {sr(S_WS)}")
        a(f"s_mov_b32 {sr(SRD_WS+1)}, {sr(S_WS+1)}")
        a(f"s_mov_b32 {sr(SRD_WS+2)}, {NWG*SLOT}")
        a(f"s_mov_b32 {sr(SRD_WS+3)}, 0x20000")
        a(f"s_lshl_b32 {sr(S_SPIN)}, {sr(S_BH)}, 14")
        a(f"s_lshl_b32 {sr(S_SLOT)}, {sr(S_SPLIT)}, 12")
        a(f"s_add_u32 {sr(S_SLOT)}, {sr(S_SLOT)}, {sr(S_SPIN)}")

    def slot_stores(o0, o1, ml, fl):
        a(f"buffer_store_dwordx4 {vr(o0,4)}, {vr(V_OFFV)}, {sr(SRD_WS,4)}, {sr(S_SLOT)} offen {fl}".rstrip())
        a(f"buffer_store_dwordx4 {vr(o1,4)}, {vr(V_OFFV)}, {sr(SRD_WS,4)}, {sr(S_SLOT)} offen offset:1024 {fl}".rstrip())
        a("s_mov_b32 exec_lo, 0x10001")
        a("s_mov_b32 exec_hi, 0x10001")
        a(f"buffer_store_dwordx2 {vr(ml,2)}, {vr(V_H8)}, {sr(SRD_WS,4)}, {sr(S_SLOT)} offen offset:2048 {fl}".rstrip())
        a("s_mov_b64 exec, -1")

    def v_srd():
        a(f"s_add_u32 {sr(SRD_V)}, {sr(S_V)}, {sr(S_T0)}")
        a(f"s_addc_u32 {sr(SRD_V+1)}, {sr(S_V+1)}, 0")
        a(f"s_mov_b32 {sr(SRD_V+2)}, {nrec}")
        a(f"s_mov_b32 {sr(SRD_V+3)}, 0x20000")

    def out_srd():
        a(f"s_mov_b32 {sr(SRD_OUT)}, {sr(S_OUT)}")
        a(f"s_mov_b32 {sr(SRD_OUT+1)}, {sr(S_OUT+1)}")
        a(f"s_mov_b32 {sr(SRD_OUT+2)}, {64*1024}")
        a(f"s_mov_b32 {sr(SRD_OUT+3)}, 0x20000")

    def setup_rest():
        stamp(1)
        v_srd()
        ws_srd()
        a(f"s_mul_i32 {sr(S_T1)}, {sr(S_WAVE)}, {(NA+1)*2048}")
        a(f"v_add_u32 {vr(V_LW)}, {sr(S_T1)}, {vr(V_OFFV)}")
        a(f"v_add_u32 {vr(V_LR)}, {sr(S_T1)}, {vr(V_OFFV)}")
        a(f"v_mov_b32 {vr(V_M)}, 0xff800000")
        a(f"v_mov_b32 {vr(V_L)}, 0")
        a(f"s_mov_b32 {sr(S_SELLO)}, 0x05040100")
        a(f"s_mov_b32 {sr(S_SELHI)}, 0x07060302")
        a(f"s_mov_b32 {sr(S_C)}, 0x{f32bits(scale_log2e):08x}")
        a(f"s_mov_b32 {sr(S_MASK)}, 0x000f000f")
        a(f"s_mov_b32 {sr(S_MASK+1)}, {sr(S_MASK)}")
        for b in range(1, 4):
            a(f"s_lshl_b64 {sr(S_MASK+2*b,2)}, {sr(S_MASK,2)}, {4*b}")
        for i in range(1, NSPLIT):
            a(f"s_xor_b32 {sr(S_OTH+i-1)}, {sr(S_SLOT)}, {i*SLOT}")
        out_srd()

    def dpp(b, r):
        n = (4 * (b - r)) % 16
        ctl = "quad_perm:[0,1,2,3]" if n == 0 else f"row_ror:{n}"
        return f"{ctl} row_mask:0xf bank_mask:0x{1<<b:x}"

    def k_dpp(j, r):
        i, b = j % 8, (j // 8) % 4
        s_ = V_S + i
        d = V_DA + 4 * i + r
        if r == 0:
            a.op("dpp", f"v_mov_b32_dpp {vr(s_)}, {vr(d)} {dpp(b, 0)}", [s_], [d])
        else:
            a.op("dpp", f"v_add_f32_dpp {vr(s_)}, {vr(d)}, {vr(s_)} {dpp(b, r)}", [s_], [d, s_])

    def v_perms(j, z):
        T, p_ = (j - NK) // 8, (j % 8) // 2
        stg = V_STG + 32 * (T % 2)
        for q in range(4):
            lo, hi = lbuf(j - 1) + q, lbuf(j) + q
            d = stg + 8 * q + 4 * z + p_
            a.op("valu", f"v_perm_b32 {vr(d)}, {vr(hi)}, {vr(lo)}, {sr(S_SELHI if z else S_SELLO)}", [d], [lo, hi])

    def step(j):
        if args.vlat and j == NK + args.vlat - 1:
            stamp(2)
        if j < NK:
            if j == 0:
                stamp(2)
            d = V_DA + 4 * (j % 8)
            a.op("mfma", f"v_mfma_f32_16x16x32_bf16 {vr(d,4)}, {vr(lbuf(j),4)}, {vr(V_Q,4)}, 0", R4(d), [])
        for r in range(4):
            jj = j - 2 - r
            if 0 <= jj < NK:
                k_dpp(jj, r)
        jj = j - 6
        if 0 <= jj < NK and (jj // 8) % 4 == 3:
            s_ = V_S + jj % 8
            a.op("valu", f"v_max_f32 {vr(V_M)}, {vr(V_M)}, {vr(s_)}", [V_M], [V_M, s_])
            if jj % 4 == 3:
                h = (jj % 8) // 4
                a(f"ds_write_b128 {vr(V_LW)}, {vr(V_S+4*h,4)} offset:{LDS_S+1024*h}")
                if h == 1:
                    a(f"v_add_u32 {vr(V_LW)}, 2048, {vr(V_LW)}")
        if NK <= j < NL and j % 2 == 1:
            v_perms(j, 0)
        if NK <= j - 1 < NL and (j - 1) % 2 == 1:
            v_perms(j - 1, 1)

    fifo = []

    def allreduce_fns(op, reg):
        def f1():
            a.op("dpp", f"{op}_dpp {vr(reg)}, {vr(reg)}, {vr(reg)} row_ror:4 row_mask:0xf bank_mask:0xf", [reg], [reg])
        def f2():
            a.op("dpp", f"{op}_dpp {vr(reg)}, {vr(reg)}, {vr(reg)} row_ror:8 row_mask:0xf bank_mask:0xf", [reg], [reg])
            a.op("valu", f"v_mov_b32 {vr(V_T0)}, {vr(reg)}", [V_T0], [reg])
        def f3():
            a.op("dpp", f"v_permlane32_swap_b32 {vr(V_T0)}, {vr(reg)}", [V_T0, reg], [V_T0, reg])
            a("s_nop 0")
            a.op("valu", f"{op} {vr(reg)}, {vr(V_T0)}, {vr(reg)}", [reg], [V_T0, reg])
            a.op("valu", f"v_mov_b32 {vr(V_T0)}, {vr(reg)}", [V_T0], [reg])
        def f4():
            a.op("dpp", f"v_permlane16_swap_b32 {vr(V_T0)}, {vr(reg)}", [V_T0, reg], [V_T0, reg])
            a("s_nop 0")
            a.op("valu", f"{op} {vr(reg)}, {vr(V_T0)}, {vr(reg)}", [reg], [V_T0, reg])
        return [f1, f2, f3, f4]

    def rd():
        a(f"ds_read_b128 {vr(V_S,4)}, {vr(V_LR)} offset:{LDS_S}")
        a(f"ds_read_b128 {vr(V_S+4,4)}, {vr(V_LR)} offset:{LDS_S+1024}")
        a(f"v_add_u32 {vr(V_LR)}, 2048, {vr(V_LR)}")

    def fm(lo):
        def f():
            if lo == 0:
                a("s_waitcnt lgkmcnt(0)")
            for i in range(V_S + lo, V_S + lo + 4):
                a.op("valu", f"v_fma_f32 {vr(i)}, {vr(i)}, {sr(S_C)}, -{vr(V_M)}", [i], [i, V_M])
        return f

    def ex(lo):
        def f():
            for i in range(V_S + lo, V_S + lo + 2):
                a.op("trans", f"v_exp_f32 {vr(i)}, {vr(i)}", [i], [i])
        return f

    def cv():
        for i in range(4):
            a.op("valu", f"v_cvt_pk_bf16_f32 {vr(V_P+i)}, {vr(V_S+2*i)}, {vr(V_S+2*i+1)}", [V_P + i], [V_S + 2 * i, V_S + 2 * i + 1])

    def add(d, x, y):
        a.op("valu", f"v_add_f32 {vr(d)}, {vr(x)}, {vr(y)}", [d], [x, y])

    def s1():
        for i in range(0, 8, 2):
            add(V_S + i, V_S + i, V_S + i + 1)

    def s2():
        add(V_S, V_S, V_S + 2)
        add(V_S + 4, V_S + 4, V_S + 6)
        add(V_S, V_S, V_S + 4)
        add(V_L, V_L, V_S)

    def mask_item(T):
        def f():
            PM = V_PM + 4 * (T % 2)
            for i in range(4):
                a.op("valu", f"v_cndmask_b32 {vr(PM+i)}, 0, {vr(V_P+i)}, {sr(S_MASK+2*(T%4),2)}", [PM + i], [V_P + i])
        return f

    def pv_item(T, dd):
        def f():
            PM = V_PM + 4 * (T % 2)
            bq = V_STG + 32 * (T % 2) + 4 * dd
            d = V_DA + 4 * dd
            extra = R4(d) if T == NT - 1 else []
            a.op("mfma", f"v_mfma_f32_16x16x32_bf16 {vr(d,4)}, {vr(PM,4)}, {vr(bq,4)}, {'0' if T == 0 else vr(d,4)}", R4(d), R4(PM) + R4(bq) + extra)
        return f

    def mscale():
        a.op("valu", f"v_mul_f32 {vr(V_M)}, {sr(S_C)}, {vr(V_M)}", [V_M], [V_M])
        stamp(4)

    pre = [fm(0), fm(4), ex(0), ex(2), ex(4), ex(6)]
    fifo.append((NK + 5, None, lambda: (stamp(3), rd()), False))
    for f in allreduce_fns("v_max_f32", V_M) + [mscale] + pre + [cv, mask_item(0)]:
        fifo.append((NK + 5, None, f, False))
    ORDER = [0, 2, 4, 6, 1, 3, 5, 7]
    for T in range(NT - 1):
        A, b = T // 4, T % 4
        base = NK + 8 * T
        lastg = A == NA - 1
        for dd in ORDER:
            fifo.append((base + 7 + (dd % 2), base + 17, pv_item(T, dd), False))
        side = []
        if b != 3 and T + 1 < NT - 1:
            side.append((mask_item(T + 1), False))
        if b == 0:
            side += [(s1, False), (s2, False), (rd, lastg)]
        if b == 1:
            side += [(f, lastg) for f in pre[:3]]
        if b == 2 and not lastg:
            side += [(f, False) for f in pre[3:]]
        if b == 3:
            side += [(cv, False), (mask_item(T + 1), False)]
        for f, opt in side:
            fifo.append((0, None, f, opt))

    def red(stage, lo, hi):
        def f():
            for dd in range(lo, hi):
                d = V_DA + 4 * dd
                if stage == 0:
                    a.op("dpp", f"v_permlane32_swap_b32 {vr(d)}, {vr(d+2)}", [d, d + 2], [d, d + 2])
                    a.op("dpp", f"v_permlane32_swap_b32 {vr(d+1)}, {vr(d+3)}", [d + 1, d + 3], [d + 1, d + 3])
                elif stage == 1:
                    add(d, d, d + 2)
                    add(d + 1, d + 1, d + 3)
                elif stage == 2:
                    a.op("dpp", f"v_permlane16_swap_b32 {vr(d)}, {vr(d+1)}", [d, d + 1], [d, d + 1])
                else:
                    add(d, d, d + 1)
        return f

    def factors():
        a("s_waitcnt lgkmcnt(0)")
        MW, LW = OWN + 8, OWN + 9
        a.op("valu", f"v_max_f32 {vr(MW)}, {vr(ML)}, {vr(ML+2)}", [MW], [ML, ML + 2])
        for r in (ML, ML + 2, V_F):
            a.op("valu", f"v_sub_f32 {vr(r)}, {vr(r)}, {vr(MW)}", [r], [r, MW])
        for r in (ML, ML + 2, V_F):
            a.op("trans", f"v_exp_f32 {vr(r)}, {vr(r)}", [r], [r])
        a.op("valu", f"v_mul_f32 {vr(LW)}, {vr(ML)}, {vr(ML+1)}", [LW], [ML, ML + 1])
        a.op("valu", f"v_fmac_f32 {vr(LW)}, {vr(ML+2)}, {vr(ML+3)}", [LW], [ML + 2, ML + 3, LW])
        a.op("valu", f"v_min_u32 {vr(MW)}, 0xfffffffe, {vr(MW)}", [MW], [MW])
        a.op("valu", f"v_min_u32 {vr(LW)}, 0xfffffffe, {vr(LW)}", [LW], [LW])
        a(f"v_readfirstlane_b32 {sr(S_LOC)}, {vr(OWN+10)}")

    fifo.append((0, None, factors, False))
    for stage in range(4):
        fifo.append((0, None, red(stage, 0, 4), False))
        fifo.append((0, None, red(stage, 4, 8), False))

    def q_load():
        issue("Q", f"buffer_load_dwordx4 {vr(V_Q,4)}, {vr(V_T2)}, {sr(SRD_Q,4)}, 0 offen")
    if args.qat < 0:
        q_load()
    st = dict(nstep=0, fi=0, drain=False)

    def pop():
        e, dl, fn, opt = fifo[st["fi"]]
        st["fi"] += 1
        if opt and st["drain"]:
            return False
        fn()
        return True

    def run_step():
        j = st["nstep"]
        last_due = max([k for k in range(st["fi"], len(fifo)) if fifo[k][1] is not None and fifo[k][1] <= j], default=-1)
        while st["fi"] <= last_due:
            assert fifo[st["fi"]][0] < j
            pop()
        step(j)
        st["nstep"] += 1

    def run_fifo(n):
        while n > 0 and st["fi"] < len(fifo) and fifo[st["fi"]][0] < st["nstep"]:
            if pop():
                n -= 1

    did_setup = False
    marks = []
    for i in range(NL):
        need = i - depth(i)
        if need >= 0 and not did_setup:
            setup_rest()
            did_setup = True
        marks.append(len(a.lines))
        if need >= 0:
            wait_for(f"L{need}")
        if i >= 16:
            old = i - 16
            must = old if old < NK else (old | 1) + 1
            while st["nstep"] <= must:
                wait_for("Q")
                wait_for(f"L{min(st['nstep'], i-1)}")
                run_step()
        emit_load(i)
        if args.vlat and i == NK + args.vlat - 1:
            stamp(1)
        if i == args.qat:
            q_load()
        if i == NL - 1 - args.pfat:
            a.c("bring this workgroup's slot lines into L2, so that the partial written later can be read from there")
            a(f"v_bfe_u32 {vr(V_H8)}, v0, 4, 2")
            a(f"v_lshlrev_b32 {vr(V_H8)}, 3, {vr(V_H8)}")
            for k_ in range(2):
                issue(f"PF{k_}", f"buffer_load_dwordx4 {vr(PB+4*k_,4)}, {vr(V_OFFV)}, {sr(SRD_WS,4)}, {sr(S_SLOT)} offen offset:{1024*k_} {args.pfflags}".rstrip())
            issue("PF2", f"buffer_load_dwordx2 {vr(PB+8,2)}, {vr(V_H8)}, {sr(SRD_WS,4)}, {sr(S_SLOT)} offen offset:2048 {args.pfflags}".rstrip())
        ran = 0
        while did_setup and st["nstep"] < NL and is_done(f"L{st['nstep']}") and is_done("Q") and \
                (ran < args.spl or (ran < 2 and is_done(f"L{st['nstep']+1}"))):
            run_step()
            ran += 1
        run_fifo(args.ppl)
    marks.append(len(a.lines))
    if args.fold:
        chunks = [a.lines[marks[i]:marks[i + 1]] for i in range(NL)]
        outl = list(a.lines[:marks[0]])
        i = 0
        nloop = 0
        while i < NL:
            e = i
            while e + 32 < NL and chunks[e] == chunks[e + 32]:
                e += 1
            if e - i >= 32:
                total = e + 32 - i
                full, part = divmod(total, 32)
                outl.append(f"    s_mov_b32 {sr(S_CNT)}, {full if part else full - 1}")
                outl.append(f"L_loop{nloop}:")
                for k in range(32):
                    if part and k == part:
                        outl.append(f"    s_sub_u32 {sr(S_CNT)}, {sr(S_CNT)}, 1")
                        outl.append(f"    s_cbranch_scc1 L_done{nloop}")
                    outl += chunks[i + k]
                if part:
                    outl.append(f"    s_branch L_loop{nloop}")
                else:
                    outl.append(f"    s_sub_u32 {sr(S_CNT)}, {sr(S_CNT)}, 1")
                    outl.append(f"    s_cbranch_scc0 L_loop{nloop}")
                outl.append(f"L_done{nloop}:")
                nloop += 1
                i += total
            else:
                outl += chunks[i]
                i += 1
        a.lines = outl

    st["drain"] = True
    assert any(f[2] is factors for f in fifo[st["fi"]:]), "the merge factors need the barrier below"
    assert all(f[2] not in (s1, s2) for f in fifo[st["fi"]:]), "row sums must be complete here"
    a.c("all loads issued: share (max, sum) of the two waves, take the ticket")
    for f in allreduce_fns("v_add_f32", V_L):
        f()
    a(f"s_lshl_b32 {sr(S_T1)}, {sr(S_WAVE)}, 5")
    a(f"v_and_b32 {vr(V_T1)}, 3, v0")
    a(f"v_lshl_add_u32 {vr(V_T1)}, {vr(V_T1)}, 3, {sr(S_T1)}")
    a(f"ds_write_b64 {vr(V_T1)}, {vr(V_M,2)} offset:{LDS_ML}")
    a(f"v_bfe_u32 {vr(V_T1)}, v0, 4, 2")
    a(f"v_lshlrev_b32 {vr(V_T1)}, 3, {vr(V_T1)}")
    a(f"v_add_u32 {vr(V_T0)}, {sr(S_T1)}, {vr(V_T1)}")
    a(f"v_and_b32 {vr(V_T2)}, 0x3c, v0")
    a(f"v_lshrrev_b32 {vr(V_TA)}, 2, {vr(V_T2)}")
    a(f"v_and_b32 {vr(V_TA)}, 3, {vr(V_TA)}")
    a(f"v_and_b32 {vr(V_T2)}, 0x30, {vr(V_T2)}")
    a(f"v_add3_u32 {vr(V_T2)}, {vr(V_T2)}, {vr(V_TA)}, 12")
    a(f"v_lshlrev_b32 {vr(V_T2)}, 2, {vr(V_T2)}")
    a(f"s_lshl_b32 {sr(S_T1)}, {sr(S_BH)}, 2")
    a(f"v_mov_b32 {vr(V_TA)}, {sr(S_T1)}")
    a(f"v_mov_b32 {vr(V_ONE)}, 1")
    a(f"v_mov_b32 {vr(V_TK)}, 0")
    a(f"s_cmp_lg_u32 {sr(S_WAVE)}, 0")
    a("s_waitcnt lgkmcnt(0)")
    a.c("passes only once the helper wave has ended, i.e. this workgroup's slot marking is complete")
    a("s_barrier")
    a("s_cbranch_scc1 L_noticket")
    a.count = False
    a("s_mov_b64 exec, 1")
    a(f"global_atomic_add {vr(V_TK)}, {vr(V_TA)}, {vr(V_ONE)}, {sr(S_DBG,2)} sc0")
    a("s_mov_b64 exec, -1")
    a.count = True
    a.label("L_noticket")
    a(f"v_mov_b32 {vr(OWN+11)}, 0")
    a(f"ds_read_b32 {vr(OWN+10)}, {vr(OWN+11)} offset:{LDS_LOC}")
    a(f"ds_read_b64 {vr(ML,2)}, {vr(V_T1)} offset:{LDS_ML}")
    a(f"ds_read_b64 {vr(ML+2,2)}, {vr(V_T1)} offset:{LDS_ML+32}")
    a(f"ds_read_b32 {vr(V_F)}, {vr(V_T0)} offset:{LDS_ML}")
    PL = V_PM + 4 * ((NT - 1) % 2)
    assert all(not (f[1] == NK + 8 * (NT - 3) + 17) for f in fifo[st["fi"]:]), "tile NT-3 must be multiplied"
    a.c("last tile: P with rows ordered by head, so its product needs no bank fold")
    for i in range(4):
        a(f"ds_bpermute_b32 {vr(PL+i)}, {vr(V_T2)}, {vr(V_P+i)}")
    a(f"s_mov_b32 {sr(S_SPIN)}, 0x20000")

    while st["nstep"] < NL - 1:
        wait_for(f"L{st['nstep']}")
        run_step()
        run_fifo(args.dpl)
    run_fifo(1000)
    assert st["fi"] == len(fifo), (st, len(fifo))

    PSET = [PB, V_BUF]

    def poll_loads(z=0):
        pb = PSET[z]
        for s_ in range(3):
            a(f"buffer_load_dwordx2 {vr(pb+12*s_+8,2)}, {vr(V_H8)}, {sr(SRD_WS,4)}, {sr(S_OTH+s_)} offen offset:2048 {hfl}")
        for s_ in range(3):
            a(f"buffer_load_dwordx4 {vr(pb+12*s_,4)}, {vr(V_OFFV)}, {sr(SRD_WS,4)}, {sr(S_OTH+s_)} offen {hfl}")
            a(f"buffer_load_dwordx4 {vr(pb+12*s_+4,4)}, {vr(V_OFFV)}, {sr(SRD_WS,4)}, {sr(S_OTH+s_)} offen offset:1024 {hfl}")

    a("s_waitcnt vmcnt(0)")
    state["done"] = len(loads) - 1
    stamp(5)
    a(f"v_readfirstlane_b32 {sr(S_TK)}, {vr(V_TK)}")
    run_step()
    a(f"s_cmp_lg_u32 {sr(S_TK)}, {NSPLIT-1}")
    a("s_cbranch_scc1 L_nopoll")
    a.count = False
    poll_loads()
    a.count = True
    a.label("L_nopoll")
    run_step()
    for dd in ORDER:
        pv_item(NT - 1, dd)()
    a(f"s_cmp_lg_u32 {sr(S_WAVE)}, 0")
    a("s_cbranch_scc1 L_send")
    saved = (a.pos, dict(a.wr))
    a("s_barrier")
    a(f"ds_read_b128 {vr(OTH,4)}, {vr(V_OFFV)} offset:{LDS_O}")
    a(f"ds_read_b128 {vr(OTH+4,4)}, {vr(V_OFFV)} offset:{LDS_O+1024}")
    stamp(6)
    a(f"s_cmp_eq_u32 {sr(S_TK)}, {NSPLIT-1}")
    a("s_waitcnt lgkmcnt(0)")
    for e in ORDER:
        a.op("valu", f"v_fma_f32 {vr(OWN+e)}, {vr(V_F)}, {vr(V_DA+4*e)}, {vr(OTH+e)}", [OWN + e], [V_F, V_DA + 4 * e])
    stamp(7)
    a("s_cbranch_scc1 L_again1")
    a.c("publish the partial; no word equals the all-ones marker")
    for e in range(8):
        a(f"v_min_u32 {vr(OWN+e)}, 0xfffffffe, {vr(OWN+e)}")
    a(f"s_cmp_eq_u32 {sr(S_LOC)}, 1")
    a("s_cbranch_scc0 L_pubfar")
    slot_stores(OWN, OWN + 4, OWN + 8, "")
    a("s_branch L_end")
    a.label("L_pubfar")
    slot_stores(OWN, OWN + 4, OWN + 8, hfl)
    a("s_branch L_end")

    a.label("L_send")
    a.pos, a.wr = saved
    for e in ORDER:
        a.op("valu", f"v_mul_f32 {vr(OTH+e)}, {vr(V_F)}, {vr(V_DA+4*e)}", [OTH + e], [V_F, V_DA + 4 * e])
    a(f"ds_write_b128 {vr(V_OFFV)}, {vr(OTH,4)} offset:{LDS_O}")
    a(f"ds_write_b128 {vr(V_OFFV)}, {vr(OTH+4,4)} offset:{LDS_O+1024}")
    a("s_waitcnt lgkmcnt(0)")
    a("s_barrier")
    a("s_branch L_end")

    def finish(z):
        y = 1 - z if args.sets == 2 else 0
        X = 9 if args.sets == 2 else 0
        pb = PSET[y]
        part = lambda s_: OWN if s_ == 0 else pb + 12 * (s_ - 1)
        a.label(f"L_again{z}")
        poll_loads(z)
        if args.sets == 1:
            a.label("L_again1")
        a(f"s_waitcnt vmcnt({X+6})")
        a(f"v_max3_u32 {vr(V_T1)}, {vr(pb+8)}, {vr(pb+20)}, {vr(pb+32)}")
        a(f"v_max3_f32 {vr(V_T0)}, {vr(OWN+8)}, {vr(pb+8)}, {vr(pb+20)}")
        a(f"v_cmp_eq_u32 vcc, -1, {vr(V_T1)}")
        a(f"v_max_f32 {vr(V_T0)}, {vr(V_T0)}, {vr(pb+32)}")
        a(f"s_sub_u32 {sr(S_SPIN)}, {sr(S_SPIN)}, 1")
        a(f"s_cbranch_scc1 L_go{y}")
        a(f"s_cbranch_vccnz L_again{y}")
        a.label(f"L_go{y}")
        a.c("an unwritten word is a NaN and poisons the result; that is checked before the store")
        for s_ in range(4):
            a(f"v_sub_f32 {vr(FAC+s_)}, {vr(part(s_)+8)}, {vr(V_T0)}")
        for s_ in range(4):
            a(f"v_exp_f32 {vr(FAC+s_)}, {vr(FAC+s_)}")
        a("s_nop 0")
        a(f"v_mul_f32 {vr(V_T1)}, {vr(FAC)}, {vr(OWN+9)}")
        for s_ in range(1, 4):
            a(f"v_fmac_f32 {vr(V_T1)}, {vr(FAC+s_)}, {vr(part(s_)+9)}")
        a(f"v_rcp_f32 {vr(V_T1)}, {vr(V_T1)}")
        a("s_nop 0")
        for s_ in range(4):
            a(f"v_mul_f32 {vr(FAC+s_)}, {vr(FAC+s_)}, {vr(V_T1)}")
        for e in range(8):
            a(f"v_mul_f32 {vr(OUT+e)}, {vr(FAC)}, {vr(OWN+e)}")
        for s_ in range(1, 4):
            a(f"s_waitcnt vmcnt({X+2*(3-s_)})")
            for e in range(8):
                a(f"v_fmac_f32 {vr(OUT+e)}, {vr(FAC+s_)}, {vr(part(s_)+e)}")
        a(f"v_cmp_u_f32 vcc, {vr(OUT)}, {vr(OUT+1)}")
        a(f"v_cmp_u_f32 {sr(S_NAN,2)}, {vr(OUT+2)}, {vr(OUT+3)}")
        a(f"v_cvt_pk_bf16_f32 {vr(OUT+8)}, {vr(OUT)}, {vr(OUT+1)}")
        a(f"s_or_b64 {sr(S_NAN,2)}, {sr(S_NAN,2)}, vcc")
        a(f"v_cmp_u_f32 vcc, {vr(OUT+4)}, {vr(OUT+5)}")
        a(f"v_cvt_pk_bf16_f32 {vr(OUT+9)}, {vr(OUT+2)}, {vr(OUT+3)}")
        a(f"s_or_b64 {sr(S_NAN,2)}, {sr(S_NAN,2)}, vcc")
        a(f"v_cmp_u_f32 vcc, {vr(OUT+6)}, {vr(OUT+7)}")
        a(f"v_cvt_pk_bf16_f32 {vr(OUT+10)}, {vr(OUT+4)}, {vr(OUT+5)}")
        a(f"v_cvt_pk_bf16_f32 {vr(OUT+11)}, {vr(OUT+6)}, {vr(OUT+7)}")
        a(f"s_or_b64 {sr(S_NAN,2)}, {sr(S_NAN,2)}, vcc")
        a("s_cbranch_scc0 L_store")
        a.c("NaN in the result: poll again if a marker word is still there, else the NaN is genuine")
        regs = [pb + 12 * s_ + e for s_ in range(3) for e in range(10)]
        a(f"v_max3_u32 {vr(V_T0)}, {vr(regs[0])}, {vr(regs[1])}, {vr(regs[2])}")
        a(f"v_max3_u32 {vr(V_T1)}, {vr(regs[3])}, {vr(regs[4])}, {vr(regs[5])}")
        rest = regs[6:]
        k = 0
        while rest:
            t = V_T0 if k % 2 == 0 else V_T1
            a(f"v_max3_u32 {vr(t)}, {vr(t)}, {vr(rest[0])}, {vr(rest[1])}")
            rest = rest[2:]
            k += 1
        a(f"v_max_u32 {vr(V_T0)}, {vr(V_T0)}, {vr(V_T1)}")
        a(f"v_cmp_eq_u32 vcc, -1, {vr(V_T0)}")
        a(f"s_cmp_lt_i32 {sr(S_SPIN)}, 0")
        a("s_cbranch_scc1 L_store")
        a("s_nop 2")
        a(f"s_cbranch_vccnz L_again{y}")
        a("s_branch L_store")

    finish(0)
    if args.sets == 2:
        finish(1)
    a.label("L_store")
    stamp(8)
    a(f"buffer_store_dwordx4 {vr(OUT+8,4)}, {vr(V_OFFV)}, {sr(SRD_OUT,4)}, {sr(S_OOFF)} offen {args.oflags}".rstrip())
    if args.stamps:
        a("s_waitcnt vmcnt(0)")
    stamp(9)
    a.label("L_end")
    dump_stamps()
    a.label("L_exit")
    a("s_endpgm")

    def touch():
        a.c("one early read of this split's V range, so that its address translation is cached when pass 2 starts")
        a(f"s_lshl_b32 {sr(S_T0)}, {sr(S_BH)}, 21")
        a(f"s_lshl_b32 {sr(S_OOFF)}, {sr(S_SPLIT)}, 19")
        a(f"s_add_u32 {sr(S_T0)}, {sr(S_T0)}, {sr(S_OOFF)}")
        v_srd()
        a("s_mov_b64 exec, 1")
        a(f"buffer_load_dword v26, {vr(V_OFFV)}, {sr(SRD_V,4)}, 0 offen nt")
        a("s_mov_b64 exec, -1")

    a.label("L_helper")
    a.c("helper wave: mark this workgroup's partial slot as not yet written (all-ones words), and find out")
    a.c("with a challenge/echo through d_ws whether all four splits run on this XCD (then L2 carries the hand-off)")
    H_OWN, H_PEER, H_X, H_N, H_C, H_A = 16, 17, 18, 19, 20, 21
    CHAL, ACK = 3072, 3200
    if args.hdelay:
        a(f"s_sleep {args.hdelay}")
    ws_srd()
    a(f"v_bfe_u32 {vr(V_H8)}, v0, 4, 2")
    a(f"v_lshlrev_b32 {vr(V_H8)}, 3, {vr(V_H8)}")
    a(f"v_lshrrev_b32 {vr(V_T0)}, 4, {vr(V_OFFV)}")
    a(f"v_lshlrev_b32 {vr(V_T1)}, 2, {vr(V_T0)}")
    a(f"v_add_u32 {vr(H_OWN)}, {sr(S_SLOT)}, {vr(V_T1)}")
    a(f"v_lshlrev_b32 {vr(V_T0)}, 12, {vr(V_T0)}")
    a(f"v_xor_b32 {vr(H_PEER)}, {vr(V_T0)}, {vr(H_OWN)}")
    for i in range(4):
        a(f"v_mov_b32 {vr(V_P+i)}, -1")
    a(f"s_getreg_b32 {sr(S_T1)}, hwreg(HW_REG_XCC_ID, 0, 4)")
    if args.touch == 1:
        touch()
    a("s_mov_b64 exec, 14")
    a(f"buffer_load_dword {vr(H_X)}, {vr(H_OWN)}, {sr(SRD_WS,4)}, 0 offen offset:{ACK} {hfl}")
    a("s_mov_b64 exec, -1")
    slot_stores(V_P, V_P, V_P, "")
    a("s_mov_b64 exec, 14")
    a("s_waitcnt vmcnt(0)")
    a(f"v_add_u32 {vr(H_N)}, 16, {vr(H_X)}")
    a(f"v_and_b32 {vr(H_N)}, -16, {vr(H_N)}")
    a(f"buffer_store_dword {vr(H_N)}, {vr(H_OWN)}, {sr(SRD_WS,4)}, 0 offen offset:{CHAL}")
    a(f"v_or_b32 {vr(H_X)}, {sr(S_T1)}, {vr(H_N)}")
    a(f"s_mov_b32 {sr(S_CNT)}, {args.hrounds-1}")
    a.label("L_echo")
    a(f"s_sleep {args.hsleep}")
    a(f"buffer_load_dword {vr(H_C)}, {vr(H_PEER)}, {sr(SRD_WS,4)}, 0 offen offset:{CHAL} {hfl}")
    a("s_waitcnt vmcnt(0)")
    a(f"v_and_b32 {vr(H_C)}, -16, {vr(H_C)}")
    a(f"v_or_b32 {vr(H_C)}, {sr(S_T1)}, {vr(H_C)}")
    a(f"buffer_store_dword {vr(H_C)}, {vr(H_PEER)}, {sr(SRD_WS,4)}, 0 offen offset:{ACK}")
    a(f"s_sub_u32 {sr(S_CNT)}, {sr(S_CNT)}, 1")
    a("s_cbranch_scc0 L_echo")
    a(f"s_sleep {args.hsleep}")
    a(f"buffer_load_dword {vr(H_A)}, {vr(H_OWN)}, {sr(SRD_WS,4)}, 0 offen offset:{ACK} {hfl}")
    a("s_waitcnt vmcnt(0)")
    a(f"v_cmp_eq_u32 vcc, {vr(H_A)}, {vr(H_X)}")
    a("s_mov_b64 exec, -1")
    a(f"v_mov_b32 {vr(V_T0)}, 0")
    a("s_cmp_eq_u64 vcc, 14")
    a(f"s_cselect_b32 {sr(S_T0)}, {0 if args.nolocal else 1}, 0")
    a(f"v_mov_b32 {vr(V_T1)}, {sr(S_T0)}")
    a(f"ds_write_b32 {vr(V_T0)}, {vr(V_T1)} offset:{LDS_LOC}")
    a(f"s_cmp_eq_u32 {sr(S_T0)}, 1")
    a("s_cbranch_scc1 L_hend")
    a.c("not verified: the marking has to reach memory")
    slot_stores(V_P, V_P, V_P, hfl)
    a.label("L_hend")
    if args.touch == 2:
        touch()
    a("s_waitcnt vmcnt(0) lgkmcnt(0)")
    a("s_endpgm")

    nvgpr = V_END
    accum = min(256, (nvgpr + 3) // 4 * 4)
    out = HEADER
    out += f"; @launch grid=({NWG},1,1) block=({(NW+1)*64},1,1) lds={LDS_BYTES}\n"
    out += '.amdgcn_target "amdgcn-amd-amdhsa--gfx950"\n.text\n'
    out += f".globl {NAME}\n.p2align 8\n.type {NAME},@function\n{NAME}:\n"
    out += a.text()
    out += f""".section .rodata,"a"
.p2align 6
.amdhsa_kernel {NAME}
  .amdhsa_next_free_vgpr {nvgpr}
  .amdhsa_next_free_sgpr {S_NEXT}
  .amdhsa_accum_offset {accum}
  .amdhsa_group_segment_fixed_size 0
  .amdhsa_kernarg_size 48
  .amdhsa_user_sgpr_count 2
  .amdhsa_user_sgpr_kernarg_segment_ptr 1
  .amdhsa_system_sgpr_workgroup_id_x 1
.end_amdhsa_kernel
"""
    return out


if __name__ == "__main__":
    ap = argparse.ArgumentParser()
    ap.add_argument("--d", type=int, default=11)
    ap.add_argument("--bf", type=float, default=2.0)
    ap.add_argument("--bd", type=int, default=13)
    ap.add_argument("--pfflags", default="")
    ap.add_argument("--strict", type=lambda x: int(x, 0), default=0x55)
    ap.add_argument("--pfat", type=int, default=8)
    ap.add_argument("--hrounds", type=int, default=3)
    ap.add_argument("--hsleep", type=int, default=16)
    ap.add_argument("--nolocal", type=int, default=0)
    ap.add_argument("--sets", type=int, default=1)
    ap.add_argument("--qat", type=int, default=-1)
    ap.add_argument("--hdelay", type=int, default=0)
    ap.add_argument("--vlat", type=int, default=0)
    ap.add_argument("--sn", type=int, default=0)
    ap.add_argument("--sd", type=int, default=13)
    ap.add_argument("--ppl", type=int, default=2, help="side items per load slot")
    ap.add_argument("--dpl", type=int, default=4, help="side items per step while draining")
    ap.add_argument("--spl", type=int, default=1, help="max steps per load slot")
    ap.add_argument("--fold", type=int, default=1)
    ap.add_argument("--touch", type=int, default=0)
    ap.add_argument("--padx", default="")
    ap.add_argument("--flags", default="nt")
    ap.add_argument("--hflags", default="sc1")
    ap.add_argument("--oflags", default="")
    ap.add_argument("--rot", type=int, default=16)
    ap.add_argument("--stamps", type=int, default=0)
    ap.add_argument("-o", default="standalone__gqa_softmax__decode.s")
    args = ap.parse_args()
    open(args.o, "w").write(gen(args))
```
